```python
import torch

def _softmax(x, axis=-1):
    return torch.softmax(x, dim=axis)
def _gelu(x):
    return torch.nn.functional.gelu(x, approximate="tanh")
def _silu(x):
    return torch.nn.functional.silu(x)
def _sigmoid(x):
    return torch.sigmoid(x)
def _layernorm(x, axis=-1, eps=1e-5):
    m = x.mean(dim=axis, keepdim=True)
    v = x.var(dim=axis, keepdim=True, unbiased=False)
    return (x - m) / torch.sqrt(v + eps)
def _scatter_add(tgt, idx, src, axis=0):
    return tgt.clone().index_add_(axis, idx, src)
def _segment_sum(src, seg, n):
    out = torch.zeros((n,) + src.shape[1:], dtype=src.dtype)
    return out.index_add_(0, seg, src)
def _pad(x, pw):
    flat = tuple(v for pair in reversed(pw) for v in pair)
    return torch.nn.functional.pad(x, flat)

kernel_name = 'standalone__mha_softmax__near_ridge'

def setup_inputs():

    _w = (lambda a: (lambda t: t.to(torch.bfloat16) if t.is_floating_point() else t)(torch.as_tensor(a)))
    B, H, Sq, Sk, D = 16, 32, 768, 512, 128
    return {
        "q": _w((lambda *s: torch.randn(*s, dtype=torch.bfloat16) * 0.8)(B, H, Sq, D)),
        "k": _w((lambda *s: torch.randn(*s, dtype=torch.bfloat16) * 0.8)(B, H, Sk, D)),
        "v": _w((lambda *s: torch.randn(*s, dtype=torch.bfloat16) * 0.05)(B, H, Sk, D)),
    }

def reference(q, k, v):
    scale = q.shape[-1] ** -0.5
    scores = torch.einsum("bhqd,bhkd->bhqk", q, k) * scale
    p = _softmax(scores, axis=-1)
    return torch.einsum("bhqk,bhkd->bhqd", p, v)
```

```python
import re

def R(kind, lo, n=1):
    return [(kind, lo + i) for i in range(n)]
def rs(kind, lo, n=1):
    return f"{kind}{lo}" if n == 1 else f"{kind}[{lo}:{lo+n-1}]"

class Ins:
    __slots__ = ("text", "kind", "rd", "wr", "cost", "tag", "need", "srcc", "nogap", "id", "ab", "minpos")
    _n = 0
    def __init__(self, text, kind, rd=(), wr=(), cost=None, tag=None, need=None, srcc=(), nogap=False, ab=(), minpos=-99):
        self.text = text; self.kind = kind; self.rd = list(rd); self.wr = list(wr)
        self.cost = cost if cost is not None else {"mfma": 8, "trans": 8}.get(kind, 4)
        self.tag = tag
        self.need = need
        self.srcc = list(srcc)
        self.ab = list(ab)
        self.nogap = nogap
        self.minpos = minpos
        Ins._n += 1; self.id = Ins._n
    def __repr__(self): return self.text

class Stream:
    def __init__(self, name, ops, release, deadline, prio=0):
        self.name = name; self.ops = list(ops); self.release = release; self.deadline = deadline
        self.pos = 0; self.lastgap = -10; self.prio = prio
    def head(self): return self.ops[self.pos] if self.pos < len(self.ops) else None

VALUK = ("valu", "trans", "perm")

def schedule(backbone, streams, pre=None, target=8):
    pre = pre or {}
    out = []
    n = len(backbone)
    stats = []
    streams = sorted(streams, key=lambda s: s.release)
    active = []; nxt = 0
    for i in range(-1, n):
        gap = []
        if i >= 0: out.append(backbone[i])
        while nxt < len(streams) and streams[nxt].release <= i:
            active.append(streams[nxt]); nxt += 1
        fixed = pre.get(i + 1, [])
        fill = sum(x.cost for x in fixed)
        def take(s):
            nonlocal fill
            op = s.head(); s.pos += 1; s.lastgap = i; gap.append(op); fill += op.cost
        for s in active:
            if s.deadline <= i:
                while s.head() is not None: take(s)
            else:
                rem = sum(1 for o in s.ops[s.pos + 1:] if o.nogap)
                if s.head() is not None and s.deadline - i <= rem and not (s.head().nogap and s.lastgap == i) and s.head().minpos <= i:
                    take(s)
                    while s.head() is not None and not s.head().nogap and s.head().minpos <= i: take(s)
        if i >= 0:
            while fill < target:
                cands = [s for s in active if s.head() is not None and not (s.head().nogap and s.lastgap == i) and s.head().minpos <= i]
                if not cands: break
                room = target - fill
                fit = [s for s in cands if s.head().cost <= room]
                pool = fit if fit else cands
                def urg(s):
                    left = sum(o.cost for o in s.ops[s.pos:])
                    return (s.deadline - i) - left / 8.0 - s.prio
                s = min(pool, key=urg)
                take(s)
        active = [s for s in active if s.head() is not None]
        nv = [x for x in gap if x.kind not in VALUK]; vv = [x for x in gap if x.kind in VALUK]
        ordered = []
        pend = []
        for x in gap:
            if x.kind in VALUK: continue
            dep = False
            for y in gap:
                if y is x: break
                if y.kind in VALUK and (set(y.wr) & set(x.rd) or set(y.rd) & set(x.wr) or set(y.wr) & set(x.wr)): dep = True
                if y in pend and True: dep = dep or (y.kind == x.kind)
            if dep: pend.append(x)
            else: ordered.append(x)
        for x in gap:
            if x.kind in VALUK or x in pend: ordered.append(x)
        out += ordered
        out += fixed
        stats.append(fill)
    left = [s.name for s in active if s.head() is not None] + [s.name for s in streams[nxt:]]
    assert not left, f"unscheduled streams {left}"
    return out, stats

def resolve_waits(trace):
    best = {}
    q = {"vm": [], "lgkm": []}
    for ins in trace:
        if ins.kind in ("vmem", "dma", "store"): q["vm"].append(ins)
        elif ins.kind == "ds": q["lgkm"].append(ins)
        elif ins.kind == "wait" and ins.need is not None:
            for ctr, tags in ins.need:
                lst = q[ctr]
                if tags == "all": N = 0
                else:
                    idx = [k for k, o in enumerate(lst) if o.tag in tags]
                    N = len(lst) - 1 - max(idx) if idx else None
                if N is not None:
                    best[(ins.id, ctr)] = min(best.get((ins.id, ctr), 99), N)
                    q[ctr] = lst[len(lst) - N:] if N > 0 else []
    return best

def apply_waits(static_list, best):
    for ins in static_list:
        if ins.kind == "wait" and ins.need is not None:
            parts = []
            for ctr, tags in ins.need:
                N = best.get((ins.id, ctr))
                if N is None: continue
                mx = 63 if ctr == "vm" else 15
                parts.append(f"{'vmcnt' if ctr=='vm' else 'lgkmcnt'}({min(N,mx)})")
            ins.text = "s_waitcnt " + " ".join(parts) if parts else "s_nop 0"

def check(trace):
    errs = []
    q = {"vm": [], "lgkm": []}
    pend = {}
    lastw = {}
    lastc = {}
    laststore = {}
    pos = 0
    for ins in trace:
        if ins.kind in ("label", "comment"): continue
        t = ins.text
        if ins.kind == "wait" and t.startswith("s_waitcnt"):
            for ctr, nm in (("vm", "vmcnt"), ("lgkm", "lgkmcnt")):
                m = re.search(nm + r"\((\d+)\)", t)
                if m:
                    N = int(m.group(1)); lst = q[ctr]
                    done = lst[:len(lst) - N] if N < len(lst) else []
                    q[ctr] = lst[len(done):]
                    for o in done:
                        for r in o.wr:
                            if pend.get(r) is o: del pend[r]
        for r in list(ins.rd) + list(ins.wr):
            if r in pend: errs.append(f"uncovered load result {r} from [{pend[r].text}] used by [{t}]")
        def dist(r): return pos - lastw[r][0] - 1
        for r in ins.rd:
            if r in lastw:
                k = lastw[r][1]; d = dist(r); need = 0
                if k == "mfma":
                    if ins.kind == "mfma":
                        if r in ins.srcc:
                            need = 0 if lastw[r][2] == tuple(ins.srcc) else 6
                        if r in ins.ab: need = 8
                    else: need = 8
                elif k in VALUK:
                    if ins.kind == "mfma": need = 2
                    elif ins.kind == "perm": need = 2
                    elif k == "trans" and ins.kind in ("valu", "perm", "store", "ds"): need = max(need, 1)
                    if r[0] == "s" or r == ("vcc", 0):
                        if ins.kind in ("vmem", "dma", "store"): need = 5
                        elif ins.kind in VALUK: need = 2
                    if "readfirstlane" in t or "readlane" in t: need = max(need, 1)
                elif k == "salu" and r == ("m0", 0) and ins.kind == "dma": need = 1
                if d < need: errs.append(f"hazard RAW {r}: [{lastw[r][3]}] -> [{t}] dist {d} < {need}")
        for r in ins.wr:
            if r in lastw and lastw[r][1] == "mfma" and ins.kind != "mfma":
                if dist(r) < 8: errs.append(f"hazard WAW {r}: [{lastw[r][3]}] -> [{t}] dist {dist(r)}")
            if r in lastw and lastw[r][1] == "mfma" and ins.kind == "mfma" and r not in ins.srcc:
                if dist(r) < 8: errs.append(f"hazard WAW(mfma) {r}: [{lastw[r][3]}] -> [{t}] dist {dist(r)}")
            if r in lastc and ins.kind in VALUK and pos - lastc[r] - 1 < 3:
                errs.append(f"hazard WAR srcC {r} -> [{t}]")
            if r in laststore and pos - laststore[r] - 1 < 2:
                errs.append(f"hazard WAR store data {r} -> [{t}]")
        if ins.kind in ("vmem", "dma", "store"):
            q["vm"].append(ins)
            if len(q["vm"]) > 63: errs.append("vmcnt overflow")
        if ins.kind == "ds": q["lgkm"].append(ins)
        if ins.kind in ("vmem", "ds"):
            for r in ins.wr: pend[r] = ins; lastw.pop(r, None)
        else:
            for r in ins.wr: lastw[r] = (pos, ins.kind, tuple(ins.wr), t)
        if ins.kind == "mfma":
            for r in ins.srcc: lastc[r] = pos
        if ins.kind == "store":
            for r in ins.rd:
                if r[0] in "va": laststore[r] = pos
        m = re.match(r"s_nop (\d+)", t)
        pos += (int(m.group(1)) + 1) if m else 1
    return errs

def fix_hazards(lst, maxit=2000):
    import re as _re
    lst = list(lst)
    nfix = 0
    while True:
        errs = check_pos(lst)
        if not errs: break
        for idx, short in sorted(errs.items(), reverse=True):
            lst.insert(idx, Ins(f"s_nop {short-1}", "salu", cost=4 * short)); nfix += 1
        maxit -= 1
        assert maxit > 0
    return lst, nfix

def check_pos(lst):
    errs = {}
    lastw = {}; lastc = {}; laststore = {}
    pos = 0
    for idx, ins in enumerate(lst):
        if ins.kind in ("label", "comment"): continue
        t = ins.text; short = 0
        for r in ins.rd:
            if r in lastw:
                k = lastw[r][1]; d = pos - lastw[r][0] - 1; need = 0
                if k == "mfma":
                    if ins.kind == "mfma":
                        if r in ins.srcc: need = 0 if lastw[r][2] == tuple(ins.srcc) else 6
                        if r in ins.ab: need = 8
                    else: need = 8
                elif k in VALUK:
                    if ins.kind == "mfma": need = 2
                    elif ins.kind == "perm": need = 2
                    elif k == "trans" and ins.kind in ("valu", "perm", "store", "ds"): need = 1
                    if r[0] == "s" or r == ("vcc", 0):
                        if ins.kind in ("vmem", "dma", "store"): need = 5
                        elif ins.kind in VALUK: need = 2
                    if "readfirstlane" in t or "readlane" in t: need = max(need, 1)
                elif k == "salu" and r == ("m0", 0) and ins.kind == "dma": need = 1
                short = max(short, need - d)
        for r in ins.wr:
            if r in lastw and lastw[r][1] == "mfma" and not (ins.kind == "mfma" and r in ins.srcc):
                short = max(short, 8 - (pos - lastw[r][0] - 1))
            if r in lastc and ins.kind in VALUK: short = max(short, 3 - (pos - lastc[r] - 1))
            if r in laststore: short = max(short, 2 - (pos - laststore[r] - 1))
        if short > 0:
            errs[idx] = short; pos += short
        if ins.kind in ("vmem", "ds"):
            for r in ins.wr: lastw.pop(r, None)
        else:
            for r in ins.wr: lastw[r] = (pos, ins.kind, tuple(ins.wr), t)
        if ins.kind == "mfma":
            for r in ins.srcc: lastc[r] = pos
        if ins.kind == "store":
            for r in ins.rd:
                if r[0] in "va": laststore[r] = pos
        m = re.match(r"s_nop (\d+)", t)
        pos += (int(m.group(1)) + 1) if m else 1
    return errs
```

```python
import sys, math, struct
from asmlib import *

class Cfg:
    nt_q = False; nt_kv = False; nt_o = False
    thr_log2 = 32
    slow = True
cfg = Cfg()
for a in sys.argv[2:]:
    k, v = a.split("="); setattr(cfg, k, eval(v))

NAME = "standalone__mha_softmax__near_ridge_kernel"
def f32(x): return struct.unpack("<I", struct.pack("<f", x))[0]
CSCALE = f32(128 ** -0.5 * math.log2(math.e))

V_KA = 2
V_VA = 6
V_DMA = 14
V_QOFF = 18; V_OOFF = 19
V_NEGM = 20
V_RINV = 24
V_T = 28
V_ONES = 32
V_L = 64
V_S = 96
V_P = 112
V_O = 128
A_Q = 0; A_K = 128; A_V = 192
S_Q, S_X, S_O, S_K, S_V, S_W = 16, 20, 24, 28, 32, 36
S_C, S_NC, S_THR, S_WAVE, S_LDSB, S_DOFF, S_INEXT, S_XCD = 40, 41, 42, 43, 44, 45, 46, 47
S_QNEXT, S_KVNEXT, S_QCUR, S_KVCUR, S_QPREV, S_KVPREV = 48, 49, 50, 51, 52, 53
S_BAD = 54
S_LOOP, S_RET, S_WPART, S_T0, S_T1, S_TQ, S_TO = 62, 63, 64, 65, 66, 67, 68
OOB = 0x40000000

def salu(t, rd=(), wr=(), **k): return Ins(t, "salu", [("s", x) if isinstance(x, int) else x for x in rd], [("s", x) if isinstance(x, int) else x for x in wr], **k)
def valu(t, rd=(), wr=(), kind="valu", **k): return Ins(t, kind, rd, wr, **k)
def V(n, c=1): return R("v", n, c)
def A(n, c=1): return R("a", n, c)
def Sg(n, c=1): return R("s", n, c)

def mfma(d, a, b, c):
    ct = "0" if c is None else rs("v", c, 4)
    t = f"v_mfma_f32_16x16x32_bf16 {rs('v', d, 4)}, {rs(a[0], a[1], 4)}, {rs(b[0], b[1], 4)}, {ct}"
    ab = R(a[0], a[1], 4) + R(b[0], b[1], 4)
    cc = [] if c is None else V(c, 4)
    return Ins(t, "mfma", ab + cc, V(d, 4), srcc=cc, ab=ab)

def QK(qb, T, g):
    out = []
    for kk in range(4):
        for t in range(2):
            d = V_S + 8 * (g % 2) + 4 * t
            out.append(mfma(d, ("a", A_K + 32 * (T % 2) + 16 * t + 4 * kk), ("a", A_Q + 64 * qb + 16 * g + 4 * kk), None if kk == 0 else d))
    return out
def PV(T, g, first):
    out = []
    p = ("v", V_P + 4 * (g % 2))
    for dt in range(8):
        d = V_O + 32 * g + 4 * dt
        out.append(mfma(d, ("a", A_V + 32 * (T % 2) + 4 * dt), p, None if first else d))
    d = V_L + 4 * g
    out.append(mfma(d, ("v", V_ONES), p, None if first else d))
    return out

def SM(g, first, cvt_min):
    s = V_S + 8 * (g % 2); p = V_P + 4 * (g % 2); nm = V_NEGM + g
    o = []
    if first:
        t0, t1 = V_T + 2 * (g % 2), V_T + 2 * (g % 2) + 1
        o.append(valu(f"v_max3_f32 v{t0}, v{s}, v{s+1}, v{s+2}", V(s, 3), V(t0)))
        o.append(valu(f"v_max3_f32 v{t1}, v{s+3}, v{s+4}, v{s+5}", V(s + 3, 3), V(t1)))
        o.append(valu(f"v_max3_f32 v{t0}, v{s+6}, v{s+7}, v{t0}", V(s + 6, 2) + V(t0), V(t0)))
        o.append(valu(f"v_max_f32 v{t0}, v{t0}, v{t1}", V(t0) + V(t1), V(t0)))
        o.append(valu(f"v_mov_b32 v{t1}, v{t0}", V(t0), V(t1)))
        o.append(valu(f"s_nop 1\n  v_permlane32_swap_b32 v{t1}, v{t0}", (), V(t0) + V(t1), cost=12))
        o.append(valu(f"v_max_f32 v{t0}, v{t0}, v{t1}", V(t0) + V(t1), V(t0)))
        o.append(valu(f"v_mov_b32 v{t1}, v{t0}", V(t0), V(t1)))
        o.append(valu(f"s_nop 1\n  v_permlane16_swap_b32 v{t1}, v{t0}", (), V(t0) + V(t1), cost=12))
        o.append(valu(f"v_max_f32 v{t0}, v{t0}, v{t1}", V(t0) + V(t1), V(t0)))
        o.append(valu(f"v_mul_f32 v{nm}, s{S_NC}, v{t0}", V(t0) + Sg(S_NC), V(nm)))
    def fma(r): return valu(f"v_fma_f32 v{s+r}, v{s+r}, s{S_C}, v{nm}", V(s + r) + V(nm) + Sg(S_C), V(s + r))
    def ex(r): return valu(f"v_exp_f32 v{s+r}, v{s+r}", V(s + r), V(s + r), kind="trans")
    def cvt(h): return valu(f"v_cvt_pk_bf16_f32 v{p+h}, v{s+2*h}, v{s+2*h+1}", V(s + 2 * h, 2), V(p + h), minpos=cvt_min, nogap=True)
    o += [fma(0), fma(1), ex(0), ex(1), fma(2), fma(3), ex(2), ex(3), cvt(0), fma(4), ex(4), cvt(1), fma(5), ex(5),
          fma(6), fma(7), ex(6), ex(7), cvt(2), cvt(3)]
    o[-1].nogap = False
    return o

def KREADS(T, tagp):
    o = []
    for kk in range(4):
        for t in range(2):
            d = A_K + 32 * (T % 2) + 16 * t + 4 * kk
            o.append(Ins(f"ds_read_b128 {rs('a', d, 4)}, v{V_KA+kk} offset:{(T % 8) * 8192 + t * 4096}", "ds", V(V_KA + kk), A(d, 4), tag=f"K{tagp}"))
    return o
def VREADS(T, tagp):
    o = []
    for dt in range(8):
        for h in range(2):
            d = A_V + 32 * (T % 2) + 4 * dt + 2 * h
            o.append(Ins(f"ds_read_b64_tr_b16 {rs('a', d, 2)}, v{V_VA+dt} offset:{(T % 8) * 8192 + h * 4096}", "ds", V(V_VA + dt), A(d, 2), tag=f"V{tagp}"))
    return o
def DMA(TT, how, tagp):
    o = []
    if how == "inc": o.append(salu(f"s_add_u32 s{S_DOFF}, s{S_DOFF}, 8192", [S_DOFF], [S_DOFF]))
    else: o.append(salu(f"s_add_u32 s{S_DOFF}, s{S_KVNEXT}, s{S_WPART}", [S_KVNEXT, S_WPART], [S_DOFF]))
    o.append(salu(f"s_add_u32 m0, s{S_LDSB}, {(TT % 8) * 8192}", [S_LDSB], [("m0", 0)]))
    nt = " nt" if cfg.nt_kv else ""
    for p in range(4):
        o.append(Ins(f"buffer_load_dwordx4 v{V_DMA+p}, {rs('s', S_X, 4)}, s{S_DOFF} offen offset:{1024*p}{nt} lds", "dma",
                     V(V_DMA + p) + Sg(S_X, 4) + Sg(S_DOFF) + [("m0", 0)], [], tag=f"D{tagp}", nogap=(p == 0)))
    return o
def QLOAD(qb, g):
    o = [salu(f"s_add_u32 s{S_TQ}, s{S_QNEXT}, {4096*g}", [S_QNEXT], [S_TQ])]
    nt = " nt" if cfg.nt_q else ""
    for kk in range(4):
        d = A_Q + 64 * qb + 16 * g + 4 * kk
        o.append(Ins(f"buffer_load_dwordx4 {rs('a', d, 4)}, v{V_QOFF}, {rs('s', S_Q, 4)}, s{S_TQ} offen offset:{64*kk}{nt}", "vmem",
                     V(V_QOFF) + Sg(S_Q, 4) + Sg(S_TQ), A(d, 4), tag=f"Q{qb}{g}"))
    return o
def EPI(g, sq, site=None):
    l = V_L + 4 * g; r = V_RINV + g; to = S_TO + (g % 2)
    o = [valu(f"v_rcp_f32 v{r}, v{l}", V(l), V(r), kind="trans"),
         valu(f"v_cmp_ngt_f32 {rs('s', S_BAD+2*g, 2)}, s{S_THR}, v{l}", V(l) + Sg(S_THR), Sg(S_BAD + 2 * g, 2)),
         salu(f"s_add_u32 s{to}, s{sq}, {4096*g}", [sq], [to])]
    nt = " nt" if cfg.nt_o else ""
    def M(p): a = V_O + 32 * g + 8 * p; return [valu(f"v_mul_f32 v{a+e}, v{a+e}, v{r}", V(a + e) + V(r), V(a + e)) for e in range(8)]
    def C(p): a = V_O + 32 * g + 8 * p; return [valu(f"v_cvt_pk_bf16_f32 v{a+h}, v{a+2*h}, v{a+2*h+1}", V(a + 2 * h, 2), V(a + h)) for h in range(4)]
    def W(p):
        a = V_O + 32 * g + 8 * p
        return [valu(f"v_permlane16_swap_b32 v{a}, v{a+2}", V(a) + V(a + 2), V(a) + V(a + 2), kind="perm"),
                valu(f"v_permlane16_swap_b32 v{a+1}, v{a+3}", V(a + 1) + V(a + 3), V(a + 1) + V(a + 3), kind="perm")]
    def ST(p):
        a = V_O + 32 * g + 8 * p
        return [Ins(f"buffer_store_dwordx4 {rs('v', a, 4)}, v{V_OOFF}, {rs('s', S_O, 4)}, s{to} offen offset:{64*p}{nt}", "store",
                    V(a, 4) + V(V_OOFF) + Sg(S_O, 4) + Sg(to), [], tag="ST", nogap=True)]
    o += M(0) + C(0) + M(1) + W(0) + C(1) + ST(0) + M(2) + W(1) + C(2) + ST(1) + M(3) + W(2) + C(3) + ST(2)
    w3 = W(3); w3[0].nogap = True
    o += w3 + ST(3)
    if site is not None:
        b = S_BAD
        o.append(salu(f"s_or_b64 s[{b}:{b+1}], s[{b}:{b+1}], s[{b+2}:{b+3}]", Sg(b, 4), Sg(b, 2)))
        o.append(salu(f"s_or_b64 s[{b+4}:{b+5}], s[{b+4}:{b+5}], s[{b+6}:{b+7}]", Sg(b + 4, 4), Sg(b + 4, 2)))
        o.append(salu(f"s_or_b64 s[{b}:{b+1}], s[{b}:{b+1}], s[{b+4}:{b+5}]\n  s_cbranch_scc1 L_slow{site}\nL_ret{site}:", Sg(b, 2) + Sg(b + 4, 2), Sg(b, 2), cost=8))
    return o

def next_block_calc(pre_inc):
    o = []
    if pre_inc: o.append(salu(f"s_add_u32 s{S_INEXT}, s{S_INEXT}, 32", [S_INEXT], [S_INEXT]))
    o += [salu(f"s_mul_i32 s{S_T0}, s{S_INEXT}, 43691", [S_INEXT], [S_T0]),
          salu(f"s_lshr_b32 s{S_T0}, s{S_T0}, 17", [S_T0], [S_T0]),
          salu(f"s_lshl_b32 s{S_T1}, s{S_XCD}, 6", [S_XCD], [S_T1]),
          salu(f"s_add_u32 s{S_T0}, s{S_T0}, s{S_T1}", [S_T0, S_T1], [S_T0]),
          salu(f"s_lshl_b32 s{S_KVNEXT}, s{S_T0}, 17", [S_T0], [S_KVNEXT]),
          salu(f"s_mul_i32 s{S_T1}, s{S_XCD}, 192", [S_XCD], [S_T1]),
          salu(f"s_add_u32 s{S_T1}, s{S_T1}, s{S_INEXT}", [S_T1, S_INEXT], [S_T1]),
          salu(f"s_lshl_b32 s{S_QNEXT}, s{S_T1}, 16", [S_T1], [S_QNEXT]),
          salu(f"s_cmp_lt_u32 s{S_INEXT}, 192\n  s_cselect_b32 s{S_KVNEXT}, s{S_KVNEXT}, {OOB}\n  s_cselect_b32 s{S_QNEXT}, s{S_QNEXT}, {OOB}",
               [S_INEXT, S_KVNEXT, S_QNEXT], [S_KVNEXT, S_QNEXT], cost=12)]
    return o
def rotate():
    return [salu(f"s_mov_b32 s{S_QPREV}, s{S_QCUR}", [S_QCUR], [S_QPREV]), salu(f"s_mov_b32 s{S_KVPREV}, s{S_KVCUR}", [S_KVCUR], [S_KVPREV]),
            salu(f"s_mov_b32 s{S_QCUR}, s{S_QNEXT}", [S_QNEXT], [S_QCUR]), salu(f"s_mov_b32 s{S_KVCUR}, s{S_KVNEXT}", [S_KVNEXT], [S_KVCUR])]

def wait(*need): return Ins("s_waitcnt ?", "wait", need=list(need))
def barrier(): return Ins("s_barrier", "barrier", cost=4)

G = 17
def build_body():
    bb = []; pre = {}; st = []
    NG = 128
    for n in range(NG):
        T, g = divmod(n, 4)
        n1 = (n + 1) % NG; T1, g1 = divmod(n1, 4)
        n0 = (n - 1) % NG; T0, g0 = divmod(n0, 4)
        base = G * n
        p = pre.setdefault(base, [])
        if g == 0 and T % 16 == 0: p += rotate()
        if g == 0 and T % 2 == 0:
            p += [wait(("vm", [f"D{(T+1)%32}", f"D{(T+2)%32}"]), ("lgkm", "all")), barrier()]
        if g1 == 0: p.append(wait(("lgkm", [f"K{T1}"])))
        if T1 % 16 == 0: p.append(wait(("vm", [f"Q{T1//16}{g1}"])))
        bb += QK(T1 // 16, T1, g1)
        if g0 == 0: pre.setdefault(base + 8, []).append(wait(("lgkm", [f"V{T0}"])))
        bb += PV(T0, g0, T0 % 16 == 0)
        rel = max(0, base - G + 12)
        st.append(Stream(f"SM{n}", SM(g, T % 16 == 0, base - 1), rel, base + G - 1))
        if g == 0:
            Tn = (T + 1) % 32
            st.append(Stream(f"K{Tn}", KREADS(Tn, Tn), base, base + 2 * G + 8, prio=2))
            st.append(Stream(f"V{Tn}", VREADS(Tn, Tn), base + G - 1, base + 3 * G + 9, prio=2))
            TT = (T + 7) % 32
            d = DMA(TT, "next" if T % 16 == 9 else "inc", TT)
            st.append(Stream(f"D{TT}h", d[:3], base, base + G - 1))
            for pp in range(1, 4): st.append(Stream(f"D{TT}p{pp}", [d[2 + pp]], base + pp * G, base + pp * G + G - 1))
            if T % 16 == 0: st.append(Stream(f"NB{T}", next_block_calc(True), base, base + 3 * G))
            if 1 <= T % 16 <= 4: st.append(Stream(f"Q{T}", QLOAD(1 - T // 16, T % 16 - 1), base + 2, base + 4 * G - 1))
        if T % 16 == 15 and g in (1, 2):
            st.append(Stream(f"E{T}_{g-1}", EPI(g - 1, S_QCUR), base + G - 1 + 6, G * (4 * T + 4) - 1))
        if T % 16 == 0 and g == 0:
            st.append(Stream(f"E{T}_2", EPI(2, S_QPREV), base + 4, base + 3 * G + 5))
            st.append(Stream(f"E{T}_3", EPI(3, S_QPREV, site=T // 16), base + G - 1 + 6, base + 4 * G + 5))
    return schedule(bb, st, pre)

def build_drain():
    bb = PV(31, 3, False)
    pre = {0: rotate()}
    st = [Stream("E2", EPI(2, S_QPREV), 3, 8), Stream("E3", [Ins("s_nop 7", "salu")] + EPI(3, S_QPREV, site=2), 8, 8)]
    out, stats = schedule(bb, st, pre)
    return out

def build_init():
    o = []
    def s(t, rd=(), wr=()): o.append(salu(t, rd, wr))
    def v(t, rd=(), wr=()): o.append(valu(t, rd, wr))
    s("s_cmp_ge_u32 s2, 256\n  s_cbranch_scc1 L_end")
    s("s_load_dwordx8 s[4:11], s[0:1], 0", [], list(range(4, 12)))
    s("s_load_dwordx4 s[12:15], s[0:1], 32", [], list(range(12, 16)))
    v("v_lshrrev_b32 v1, 6, v0", V(0), V(1))
    v("v_and_b32 v0, 63, v0", V(0), V(0))
    v(f"v_readfirstlane_b32 s{S_WAVE}, v1", V(1), Sg(S_WAVE))
    v("v_and_b32 v36, 15, v0", V(0), V(36)); v("v_lshrrev_b32 v37, 4, v0", V(0), V(37)); v("v_lshrrev_b32 v38, 2, v0", V(0), V(38))
    for kk in range(4):
        v(f"v_or_b32 v39, {4*kk}, v37", V(37), V(39)); v("v_xor_b32 v39, v39, v36", V(39) + V(36), V(39))
        v("v_lshlrev_b32 v39, 4, v39", V(39), V(39)); v(f"v_lshl_add_u32 v{V_KA+kk}, v36, 8, v39", V(36) + V(39), V(V_KA + kk))
    v("v_and_b32 v40, 7, v38", V(38), V(40)); v("v_and_b32 v41, 3, v0", V(0), V(41)); v("v_lshlrev_b32 v41, 3, v41", V(41), V(41))
    v("v_lshl_add_u32 v41, v38, 8, v41", V(38) + V(41), V(41)); v("v_add_u32 v41, 0x10000, v41", V(41), V(41))
    for dt in range(8):
        v(f"v_xor_b32 v39, {dt}, v40", V(40), V(39)); v(f"v_lshl_add_u32 v{V_VA+dt}, v39, 5, v41", V(39) + V(41), V(V_VA + dt))
    s(f"s_lshr_b32 s{S_T0}, s{S_WAVE}, 1", [S_WAVE], [S_T0])
    s(f"s_and_b32 s{S_T1}, s{S_WAVE}, 1", [S_WAVE], [S_T1])
    s(f"s_lshl_b32 s{S_WPART}, s{S_T1}, 12", [S_T1], [S_WPART])
    s(f"s_lshl_b32 s{S_LDSB}, s{S_T0}, 16", [S_T0], [S_LDSB])
    s(f"s_add_u32 s{S_LDSB}, s{S_LDSB}, s{S_WPART}", [S_LDSB, S_WPART], [S_LDSB])
    s(f"s_lshr_b32 s{S_TQ}, 15, s{S_T0}", [S_T0], [S_TQ])
    for p in range(4):
        v(f"v_add_u32 v39, {4*p}, v37", V(37), V(39)); v(f"v_and_b32 v39, s{S_TQ}, v39", V(39) + Sg(S_TQ), V(39))
        v(f"v_lshlrev_b32 v39, s{S_T0}, v39", V(39) + Sg(S_T0), V(39)); v("v_xor_b32 v39, v39, v36", V(39) + V(36), V(39))
        v("v_lshlrev_b32 v39, 4, v39", V(39), V(39)); v(f"v_lshl_add_u32 v{V_DMA+p}, v37, 8, v39", V(37) + V(39), V(V_DMA + p))
    s(f"s_lshl_b32 s{S_T1}, s{S_WAVE}, 14", [S_WAVE], [S_T1])
    v("v_lshlrev_b32 v39, 4, v37", V(37), V(39)); v("v_lshl_add_u32 v39, v36, 8, v39", V(36) + V(39), V(39))
    v(f"v_add_u32 v{V_QOFF}, s{S_T1}, v39", V(39) + Sg(S_T1), V(V_QOFF))
    v("v_and_b32 v39, 1, v37", V(37), V(39)); v("v_lshlrev_b32 v39, 5, v39", V(39), V(39)); v("v_lshrrev_b32 v40, 1, v37", V(37), V(40))
    v("v_lshl_add_u32 v39, v40, 4, v39", V(40) + V(39), V(39)); v("v_lshl_add_u32 v39, v36, 8, v39", V(36) + V(39), V(39))
    v(f"v_add_u32 v{V_OOFF}, s{S_T1}, v39", V(39) + Sg(S_T1), V(V_OOFF))
    v("v_and_b32 v39, 3, v0", V(0), V(39)); v("v_cmp_eq_u32 vcc, 0, v39", V(39), [("vcc", 0)]); v("v_mov_b32 v40, 0x3f803f80", [], V(40))
    v("v_mov_b32 v39, 0", [], V(39))
    for e in range(4): v(f"v_cndmask_b32 v{V_ONES+e}, v39, v40, vcc", V(39) + V(40) + [("vcc", 0)], V(V_ONES + e))
    for r in list(range(V_L, V_L + 16)) + list(range(V_P, V_P + 8)): v(f"v_mov_b32 v{r}, 0", [], V(r))
    s(f"s_mov_b32 s{S_C}, 0x{CSCALE:08x}", [], [S_C]); s(f"s_mov_b32 s{S_NC}, 0x{CSCALE | 0x80000000:08x}", [], [S_NC])
    s(f"s_mov_b32 s{S_THR}, 0x{f32(2.0 ** cfg.thr_log2):08x}", [], [S_THR])
    for r in range(S_BAD, S_BAD + 8): s(f"s_mov_b32 s{r}, 0", [], [r])
    s(f"s_and_b32 s{S_XCD}, s2, 7", [], [S_XCD]); s(f"s_lshr_b32 s{S_INEXT}, s2, 3", [], [S_INEXT])
    s(f"s_mov_b32 s{S_QCUR}, {OOB}", [], [S_QCUR]); s(f"s_mov_b32 s{S_KVCUR}, {OOB}", [], [S_KVCUR])
    s(f"s_mov_b32 s{S_LOOP}, 2", [], [S_LOOP])
    o += next_block_calc(False)
    s("s_waitcnt lgkmcnt(0)")
    for srd, ptr, size in ((S_Q, 4, 0x6000000), (S_O, 10, 0x6000000), (S_K, 6, 0x4000000), (S_V, 8, 0x4000000), (S_W, 14, 402653184)):
        s(f"s_mov_b32 s{srd}, s{ptr}", [ptr], [srd]); s(f"s_mov_b32 s{srd+1}, s{ptr+1}", [ptr + 1], [srd + 1])
        s(f"s_mov_b32 s{srd+2}, {size}", [], [srd + 2]); s(f"s_mov_b32 s{srd+3}, 0x00020000", [], [srd + 3])
    s(f"s_cmp_ge_u32 s{S_WAVE}, 2\n  s_cselect_b32 s{S_X}, s8, s6\n  s_cselect_b32 s{S_X+1}, s9, s7", [S_WAVE, 6, 7, 8, 9], [S_X, S_X + 1])
    s(f"s_mov_b32 s{S_X+2}, 0x4000000", [], [S_X + 2]); s(f"s_mov_b32 s{S_X+3}, 0x00020000", [], [S_X + 3])
    def dma(TT, how):
        d = DMA(TT, how, TT); return d[:2] + [salu("s_nop 0")] + d[2:]
    o += dma(0, "first")
    for g in range(4): o += QLOAD(0, g)
    for TT in range(1, 7): o += dma(TT, "inc")
    o += [wait(("vm", ["D0"])), barrier()]
    o += KREADS(0, 0) + VREADS(0, 0)
    o += [wait(("vm", ["Q00"]), ("lgkm", ["K0"]))]
    o += QK(0, 0, 0)
    return o

def slow_stub():
    t = []
    for site in range(3):
        t.append(f"L_slow{site}:\n  s_branch L_ret{site}")
    return "\n".join(t)

def main():
    init = build_init()
    body, stats = build_body()
    tail = [salu(f"s_sub_u32 s{S_LOOP}, s{S_LOOP}, 1\n  s_cbranch_scc0 L_loop", [S_LOOP], [S_LOOP], cost=8)]
    drain = build_drain()
    trace = init + (body + tail) * 3 + drain
    best = resolve_waits(trace)
    for l in (init, body, drain): apply_waits(l, best)
    dead = lambda x: x.kind == "wait" and x.need is not None and x.text == "s_nop 0"
    init = [x for x in init if not dead(x)]; body = [x for x in body if not dead(x)]; drain = [x for x in drain if not dead(x)]
    init, n1 = fix_hazards(init); body, n2 = fix_hazards(body); drain, n3 = fix_hazards(drain)
    print("nops inserted", n1, n2, n3, file=sys.stderr)
    trace = init + (body + tail) * 3 + drain
    errs = check(trace)
    seen = set()
    for e in errs:
        if e not in seen: print("ERR", e, file=sys.stderr); seen.add(e)
    tot = sum(x.cost for x in body)
    under = sum(1 for f in stats[1:] if f < 8)
    est = sum(8 + max(8, f) for f in stats[1:])
    print(f"body instrs {len(body)} issue-cycles {tot} est cycles {est} underfilled gaps {under}", file=sys.stderr)
    hdr = open("header.txt").read()
    lines = [hdr, '.amdgcn_target "amdgcn-amd-amdhsa--gfx950"', ".text", f".globl {NAME}", ".p2align 8", f".type {NAME},@function", f"{NAME}:"]
    lines += ["  " + x.text for x in init]
    lines += [".p2align 3", "L_loop:"] + ["  " + x.text for x in body + tail]
    lines += ["  " + x.text for x in drain]
    lines += ["L_end:", "  s_endpgm"]
    if cfg.slow:
        import slow
        lines.append(slow.emit(globals()))
    else: lines.append(slow_stub())
    lines += ['.section .rodata,"a"', ".p2align 6", f".amdhsa_kernel {NAME}", "  .amdhsa_next_free_vgpr 512", "  .amdhsa_next_free_sgpr 102",
              "  .amdhsa_accum_offset 256", "  .amdhsa_group_segment_fixed_size 0", "  .amdhsa_kernarg_size 48", "  .amdhsa_user_sgpr_count 2",
              "  .amdhsa_user_sgpr_kernarg_segment_ptr 1", "  .amdhsa_system_sgpr_workgroup_id_x 1", ".end_amdhsa_kernel"]
    open(sys.argv[1], "w").write("\n".join(lines) + "\n")
    if errs: sys.exit(1)
main()
```

```python
import re

def R(kind, lo, n=1):
    return [(kind, lo + i) for i in range(n)]
def rs(kind, lo, n=1):
    return f"{kind}{lo}" if n == 1 else f"{kind}[{lo}:{lo+n-1}]"

class Ins:
    __slots__ = ("text", "kind", "rd", "wr", "cost", "tag", "need", "srcc", "nogap", "id", "ab", "minpos", "delay", "maxpos")
    _n = 0
    def __init__(self, text, kind, rd=(), wr=(), cost=None, tag=None, need=None, srcc=(), nogap=False, ab=(), minpos=-99):
        self.text = text; self.kind = kind; self.rd = list(rd); self.wr = list(wr)
        self.cost = cost if cost is not None else {"mfma": 8, "trans": 8}.get(kind, 4)
        self.tag = tag
        self.need = need
        self.srcc = list(srcc)
        self.ab = list(ab)
        self.nogap = nogap
        self.minpos = minpos; self.delay = 0; self.maxpos = 10**9
        Ins._n += 1; self.id = Ins._n
    def __repr__(self): return self.text

class Stream:
    def __init__(self, name, ops, release, deadline, prio=0):
        self.name = name; self.ops = list(ops); self.release = release; self.deadline = deadline
        self.pos = 0; self.lastgap = -10; self.prio = prio
    def head(self): return self.ops[self.pos] if self.pos < len(self.ops) else None

VALUK = ("valu", "trans", "perm")

def schedule(backbone, streams, pre=None, tfn=None):
    pre = pre or {}
    out = []
    n = len(backbone)
    stats = []
    streams = sorted(streams, key=lambda s: s.release)
    active = []; nxt = 0
    for i in range(-1, n):
        gap = []
        if i >= 0: out.append(backbone[i])
        while nxt < len(streams) and streams[nxt].release <= i:
            active.append(streams[nxt]); nxt += 1
        fixed = pre.get(i + 1, [])
        fill = sum(x.cost for x in fixed)
        def take(s):
            nonlocal fill
            op = s.head(); s.pos += 1; s.lastgap = i; gap.append(op); fill += op.cost
        for s in active:
            if s.deadline <= i:
                while s.head() is not None: take(s)
            else:
                while any(o.maxpos <= i for o in s.ops[s.pos:]): take(s)
                rem = sum(1 for o in s.ops[s.pos + 1:] if o.nogap)
                if s.head() is not None and s.deadline - i <= rem and not (s.head().nogap and s.lastgap == i) and s.head().minpos <= i:
                    take(s)
                    while s.head() is not None and not s.head().nogap and s.head().minpos <= i: take(s)
        if i >= 0:
            target = tfn(i) if tfn else 8
            while fill < target:
                cands = [s for s in active if s.head() is not None and not (s.head().nogap and s.lastgap == i) and s.head().minpos <= i and i - s.lastgap >= s.head().delay]
                if not cands: break
                room = target - fill
                fit = [s for s in cands if s.head().cost <= room]
                pool = fit if fit else cands
                def urg(s):
                    left = 0.0; u = 1e9
                    for o in s.ops[s.pos:]:
                        left += o.cost / float(target) + o.delay
                        if o.maxpos < 10**9: u = min(u, o.maxpos - i - left)
                    return min(u, (s.deadline - i) - left) - s.prio
                s = min(pool, key=urg)
                take(s)
        active = [s for s in active if s.head() is not None]
        nv = [x for x in gap if x.kind not in VALUK]; vv = [x for x in gap if x.kind in VALUK]
        ordered = []
        pend = []
        for x in gap:
            if x.kind in VALUK: continue
            dep = False
            for y in gap:
                if y is x: break
                if y.kind in VALUK and (set(y.wr) & set(x.rd) or set(y.rd) & set(x.wr) or set(y.wr) & set(x.wr)): dep = True
            if pend: dep = True
            if dep: pend.append(x)
            else: ordered.append(x)
        for x in gap:
            if x.kind in VALUK or x in pend: ordered.append(x)
        out += ordered
        out += fixed
        stats.append(fill)
    left = [s.name for s in active if s.head() is not None] + [s.name for s in streams[nxt:]]
    assert not left, f"unscheduled streams {left}"
    return out, stats

def resolve_waits(trace):
    best = {}
    q = {"vm": [], "lgkm": []}
    for ins in trace:
        if ins.kind in ("vmem", "dma", "store"): q["vm"].append(ins)
        elif ins.kind == "ds": q["lgkm"].append(ins)
        elif ins.kind == "wait" and ins.need is not None:
            for ctr, tags in ins.need:
                lst = q[ctr]
                if tags == "all": N = 0
                else:
                    idx = [k for k, o in enumerate(lst) if o.tag in tags]
                    N = len(lst) - 1 - max(idx) if idx else None
                if N is not None:
                    best[(ins.id, ctr)] = min(best.get((ins.id, ctr), 99), N)
                    q[ctr] = lst[len(lst) - N:] if N > 0 else []
    return best

def apply_waits(static_list, best):
    for ins in static_list:
        if ins.kind == "wait" and ins.need is not None:
            parts = []
            for ctr, tags in ins.need:
                N = best.get((ins.id, ctr))
                if N is None: continue
                mx = 63 if ctr == "vm" else 15
                parts.append(f"{'vmcnt' if ctr=='vm' else 'lgkmcnt'}({min(N,mx)})")
            ins.text = "s_waitcnt " + " ".join(parts) if parts else "s_nop 0"

def check(trace):
    errs = []
    q = {"vm": [], "lgkm": []}
    pend = {}
    lastw = {}
    lastc = {}
    laststore = {}
    pos = 0
    for ins in trace:
        if ins.kind in ("label", "comment"): continue
        t = ins.text
        if ins.kind == "wait" and t.startswith("s_waitcnt"):
            for ctr, nm in (("vm", "vmcnt"), ("lgkm", "lgkmcnt")):
                m = re.search(nm + r"\((\d+)\)", t)
                if m:
                    N = int(m.group(1)); lst = q[ctr]
                    done = lst[:len(lst) - N] if N < len(lst) else []
                    q[ctr] = lst[len(done):]
                    for o in done:
                        for r in o.wr:
                            if pend.get(r) is o: del pend[r]
        for r in list(ins.rd) + list(ins.wr):
            if r in pend: errs.append(f"uncovered load result {r} from [{pend[r].text}] used by [{t}]")
        def dist(r): return pos - lastw[r][0] - 1
        for r in ins.rd:
            if r in lastw:
                k = lastw[r][1]; d = dist(r); need = 0
                if k == "mfma":
                    if ins.kind == "mfma":
                        if r in ins.srcc:
                            need = 0 if lastw[r][2] == tuple(ins.srcc) else 6
                        if r in ins.ab: need = 8
                    else: need = 8
                elif k in VALUK:
                    if ins.kind == "mfma": need = 2
                    elif ins.kind == "perm": need = 2
                    elif k == "trans" and ins.kind in ("valu", "perm", "store", "ds"): need = max(need, 1)
                    if r[0] == "s" or r == ("vcc", 0):
                        if ins.kind in ("vmem", "dma", "store"): need = 5
                        elif ins.kind in VALUK: need = 2
                    if "readfirstlane" in t or "readlane" in t: need = max(need, 1)
                elif k == "salu" and r == ("m0", 0) and ins.kind == "dma": need = 1
                if d < need: errs.append(f"hazard RAW {r}: [{lastw[r][3]}] -> [{t}] dist {d} < {need}")
        for r in ins.wr:
            if r in lastw and lastw[r][1] == "mfma" and ins.kind != "mfma":
                if dist(r) < 8: errs.append(f"hazard WAW {r}: [{lastw[r][3]}] -> [{t}] dist {dist(r)}")
            if r in lastw and lastw[r][1] == "mfma" and ins.kind == "mfma" and r not in ins.srcc:
                if dist(r) < 8: errs.append(f"hazard WAW(mfma) {r}: [{lastw[r][3]}] -> [{t}] dist {dist(r)}")
            if r in lastc and ins.kind in VALUK and pos - lastc[r] - 1 < 3:
                errs.append(f"hazard WAR srcC {r} -> [{t}]")
            if r in laststore and pos - laststore[r] - 1 < 2:
                errs.append(f"hazard WAR store data {r} -> [{t}]")
        if ins.kind in ("vmem", "dma", "store"):
            q["vm"].append(ins)
            if len(q["vm"]) > 63: errs.append("vmcnt overflow")
        if ins.kind == "ds": q["lgkm"].append(ins)
        if ins.kind in ("vmem", "ds"):
            for r in ins.wr: pend[r] = ins; lastw.pop(r, None)
        else:
            for r in ins.wr: lastw[r] = (pos, ins.kind, tuple(ins.wr), t)
        if ins.kind == "mfma":
            for r in ins.srcc: lastc[r] = pos
        if ins.kind == "store":
            for r in ins.rd:
                if r[0] in "va": laststore[r] = pos
        m = re.match(r"s_nop (\d+)", t)
        pos += (int(m.group(1)) + 1) if m else 1
    return errs

def fix_hazards(lst, maxit=2000):
    import re as _re
    lst = list(lst)
    nfix = 0
    while True:
        errs = check_pos(lst)
        if not errs: break
        for idx, short in sorted(errs.items(), reverse=True):
            lst.insert(idx, Ins(f"s_nop {short-1}", "salu", cost=4 * short)); nfix += 1
        maxit -= 1
        assert maxit > 0
    return lst, nfix

def check_pos(lst):
    errs = {}
    lastw = {}; lastc = {}; laststore = {}
    pos = 0
    for idx, ins in enumerate(lst):
        if ins.kind in ("label", "comment"): continue
        t = ins.text; short = 0
        for r in ins.rd:
            if r in lastw:
                k = lastw[r][1]; d = pos - lastw[r][0] - 1; need = 0
                if k == "mfma":
                    if ins.kind == "mfma":
                        if r in ins.srcc: need = 0 if lastw[r][2] == tuple(ins.srcc) else 6
                        if r in ins.ab: need = 8
                    else: need = 8
                elif k in VALUK:
                    if ins.kind == "mfma": need = 2
                    elif ins.kind == "perm": need = 2
                    elif k == "trans" and ins.kind in ("valu", "perm", "store", "ds"): need = 1
                    if r[0] == "s" or r == ("vcc", 0):
                        if ins.kind in ("vmem", "dma", "store"): need = 5
                        elif ins.kind in VALUK: need = 2
                    if "readfirstlane" in t or "readlane" in t: need = max(need, 1)
                elif k == "salu" and r == ("m0", 0) and ins.kind == "dma": need = 1
                short = max(short, need - d)
        for r in ins.wr:
            if r in lastw and lastw[r][1] == "mfma" and not (ins.kind == "mfma" and r in ins.srcc):
                short = max(short, 8 - (pos - lastw[r][0] - 1))
            if r in lastc and ins.kind in VALUK: short = max(short, 3 - (pos - lastc[r] - 1))
            if r in laststore: short = max(short, 2 - (pos - laststore[r] - 1))
        if short > 0:
            errs[idx] = short; pos += short
        if ins.kind in ("vmem", "ds"):
            for r in ins.wr: lastw.pop(r, None)
        else:
            for r in ins.wr: lastw[r] = (pos, ins.kind, tuple(ins.wr), t)
        if ins.kind == "mfma":
            for r in ins.srcc: lastc[r] = pos
        if ins.kind == "store":
            for r in ins.rd:
                if r[0] in "va": laststore[r] = pos
        m = re.match(r"s_nop (\d+)", t)
        pos += (int(m.group(1)) + 1) if m else 1
    return errs
```

```python
import sys, math, struct
from asmlib import *

class Cfg:
    nt_q = False; nt_kv = False; nt_o = False
    thr_log2 = 32
    slow = True
    stamps = False
    seam_t = 20
cfg = Cfg()
for a in sys.argv[2:]:
    k, v = a.split("="); setattr(cfg, k, eval(v))

NAME = "standalone__mha_softmax__near_ridge_kernel"
def f32(x): return struct.unpack("<I", struct.pack("<f", x))[0]
CSCALE = f32(128 ** -0.5 * math.log2(math.e))

V_KA = 2
V_VA = 6
V_DMA = 14
V_QOFF = 18; V_OOFF = 19
V_NEGM = 20
V_RINV = 24
V_T = 28
V_ONES = 32
V_QDMA = 48
V_QA = 52
V_OW = 56; V_OR = 57
V_QA2 = 58
V_L = 64
V_S = 96
V_P = 112
V_O = 128
A_Q = 0; A_K = 128; A_V = 192
S_Q, S_X, S_O, S_K, S_V, S_W = 16, 20, 24, 28, 32, 36
S_C, S_NC, S_THR, S_WAVE, S_LDSB, S_DOFF, S_INEXT, S_XCD = 40, 41, 42, 43, 44, 45, 46, 47
S_QNEXT, S_KVNEXT, S_QCUR, S_KVCUR, S_QPREV, S_KVPREV = 48, 49, 50, 51, 52, 53
S_BAD = 54
S_LOOP, S_RET, S_WPART, S_T0, S_T1, S_TQ, S_TO = 62, 63, 64, 65, 66, 67, 68
S_STG, S_WQ, S_STG2 = 80, 81, 82
STG = 131072
OOB = 0x40000000

def salu(t, rd=(), wr=(), **k): return Ins(t, "salu", [("s", x) if isinstance(x, int) else x for x in rd], [("s", x) if isinstance(x, int) else x for x in wr], **k)
def valu(t, rd=(), wr=(), kind="valu", **k): return Ins(t, kind, rd, wr, **k)
def V(n, c=1): return R("v", n, c)
def A(n, c=1): return R("a", n, c)
def Sg(n, c=1): return R("s", n, c)

def mfma(d, a, b, c):
    ct = "0" if c is None else rs("v", c, 4)
    t = f"v_mfma_f32_16x16x32_bf16 {rs('v', d, 4)}, {rs(a[0], a[1], 4)}, {rs(b[0], b[1], 4)}, {ct}"
    ab = R(a[0], a[1], 4) + R(b[0], b[1], 4)
    cc = [] if c is None else V(c, 4)
    return Ins(t, "mfma", ab + cc, V(d, 4), srcc=cc, ab=ab)

def QK(qb, T, g):
    out = []
    for kk in range(4):
        for t in range(2):
            d = V_S + 8 * (g % 2) + 4 * t
            out.append(mfma(d, ("a", A_K + 32 * (T % 2) + 16 * t + 4 * kk), ("a", A_Q + 64 * qb + 16 * g + 4 * kk), None if kk == 0 else d))
    return out
def PV(T, g, first):
    out = []
    p = ("v", V_P + 4 * (g % 2))
    for dt in range(8):
        d = V_O + 32 * g + 4 * dt
        out.append(mfma(d, ("a", A_V + 32 * (T % 2) + 4 * dt), p, None if first else d))
    d = V_L + 4 * g
    out.append(mfma(d, ("v", V_ONES), p, None if first else d))
    return out

def SM(g, first, cvt_min):
    s = V_S + 8 * (g % 2); p = V_P + 4 * (g % 2); nm = V_NEGM + g
    o = []
    if first:
        t0, t1 = V_T + 2 * (g % 2), V_T + 2 * (g % 2) + 1
        o.append(valu(f"v_max3_f32 v{t0}, v{s}, v{s+1}, v{s+2}", V(s, 3), V(t0)))
        o.append(valu(f"v_max3_f32 v{t1}, v{s+3}, v{s+4}, v{s+5}", V(s + 3, 3), V(t1)))
        o.append(valu(f"v_max3_f32 v{t0}, v{s+6}, v{s+7}, v{t0}", V(s + 6, 2) + V(t0), V(t0)))
        o.append(valu(f"v_max_f32 v{t0}, v{t0}, v{t1}", V(t0) + V(t1), V(t0)))
        o.append(valu(f"v_mov_b32 v{t1}, v{t0}", V(t0), V(t1)))
        o.append(valu(f"s_nop 1\n  v_permlane32_swap_b32 v{t1}, v{t0}", (), V(t0) + V(t1), cost=12))
        o.append(valu(f"v_max_f32 v{t0}, v{t0}, v{t1}", V(t0) + V(t1), V(t0)))
        o.append(valu(f"v_mov_b32 v{t1}, v{t0}", V(t0), V(t1)))
        o.append(valu(f"s_nop 1\n  v_permlane16_swap_b32 v{t1}, v{t0}", (), V(t0) + V(t1), cost=12))
        o.append(valu(f"v_max_f32 v{t0}, v{t0}, v{t1}", V(t0) + V(t1), V(t0)))
        o.append(valu(f"v_mul_f32 v{nm}, s{S_NC}, v{t0}", V(t0) + Sg(S_NC), V(nm)))
    def fma(r): return valu(f"v_fma_f32 v{s+r}, v{s+r}, s{S_C}, v{nm}", V(s + r) + V(nm) + Sg(S_C), V(s + r))
    def ex(r): return valu(f"v_exp_f32 v{s+r}, v{s+r}", V(s + r), V(s + r), kind="trans")
    def cvt(h): return valu(f"v_cvt_pk_bf16_f32 v{p+h}, v{s+2*h}, v{s+2*h+1}", V(s + 2 * h, 2), V(p + h), minpos=cvt_min, nogap=True)
    o += [fma(0), fma(1), ex(0), ex(1), fma(2), fma(3), ex(2), ex(3), cvt(0), fma(4), ex(4), cvt(1), fma(5), ex(5),
          fma(6), fma(7), ex(6), ex(7), cvt(2), cvt(3)]
    o[-1].nogap = False
    return o

def KREADS(T, tagp):
    o = []
    for kk in range(4):
        for t in range(2):
            d = A_K + 32 * (T % 2) + 16 * t + 4 * kk
            o.append(Ins(f"ds_read_b128 {rs('a', d, 4)}, v{V_KA+kk} offset:{(T % 8) * 8192 + t * 4096}", "ds", V(V_KA + kk), A(d, 4), tag=f"K{tagp}"))
    return o
def VREADS(T, tagp):
    o = []
    for dt in range(8):
        for h in range(2):
            d = A_V + 32 * (T % 2) + 4 * dt + 2 * h
            o.append(Ins(f"ds_read_b64_tr_b16 {rs('a', d, 2)}, v{V_VA+dt} offset:{(T % 8) * 8192 + h * 4096}", "ds", V(V_VA + dt), A(d, 2), tag=f"V{tagp}"))
    return o
def DMA(TT, how, tagp):
    o = []
    if how == "inc": o.append(salu(f"s_add_u32 s{S_DOFF}, s{S_DOFF}, 8192", [S_DOFF], [S_DOFF]))
    else: o.append(salu(f"s_add_u32 s{S_DOFF}, s{S_KVNEXT}, s{S_WPART}", [S_KVNEXT, S_WPART], [S_DOFF]))
    o.append(salu(f"s_add_u32 m0, s{S_LDSB}, {(TT % 8) * 8192}", [S_LDSB], [("m0", 0)]))
    nt = " nt" if cfg.nt_kv else ""
    for p in range(4):
        o.append(Ins(f"buffer_load_dwordx4 v{V_DMA+p}, {rs('s', S_X, 4)}, s{S_DOFF} offen offset:{1024*p}{nt} lds", "dma",
                     V(V_DMA + p) + Sg(S_X, 4) + Sg(S_DOFF) + [("m0", 0)], [], tag=f"D{tagp}", nogap=(p == 0)))
    return o
def QDMA(g, stg=S_STG, slot=None):
    slot = g % 2 if slot is None else slot
    o = [salu(f"s_add_u32 s{S_TQ}, s{S_QNEXT}, s{S_WQ}", [S_QNEXT, S_WQ], [S_TQ])] if g == 0 else [salu(f"s_add_u32 s{S_TQ}, s{S_TQ}, 4096", [S_TQ], [S_TQ])]
    o.append(salu(f"s_add_u32 m0, s{stg}, {4096*slot}", [stg], [("m0", 0)]))
    nt = " nt" if cfg.nt_q else ""
    for p in range(4):
        o.append(Ins(f"buffer_load_dwordx4 v{V_QDMA+p}, {rs('s', S_Q, 4)}, s{S_TQ} offen offset:{1024*p}{nt} lds", "dma",
                     V(V_QDMA + p) + Sg(S_Q, 4) + Sg(S_TQ) + [("m0", 0)], [], tag=f"QD{g}", nogap=(p == 0)))
    return o
def QREAD(qb, g, va=V_QA):
    o = [wait(("vm", [f"QD{g}"]))]
    for kk in range(4):
        d = A_Q + 64 * qb + 16 * g + 4 * kk
        o.append(Ins(f"ds_read_b128 {rs('a', d, 4)}, v{va+kk} offset:{4096*(g%2)}", "ds", V(va + kk), A(d, 4), tag=f"Q{qb}{g}"))
    return o
def EPI(g, sq, site=None):
    l = V_L + 4 * g; r = V_RINV + g; to = S_TO + (g % 2)
    o = [valu(f"v_rcp_f32 v{r}, v{l}", V(l), V(r), kind="trans"),
         valu(f"v_cmp_ngt_f32 {rs('s', S_BAD+2*g, 2)}, s{S_THR}, v{l}", V(l) + Sg(S_THR), Sg(S_BAD + 2 * g, 2)),
         salu(f"s_add_u32 s{to}, s{sq}, {4096*g}", [sq], [to])]
    nt = " nt" if cfg.nt_o else ""
    def M(p): a = V_O + 32 * g + 8 * p; return [valu(f"v_mul_f32 v{a+e}, v{a+e}, v{r}", V(a + e) + V(r), V(a + e)) for e in range(8)]
    def C(p): a = V_O + 32 * g + 8 * p; return [valu(f"v_cvt_pk_bf16_f32 v{a+h}, v{a+2*h}, v{a+2*h+1}", V(a + 2 * h, 2), V(a + h)) for h in range(4)]
    def W(p):
        a = V_O + 32 * g + 8 * p
        return [Ins(f"ds_write_b64 v{V_OW}, {rs('v', a + 2 * h, 2)} offset:{64*p+32*h}", "ds", V(V_OW) + V(a + 2 * h, 2), [], tag="OW", cost=6) for h in range(2)]
    def RD(p):
        a = V_O + 32 * g + 4 * p
        return [Ins(f"ds_read_b128 {rs('v', a, 4)}, v{V_OR} offset:{1088*p}", "ds", V(V_OR), V(a, 4), tag=f"OR{g}")]
    def ST(p):
        a = V_O + 32 * g + 4 * p
        return [Ins(f"buffer_store_dwordx4 {rs('v', a, 4)}, v{V_OOFF}, {rs('s', S_O, 4)}, s{to} offen offset:{1024*p}{nt}", "store",
                    V(a, 4) + V(V_OOFF) + Sg(S_O, 4) + Sg(to), [], tag="ST")]
    o += M(0) + C(0) + M(1) + C(1) + M(2) + C(2) + M(3) + C(3)
    w0 = W(0); w0[0].nogap = True
    o += w0 + W(1) + W(2) + W(3) + RD(0) + RD(1) + RD(2) + RD(3)
    wt = wait(("lgkm", [f"OR{g}"])); wt.delay = 6
    o += [wt] + ST(0) + ST(1) + ST(2) + ST(3)
    if site is not None:
        b = S_BAD
        o.append(salu(f"s_or_b64 s[{b}:{b+1}], s[{b}:{b+1}], s[{b+2}:{b+3}]", Sg(b, 4), Sg(b, 2)))
        o.append(salu(f"s_or_b64 s[{b+4}:{b+5}], s[{b+4}:{b+5}], s[{b+6}:{b+7}]", Sg(b + 4, 4), Sg(b + 4, 2)))
        o.append(salu(f"s_or_b64 s[{b}:{b+1}], s[{b}:{b+1}], s[{b+4}:{b+5}]\n  s_cbranch_scc1 L_slow{site}\nL_ret{site}:", Sg(b, 2) + Sg(b + 4, 2), Sg(b, 2), cost=8))
    return o

def next_block_calc(pre_inc):
    o = []
    if pre_inc: o.append(salu(f"s_add_u32 s{S_INEXT}, s{S_INEXT}, 32", [S_INEXT], [S_INEXT]))
    o += [salu(f"s_mul_i32 s{S_T0}, s{S_INEXT}, 43691", [S_INEXT], [S_T0]),
          salu(f"s_lshr_b32 s{S_T0}, s{S_T0}, 17", [S_T0], [S_T0]),
          salu(f"s_lshl_b32 s{S_T1}, s{S_XCD}, 6", [S_XCD], [S_T1]),
          salu(f"s_add_u32 s{S_T0}, s{S_T0}, s{S_T1}", [S_T0, S_T1], [S_T0]),
          salu(f"s_lshl_b32 s{S_KVNEXT}, s{S_T0}, 17", [S_T0], [S_KVNEXT]),
          salu(f"s_mul_i32 s{S_T1}, s{S_XCD}, 192", [S_XCD], [S_T1]),
          salu(f"s_add_u32 s{S_T1}, s{S_T1}, s{S_INEXT}", [S_T1, S_INEXT], [S_T1]),
          salu(f"s_lshl_b32 s{S_QNEXT}, s{S_T1}, 16", [S_T1], [S_QNEXT]),
          salu(f"s_cmp_lt_u32 s{S_INEXT}, 192\n  s_cselect_b32 s{S_KVNEXT}, s{S_KVNEXT}, {OOB}\n  s_cselect_b32 s{S_QNEXT}, s{S_QNEXT}, {OOB}",
               [S_INEXT, S_KVNEXT, S_QNEXT], [S_KVNEXT, S_QNEXT], cost=12)]
    return o
def rotate():
    return [salu(f"s_mov_b32 s{S_QPREV}, s{S_QCUR}", [S_QCUR], [S_QPREV]), salu(f"s_mov_b32 s{S_KVPREV}, s{S_KVCUR}", [S_KVCUR], [S_KVPREV]),
            salu(f"s_mov_b32 s{S_QCUR}, s{S_QNEXT}", [S_QNEXT], [S_QCUR]), salu(f"s_mov_b32 s{S_KVCUR}, s{S_KVNEXT}", [S_KVNEXT], [S_KVCUR])]

DEAD = set()
def wait(*need, key=None):
    w = Ins("s_waitcnt ?", "wait", need=list(need)); w.tag = key
    if key is not None and key in DEAD: w.cost = 0; w.kind = "comment"; w.text = ""; w.need = None
    return w
def barrier(): return Ins("s_barrier", "barrier", cost=4)

G = 17
def setmin(ops, m):
    for o in ops: o.minpos = max(o.minpos, m)
    return ops
def build_body():
    bb = []; pre = {}; st = []
    NG = 128
    for n in range(NG):
        T, g = divmod(n, 4)
        n1 = (n + 1) % NG; T1, g1 = divmod(n1, 4)
        n0 = (n - 1) % NG; T0, g0 = divmod(n0, 4)
        base = G * n
        p = pre.setdefault(base, [])
        if g == 0 and T % 16 == 0: p += rotate()
        if g == 0 and T % 2 == 0:
            if cfg.stamps: p.append(salu("s_memtime s[70:71]\n  v_mov_b32 v47, s72"))
            p += [wait(("vm", [f"D{(T+1)%32}", f"D{(T+2)%32}"]), ("lgkm", "all")), barrier()]
            if cfg.stamps:
                p.append(valu("s_memtime s[72:73]\n  v_mov_b32 v46, s70\n  v_cmp_eq_u32 vcc, s74, v0\n  s_add_u32 s74, s74, 1\n  s_nop 0\n  v_cndmask_b32 v44, v44, v46, vcc\n  v_cndmask_b32 v45, v45, v47, vcc", [], V(44, 2)))
        if g1 == 0: p.append(wait(("lgkm", [f"K{T1}"]), key=f"wK{T1}"))
        if T1 % 16 == 0: p.append(wait(("lgkm", [f"Q{T1//16}{g1}"]), key=f"wQ{T1}{g1}"))
        bb += QK(T1 // 16, T1, g1)
        if g0 == 0: pre.setdefault(base + 8, []).append(wait(("lgkm", [f"V{T0}"]), key=f"wV{T0}"))
        bb += PV(T0, g0, T0 % 16 == 0)
        rel = max(0, base - G + 12)
        st.append(Stream(f"SM{n}", SM(g, T % 16 == 0, base - 1), rel, base + G - 1))
        if g == 0:
            Tn = (T + 1) % 32; t = T % 16
            for k, op in enumerate(KREADS(Tn, Tn)): st.append(Stream(f"K{Tn}_{k}", [op], base + 5 * k, base + 5 * k + 7))
            for k, op in enumerate(VREADS(Tn, Tn)): st.append(Stream(f"V{Tn}_{k}", [op], base + G - 1 + (5 * k) // 2, base + G - 1 + (5 * k) // 2 + 6))
            TT = (T + 7) % 32
            d = DMA(TT, "next" if t == 9 else "inc", TT)
            qg = {2: 0, 3: 1, 8: 2, 9: 3}.get(t)
            step = 8 if qg is not None else 16
            for pp in range(4): d[2 + pp].minpos = base + 2 + pp * step
            if qg is not None:
                qd = QDMA(qg)
                for pp in range(4): qd[2 + pp].minpos = base + 36 + pp * 8
                d += qd
            st.append(Stream(f"D{TT}", d, base, base + 4 * G - 1))
            if t == 0: st.append(Stream(f"NB{T}", next_block_calc(True), base, base + 3 * G))
            qr = {7: 0, 8: 1, 13: 2, 14: 3}.get(t)
            if qr is not None: st.append(Stream(f"QR{T}", QREAD(1 - T // 16, qr), base + 2, base + 2 * G - 1))
        if T % 16 == 15 and g == 1:
            st.append(Stream(f"E{T}_01", EPI(0, S_QCUR) + setmin(EPI(1, S_QCUR), base + 2 * G - 1 + 6), base + G - 1 + 6, G * (4 * T + 4) - 1))
        if T % 16 == 0 and g == 0:
            e2 = EPI(2, S_QPREV); e3 = setmin(EPI(3, S_QPREV, site=T // 16), base + G - 1 + 6)
            e2[-1].maxpos = base + 3 * G + 5
            st.append(Stream(f"E{T}_23", e2 + e3, base + 4, base + 4 * G + 5))
    def tfn(i):
        n = i // G; T = (n // 4) % 16
        if T == 15 and n % 4 >= 1: return cfg.seam_t
        if T == 0: return cfg.seam_t
        return 8
    return schedule(bb, st, pre, tfn)

def build_drain():
    bb = PV(31, 3, False)
    pre = {0: rotate()}
    st = [Stream("E2", EPI(2, S_QPREV) + setmin([Ins("s_nop 7", "salu")] + EPI(3, S_QPREV, site=2), 8), 3, 8)]
    out, stats = schedule(bb, st, pre)
    return out

def build_init():
    o = []
    def s(t, rd=(), wr=()): o.append(salu(t, rd, wr))
    def v(t, rd=(), wr=()): o.append(valu(t, rd, wr))
    s("s_cmp_ge_u32 s2, 256\n  s_cbranch_scc1 L_end")
    s("s_load_dwordx8 s[4:11], s[0:1], 0", [], list(range(4, 12)))
    s("s_load_dwordx4 s[12:15], s[0:1], 32", [], list(range(12, 16)))
    v("v_lshrrev_b32 v1, 6, v0", V(0), V(1))
    v("v_and_b32 v0, 63, v0", V(0), V(0))
    v(f"v_readfirstlane_b32 s{S_WAVE}, v1", V(1), Sg(S_WAVE))
    v("v_and_b32 v36, 15, v0", V(0), V(36)); v("v_lshrrev_b32 v37, 4, v0", V(0), V(37)); v("v_lshrrev_b32 v38, 2, v0", V(0), V(38))
    for kk in range(4):
        v(f"v_or_b32 v39, {4*kk}, v37", V(37), V(39)); v("v_xor_b32 v39, v39, v36", V(39) + V(36), V(39))
        v("v_lshlrev_b32 v39, 4, v39", V(39), V(39)); v(f"v_lshl_add_u32 v{V_KA+kk}, v36, 8, v39", V(36) + V(39), V(V_KA + kk))
    v("v_and_b32 v40, 7, v38", V(38), V(40)); v("v_and_b32 v41, 3, v0", V(0), V(41)); v("v_lshlrev_b32 v41, 3, v41", V(41), V(41))
    v("v_lshl_add_u32 v41, v38, 8, v41", V(38) + V(41), V(41)); v("v_add_u32 v41, 0x10000, v41", V(41), V(41))
    for dt in range(8):
        v(f"v_xor_b32 v39, {dt}, v40", V(40), V(39)); v(f"v_lshl_add_u32 v{V_VA+dt}, v39, 5, v41", V(39) + V(41), V(V_VA + dt))
    s(f"s_lshr_b32 s{S_T0}, s{S_WAVE}, 1", [S_WAVE], [S_T0])
    s(f"s_and_b32 s{S_T1}, s{S_WAVE}, 1", [S_WAVE], [S_T1])
    s(f"s_lshl_b32 s{S_WPART}, s{S_T1}, 12", [S_T1], [S_WPART])
    s(f"s_lshl_b32 s{S_LDSB}, s{S_T0}, 16", [S_T0], [S_LDSB])
    s(f"s_add_u32 s{S_LDSB}, s{S_LDSB}, s{S_WPART}", [S_LDSB, S_WPART], [S_LDSB])
    s(f"s_lshr_b32 s{S_TQ}, 15, s{S_T0}", [S_T0], [S_TQ])
    for p in range(4):
        v(f"v_add_u32 v39, {4*p}, v37", V(37), V(39)); v(f"v_and_b32 v39, s{S_TQ}, v39", V(39) + Sg(S_TQ), V(39))
        v(f"v_lshlrev_b32 v39, s{S_T0}, v39", V(39) + Sg(S_T0), V(39)); v("v_xor_b32 v39, v39, v36", V(39) + V(36), V(39))
        v("v_lshlrev_b32 v39, 4, v39", V(39), V(39)); v(f"v_lshl_add_u32 v{V_DMA+p}, v37, 8, v39", V(37) + V(39), V(V_DMA + p))
    for p in range(4):
        v(f"v_add_u32 v39, {4*p}, v37", V(37), V(39)); v("v_xor_b32 v39, v39, v36", V(39) + V(36), V(39))
        v("v_lshlrev_b32 v39, 4, v39", V(39), V(39)); v(f"v_lshl_add_u32 v{V_QDMA+p}, v37, 8, v39", V(37) + V(39), V(V_QDMA + p))
    s(f"s_lshl_b32 s{S_WQ}, s{S_WAVE}, 14", [S_WAVE], [S_WQ])
    s(f"s_lshl_b32 s{S_STG}, s{S_WAVE}, 13", [S_WAVE], [S_STG]); s(f"s_add_u32 s{S_STG}, s{S_STG}, {STG}", [S_STG], [S_STG])
    s(f"s_lshl_b32 s{S_STG2}, s{S_T0}, 16", [S_T0], [S_STG2]); s(f"s_lshl_b32 s{S_T1}, s{S_WPART}, 1", [S_WPART], [S_T1])
    s(f"s_add_u32 s{S_STG2}, s{S_STG2}, s{S_T1}", [S_STG2, S_T1], [S_STG2]); s(f"s_add_u32 s{S_STG2}, s{S_STG2}, {6*8192}", [S_STG2], [S_STG2])
    for kk in range(4):
        v(f"v_add_u32 v{V_QA+kk}, s{S_STG}, v{V_KA+kk}", V(V_KA + kk) + Sg(S_STG), V(V_QA + kk))
        v(f"v_add_u32 v{V_QA2+kk}, s{S_STG2}, v{V_KA+kk}", V(V_KA + kk) + Sg(S_STG2), V(V_QA2 + kk))
    v(f"v_lshlrev_b32 v39, 4, v0", V(0), V(39)); v(f"v_add_u32 v{V_OOFF}, s{S_WQ}, v39", V(39) + Sg(S_WQ), V(V_OOFF))
    v("v_mul_u32_u24 v39, 272, v36", V(36), V(39)); v("v_lshl_add_u32 v39, v37, 3, v39", V(37) + V(39), V(39))
    v(f"v_add_u32 v{V_OW}, s{S_STG}, v39", V(39) + Sg(S_STG), V(V_OW))
    v("v_mul_u32_u24 v39, 272, v37", V(37), V(39)); v("v_lshl_add_u32 v39, v36, 4, v39", V(36) + V(39), V(39))
    v(f"v_add_u32 v{V_OR}, s{S_STG}, v39", V(39) + Sg(S_STG), V(V_OR))
    v("v_and_b32 v39, 3, v0", V(0), V(39)); v("v_cmp_eq_u32 vcc, 0, v39", V(39), [("vcc", 0)]); v("v_mov_b32 v40, 0x3f803f80", [], V(40))
    v("v_mov_b32 v39, 0", [], V(39))
    for e in range(4): v(f"v_cndmask_b32 v{V_ONES+e}, v39, v40, vcc", V(39) + V(40) + [("vcc", 0)], V(V_ONES + e))
    for r in list(range(V_L, V_L + 16)) + list(range(V_P, V_P + 8)): v(f"v_mov_b32 v{r}, 0", [], V(r))
    s(f"s_mov_b32 s{S_C}, 0x{CSCALE:08x}", [], [S_C]); s(f"s_mov_b32 s{S_NC}, 0x{CSCALE | 0x80000000:08x}", [], [S_NC])
    s(f"s_mov_b32 s{S_THR}, 0x{f32(2.0 ** cfg.thr_log2):08x}", [], [S_THR])
    for r in range(S_BAD, S_BAD + 8): s(f"s_mov_b32 s{r}, 0", [], [r])
    s(f"s_and_b32 s{S_XCD}, s2, 7", [], [S_XCD]); s(f"s_lshr_b32 s{S_INEXT}, s2, 3", [], [S_INEXT])
    s(f"s_mov_b32 s{S_QCUR}, {OOB}", [], [S_QCUR]); s(f"s_mov_b32 s{S_KVCUR}, {OOB}", [], [S_KVCUR])
    s(f"s_mov_b32 s{S_LOOP}, 2", [], [S_LOOP])
    if cfg.stamps:
        s("s_mov_b32 s74, 1\n  s_memtime s[72:73]\n  s_memrealtime s[76:77]\n v_mov_b32 v44, 0\n v_mov_b32 v45, 0")
    o += next_block_calc(False)
    s("s_waitcnt lgkmcnt(0)")
    for srd, ptr, size in ((S_Q, 4, 0x6000000), (S_O, 10, 0x6000000), (S_K, 6, 0x4000000), (S_V, 8, 0x4000000), (S_W, 14, 402653184)):
        s(f"s_mov_b32 s{srd}, s{ptr}", [ptr], [srd]); s(f"s_mov_b32 s{srd+1}, s{ptr+1}", [ptr + 1], [srd + 1])
        s(f"s_mov_b32 s{srd+2}, {size}", [], [srd + 2]); s(f"s_mov_b32 s{srd+3}, 0x00020000", [], [srd + 3])
    s(f"s_cmp_ge_u32 s{S_WAVE}, 2\n  s_cselect_b32 s{S_X}, s8, s6\n  s_cselect_b32 s{S_X+1}, s9, s7", [S_WAVE, 6, 7, 8, 9], [S_X, S_X + 1])
    s(f"s_mov_b32 s{S_X+2}, 0x4000000", [], [S_X + 2]); s(f"s_mov_b32 s{S_X+3}, 0x00020000", [], [S_X + 3])
    def dma(TT, how):
        d = DMA(TT, how, TT); return d[:2] + [salu("s_nop 0")] + d[2:]
    def qdma(g_):
        d = QDMA(g_, S_STG if g_ < 2 else S_STG2); return d[:2] + [salu("s_nop 0")] + d[2:]
    o += dma(0, "first") + qdma(0) + qdma(1) + dma(1, "inc") + qdma(2) + qdma(3)
    for TT in range(2, 6): o += dma(TT, "inc")
    o += [wait(("vm", ["D0"])), barrier()]
    o += KREADS(0, 0) + QREAD(0, 0) + VREADS(0, 0)
    o += [wait(("lgkm", ["K0", "Q00"]))]
    o += QK(0, 0, 0)
    o += QREAD(0, 1) + QREAD(0, 2, V_QA2) + QREAD(0, 3, V_QA2)
    o += [wait(("lgkm", "all")), barrier()]
    o += dma(6, "inc")
    return o

def slow_stub():
    t = []
    for site in range(3):
        t.append(f"L_slow{site}:\n  s_branch L_ret{site}")
    return "\n".join(t)

def main():
    tail = [salu(f"s_sub_u32 s{S_LOOP}, s{S_LOOP}, 1\n  s_cbranch_scc0 L_loop", [S_LOOP], [S_LOOP], cost=8)]
    for it in range(3):
        init = build_init()
        body, stats = build_body()
        drain = build_drain()
        trace = init + (body + tail) * 3 + drain
        best = resolve_waits(trace)
        for l in (init, body, drain): apply_waits(l, best)
        dead = lambda x: (x.kind == "wait" and x.need is not None and x.text == "s_nop 0") or x.kind == "comment"
        nd = {x.tag for x in body if x.kind == "wait" and dead(x) and x.tag}
        if nd <= DEAD: break
        DEAD.update(nd)
    init = [x for x in init if not dead(x)]; body = [x for x in body if not dead(x)]; drain = [x for x in drain if not dead(x)]
    init, n1 = fix_hazards(init); body, n2 = fix_hazards(body); drain, n3 = fix_hazards(drain)
    print("nops inserted", n1, n2, n3, file=sys.stderr)
    trace = init + (body + tail) * 3 + drain
    errs = check(trace)
    seen = set()
    for e in errs:
        if e not in seen: print("ERR", e, file=sys.stderr); seen.add(e)
    tot = sum(x.cost for x in body)
    under = sum(1 for f in stats[1:] if f < 8)
    est = sum(8 + max(8, f) for f in stats[1:])
    print(f"body instrs {len(body)} issue-cycles {tot} est cycles {est} underfilled gaps {under}", file=sys.stderr)
    hdr = open("header.txt").read()
    lines = [hdr, '.amdgcn_target "amdgcn-amd-amdhsa--gfx950"', ".text", f".globl {NAME}", ".p2align 8", f".type {NAME},@function", f"{NAME}:"]
    lines += ["  " + x.text for x in init]
    lines += [".p2align 3", "L_loop:"] + ["  " + x.text for x in body + tail]
    lines += ["  " + x.text for x in drain]
    if cfg.stamps:
        lines += ["""  s_waitcnt vmcnt(0) lgkmcnt(0)
  s_memtime s[70:71]
  s_memrealtime s[78:79]
  s_waitcnt lgkmcnt(0)
  v_writelane_b32 v44, s70, 49
  v_writelane_b32 v45, s72, 49
  s_sub_u32 s78, s78, s76
  v_writelane_b32 v44, s78, 0
  v_writelane_b32 v45, s76, 0
  s_lshl_b32 s75, s2, 2
  s_add_u32 s75, s75, s%d
  s_lshl_b32 s75, s75, 9
  v_lshlrev_b32 v46, 3, v0
  buffer_store_dwordx2 v[44:45], v46, s[%d:%d], s75 offen""" % (S_WAVE, S_W, S_W + 3)]
    lines += ["L_end:", "  s_endpgm"]
    if cfg.slow:
        import slow
        lines.append(slow.emit(globals()))
    else: lines.append(slow_stub())
    lines += ['.section .rodata,"a"', ".p2align 6", f".amdhsa_kernel {NAME}", "  .amdhsa_next_free_vgpr 512", "  .amdhsa_next_free_sgpr 102",
              "  .amdhsa_accum_offset 256", "  .amdhsa_group_segment_fixed_size 0", "  .amdhsa_kernarg_size 48", "  .amdhsa_user_sgpr_count 2",
              "  .amdhsa_user_sgpr_kernarg_segment_ptr 1", "  .amdhsa_system_sgpr_workgroup_id_x 1", ".end_amdhsa_kernel"]
    open(sys.argv[1], "w").write("\n".join(lines) + "\n")
    if errs: sys.exit(1)
main()
```

```python
import sys, math, struct
from asmlib import *

class Cfg:
    nt_q = False; nt_kv = False; nt_o = False
    thr_log2 = 32
    slow = True
    stamps = False
    seam_t = 20
cfg = Cfg()
for a in sys.argv[2:]:
    k, v = a.split("="); setattr(cfg, k, eval(v))

NAME = "standalone__mha_softmax__near_ridge_kernel"
def f32(x): return struct.unpack("<I", struct.pack("<f", x))[0]
CSCALE = f32(128 ** -0.5 * math.log2(math.e))

V_KA = 2
V_VA = 6
V_DMA = 14
V_QOFF = 18; V_OOFF = 19
V_NEGM = 20
V_RINV = 24
V_T = 28
V_ONES = 32
V_QDMA = 48
V_QA = 52
V_OW = 56; V_OR = 57
V_QA2 = 58
V_L = 64
V_S = 96
V_P = 112
V_O = 128
A_Q = 0; A_K = 128; A_V = 192
S_Q, S_X, S_O, S_K, S_V, S_W = 16, 20, 24, 28, 32, 36
S_C, S_NC, S_THR, S_WAVE, S_LDSB, S_DOFF, S_INEXT, S_XCD = 40, 41, 42, 43, 44, 45, 46, 47
S_QNEXT, S_KVNEXT, S_QCUR, S_KVCUR, S_QPREV, S_KVPREV = 48, 49, 50, 51, 52, 53
S_BAD = 54
S_LOOP, S_RET, S_WPART, S_T0, S_T1, S_TQ, S_TO = 62, 63, 64, 65, 66, 67, 68
S_STG, S_WQ, S_STG2 = 80, 81, 82
STG = 131072
OOB = 0x40000000

def salu(t, rd=(), wr=(), **k): return Ins(t, "salu", [("s", x) if isinstance(x, int) else x for x in rd], [("s", x) if isinstance(x, int) else x for x in wr], **k)
def valu(t, rd=(), wr=(), kind="valu", **k): return Ins(t, kind, rd, wr, **k)
def V(n, c=1): return R("v", n, c)
def A(n, c=1): return R("a", n, c)
def Sg(n, c=1): return R("s", n, c)

def mfma(d, a, b, c):
    ct = "0" if c is None else rs("v", c, 4)
    t = f"v_mfma_f32_16x16x32_bf16 {rs('v', d, 4)}, {rs(a[0], a[1], 4)}, {rs(b[0], b[1], 4)}, {ct}"
    ab = R(a[0], a[1], 4) + R(b[0], b[1], 4)
    cc = [] if c is None else V(c, 4)
    return Ins(t, "mfma", ab + cc, V(d, 4), srcc=cc, ab=ab)

def QK(qb, T, g):
    out = []
    for kk in range(4):
        for t in range(2):
            d = V_S + 8 * (g % 2) + 4 * t
            out.append(mfma(d, ("a", A_K + 32 * (T % 2) + 16 * t + 4 * kk), ("a", A_Q + 64 * qb + 16 * g + 4 * kk), None if kk == 0 else d))
    return out
def PV(T, g, first):
    out = []
    p = ("v", V_P + 4 * (g % 2))
    for dt in range(8):
        d = V_O + 32 * g + 4 * dt
        out.append(mfma(d, ("a", A_V + 32 * (T % 2) + 4 * dt), p, None if first else d))
    d = V_L + 4 * g
    out.append(mfma(d, ("v", V_ONES), p, None if first else d))
    return out

def SM(g, first, cvt_min):
    s = V_S + 8 * (g % 2); p = V_P + 4 * (g % 2); nm = V_NEGM + g
    o = []
    if first:
        t0, t1 = V_T + 2 * (g % 2), V_T + 2 * (g % 2) + 1
        o.append(valu(f"v_max3_f32 v{t0}, v{s}, v{s+1}, v{s+2}", V(s, 3), V(t0)))
        o.append(valu(f"v_max3_f32 v{t1}, v{s+3}, v{s+4}, v{s+5}", V(s + 3, 3), V(t1)))
        o.append(valu(f"v_max3_f32 v{t0}, v{s+6}, v{s+7}, v{t0}", V(s + 6, 2) + V(t0), V(t0)))
        o.append(valu(f"v_max_f32 v{t0}, v{t0}, v{t1}", V(t0) + V(t1), V(t0)))
        o.append(valu(f"v_mov_b32 v{t1}, v{t0}", V(t0), V(t1)))
        o.append(valu(f"s_nop 1\n  v_permlane32_swap_b32 v{t1}, v{t0}", (), V(t0) + V(t1), cost=12))
        o.append(valu(f"v_max_f32 v{t0}, v{t0}, v{t1}", V(t0) + V(t1), V(t0)))
        o.append(valu(f"v_mov_b32 v{t1}, v{t0}", V(t0), V(t1)))
        o.append(valu(f"s_nop 1\n  v_permlane16_swap_b32 v{t1}, v{t0}", (), V(t0) + V(t1), cost=12))
        o.append(valu(f"v_max_f32 v{t0}, v{t0}, v{t1}", V(t0) + V(t1), V(t0)))
        o.append(valu(f"v_mul_f32 v{nm}, s{S_NC}, v{t0}", V(t0) + Sg(S_NC), V(nm)))
    def fma(r): return valu(f"v_fma_f32 v{s+r}, v{s+r}, s{S_C}, v{nm}", V(s + r) + V(nm) + Sg(S_C), V(s + r))
    def ex(r): return valu(f"v_exp_f32 v{s+r}, v{s+r}", V(s + r), V(s + r), kind="trans")
    def cvt(h): return valu(f"v_cvt_pk_bf16_f32 v{p+h}, v{s+2*h}, v{s+2*h+1}", V(s + 2 * h, 2), V(p + h), minpos=cvt_min, nogap=True)
    o += [fma(0), fma(1), ex(0), ex(1), fma(2), fma(3), ex(2), ex(3), cvt(0), fma(4), ex(4), cvt(1), fma(5), ex(5),
          fma(6), fma(7), ex(6), ex(7), cvt(2), cvt(3)]
    o[-1].nogap = False
    return o

def KREADS(T, tagp):
    o = []
    for kk in range(4):
        for t in range(2):
            d = A_K + 32 * (T % 2) + 16 * t + 4 * kk
            o.append(Ins(f"ds_read_b128 {rs('a', d, 4)}, v{V_KA+kk} offset:{(T % 8) * 8192 + t * 4096}", "ds", V(V_KA + kk), A(d, 4), tag=f"K{tagp}"))
    return o
def VREADS(T, tagp):
    o = []
    for dt in range(8):
        for h in range(2):
            d = A_V + 32 * (T % 2) + 4 * dt + 2 * h
            o.append(Ins(f"ds_read_b64_tr_b16 {rs('a', d, 2)}, v{V_VA+dt} offset:{(T % 8) * 8192 + h * 4096}", "ds", V(V_VA + dt), A(d, 2), tag=f"V{tagp}"))
    return o
def DMA(TT, how, tagp):
    o = []
    if how == "inc": o.append(salu(f"s_add_u32 s{S_DOFF}, s{S_DOFF}, 8192", [S_DOFF], [S_DOFF]))
    else: o.append(salu(f"s_add_u32 s{S_DOFF}, s{S_KVNEXT}, s{S_WPART}", [S_KVNEXT, S_WPART], [S_DOFF]))
    o.append(salu(f"s_add_u32 m0, s{S_LDSB}, {(TT % 8) * 8192}", [S_LDSB], [("m0", 0)]))
    nt = " nt" if cfg.nt_kv else ""
    for p in range(4):
        o.append(Ins(f"buffer_load_dwordx4 v{V_DMA+p}, {rs('s', S_X, 4)}, s{S_DOFF} offen offset:{1024*p}{nt} lds", "dma",
                     V(V_DMA + p) + Sg(S_X, 4) + Sg(S_DOFF) + [("m0", 0)], [], tag=f"D{tagp}", nogap=(p == 0)))
    return o
def QDMA(g, stg=S_STG, slot=None):
    slot = g % 2 if slot is None else slot
    o = [salu(f"s_add_u32 s{S_TQ}, s{S_QNEXT}, s{S_WQ}", [S_QNEXT, S_WQ], [S_TQ])] if g == 0 else [salu(f"s_add_u32 s{S_TQ}, s{S_TQ}, 4096", [S_TQ], [S_TQ])]
    o.append(salu(f"s_add_u32 m0, s{stg}, {4096*slot}", [stg], [("m0", 0)]))
    nt = " nt" if cfg.nt_q else ""
    for p in range(4):
        o.append(Ins(f"buffer_load_dwordx4 v{V_QDMA+p}, {rs('s', S_Q, 4)}, s{S_TQ} offen offset:{1024*p}{nt} lds", "dma",
                     V(V_QDMA + p) + Sg(S_Q, 4) + Sg(S_TQ) + [("m0", 0)], [], tag=f"QD{g}", nogap=(p == 0)))
    return o
def QREAD(qb, g, va=V_QA):
    o = [wait(("vm", [f"QD{g}"]))]
    for kk in range(4):
        d = A_Q + 64 * qb + 16 * g + 4 * kk
        o.append(Ins(f"ds_read_b128 {rs('a', d, 4)}, v{va+kk} offset:{4096*(g%2)}", "ds", V(va + kk), A(d, 4), tag=f"Q{qb}{g}"))
    return o
def EPI(g, sq, site=None):
    l = V_L + 4 * g; r = V_RINV + g; to = S_TO + (g % 2)
    o = [valu(f"v_rcp_f32 v{r}, v{l}", V(l), V(r), kind="trans"),
         valu(f"v_cmp_ngt_f32 {rs('s', S_BAD+2*g, 2)}, s{S_THR}, v{l}", V(l) + Sg(S_THR), Sg(S_BAD + 2 * g, 2)),
         salu(f"s_add_u32 s{to}, s{sq}, {4096*g}", [sq], [to])]
    nt = " nt" if cfg.nt_o else ""
    def M(p): a = V_O + 32 * g + 8 * p; return [valu(f"v_mul_f32 v{a+e}, v{a+e}, v{r}", V(a + e) + V(r), V(a + e)) for e in range(8)]
    def C(p): a = V_O + 32 * g + 8 * p; return [valu(f"v_cvt_pk_bf16_f32 v{a+h}, v{a+2*h}, v{a+2*h+1}", V(a + 2 * h, 2), V(a + h)) for h in range(4)]
    def W(p):
        a = V_O + 32 * g + 8 * p
        return [Ins(f"ds_write_b64 v{V_OW}, {rs('v', a + 2 * h, 2)} offset:{64*p+32*h}", "ds", V(V_OW) + V(a + 2 * h, 2), [], tag="OW", cost=6) for h in range(2)]
    def RD(p):
        a = V_O + 32 * g + 4 * p
        return [Ins(f"ds_read_b128 {rs('v', a, 4)}, v{V_OR} offset:{1088*p}", "ds", V(V_OR), V(a, 4), tag=f"OR{g}")]
    def ST(p):
        a = V_O + 32 * g + 4 * p
        return [Ins(f"buffer_store_dwordx4 {rs('v', a, 4)}, v{V_OOFF}, {rs('s', S_O, 4)}, s{to} offen offset:{1024*p}{nt}", "store",
                    V(a, 4) + V(V_OOFF) + Sg(S_O, 4) + Sg(to), [], tag="ST")]
    o += M(0) + C(0) + M(1) + C(1) + M(2) + C(2) + M(3) + C(3)
    w0 = W(0); w0[0].nogap = True
    o += w0 + W(1) + W(2) + W(3) + RD(0) + RD(1) + RD(2) + RD(3)
    wt = wait(("lgkm", [f"OR{g}"])); wt.delay = 6
    o += [wt] + ST(0) + ST(1) + ST(2) + ST(3)
    if site is not None:
        b = S_BAD
        o.append(salu(f"s_or_b64 s[{b}:{b+1}], s[{b}:{b+1}], s[{b+2}:{b+3}]", Sg(b, 4), Sg(b, 2)))
        o.append(salu(f"s_or_b64 s[{b+4}:{b+5}], s[{b+4}:{b+5}], s[{b+6}:{b+7}]", Sg(b + 4, 4), Sg(b + 4, 2)))
        o.append(salu(f"s_or_b64 s[{b}:{b+1}], s[{b}:{b+1}], s[{b+4}:{b+5}]\n  s_cbranch_scc1 L_slow{site}\nL_ret{site}:", Sg(b, 2) + Sg(b + 4, 2), Sg(b, 2), cost=8))
    return o

def next_block_calc(pre_inc):
    o = []
    if pre_inc: o.append(salu(f"s_add_u32 s{S_INEXT}, s{S_INEXT}, 32", [S_INEXT], [S_INEXT]))
    o += [salu(f"s_mul_i32 s{S_T0}, s{S_INEXT}, 43691", [S_INEXT], [S_T0]),
          salu(f"s_lshr_b32 s{S_T0}, s{S_T0}, 17", [S_T0], [S_T0]),
          salu(f"s_lshl_b32 s{S_T1}, s{S_XCD}, 6", [S_XCD], [S_T1]),
          salu(f"s_add_u32 s{S_T0}, s{S_T0}, s{S_T1}", [S_T0, S_T1], [S_T0]),
          salu(f"s_lshl_b32 s{S_KVNEXT}, s{S_T0}, 17", [S_T0], [S_KVNEXT]),
          salu(f"s_mul_i32 s{S_T1}, s{S_XCD}, 192", [S_XCD], [S_T1]),
          salu(f"s_add_u32 s{S_T1}, s{S_T1}, s{S_INEXT}", [S_T1, S_INEXT], [S_T1]),
          salu(f"s_lshl_b32 s{S_QNEXT}, s{S_T1}, 16", [S_T1], [S_QNEXT]),
          salu(f"s_cmp_lt_u32 s{S_INEXT}, 192\n  s_cselect_b32 s{S_KVNEXT}, s{S_KVNEXT}, {OOB}\n  s_cselect_b32 s{S_QNEXT}, s{S_QNEXT}, {OOB}",
               [S_INEXT, S_KVNEXT, S_QNEXT], [S_KVNEXT, S_QNEXT], cost=12)]
    return o
def rotate():
    return [salu(f"s_mov_b32 s{S_QPREV}, s{S_QCUR}", [S_QCUR], [S_QPREV]), salu(f"s_mov_b32 s{S_KVPREV}, s{S_KVCUR}", [S_KVCUR], [S_KVPREV]),
            salu(f"s_mov_b32 s{S_QCUR}, s{S_QNEXT}", [S_QNEXT], [S_QCUR]), salu(f"s_mov_b32 s{S_KVCUR}, s{S_KVNEXT}", [S_KVNEXT], [S_KVCUR])]

DEAD = set()
def wait(*need, key=None):
    w = Ins("s_waitcnt ?", "wait", need=list(need)); w.tag = key
    if key is not None and key in DEAD: w.cost = 0; w.kind = "comment"; w.text = ""; w.need = None
    return w
def barrier(): return Ins("s_barrier", "barrier", cost=4)

G = 17
def setmin(ops, m):
    for o in ops: o.minpos = max(o.minpos, m)
    return ops
def build_body():
    bb = []; pre = {}; st = []
    NG = 128
    for n in range(NG):
        T, g = divmod(n, 4)
        n1 = (n + 1) % NG; T1, g1 = divmod(n1, 4)
        n0 = (n - 1) % NG; T0, g0 = divmod(n0, 4)
        base = G * n
        p = pre.setdefault(base, [])
        if g == 0 and T % 16 == 0: p += rotate()
        if g == 0 and T % 2 == 0:
            if cfg.stamps: p.append(salu("s_memtime s[70:71]\n  v_mov_b32 v47, s72"))
            p += [wait(("vm", [f"D{(T+1)%32}", f"D{(T+2)%32}"]), ("lgkm", "all")), barrier()]
            if cfg.stamps:
                p.append(valu("s_memtime s[72:73]\n  v_mov_b32 v46, s70\n  v_cmp_eq_u32 vcc, s74, v0\n  s_add_u32 s74, s74, 1\n  s_nop 0\n  v_cndmask_b32 v44, v44, v46, vcc\n  v_cndmask_b32 v45, v45, v47, vcc", [], V(44, 2)))
        if g1 == 0: p.append(wait(("lgkm", [f"K{T1}"]), key=f"wK{T1}"))
        if T1 % 16 == 0: p.append(wait(("lgkm", [f"Q{T1//16}{g1}"]), key=f"wQ{T1}{g1}"))
        bb += QK(T1 // 16, T1, g1)
        if g0 == 0: pre.setdefault(base + 8, []).append(wait(("lgkm", [f"V{T0}"]), key=f"wV{T0}"))
        bb += PV(T0, g0, T0 % 16 == 0)
        rel = max(0, base - G + 12)
        st.append(Stream(f"SM{n}", SM(g, T % 16 == 0, base - 1), rel, base + G - 1))
        if g == 0:
            Tn = (T + 1) % 32; t = T % 16
            for k, op in enumerate(KREADS(Tn, Tn)): st.append(Stream(f"K{Tn}_{k}", [op], base + 5 * k, base + 5 * k + 7))
            for k, op in enumerate(VREADS(Tn, Tn)): st.append(Stream(f"V{Tn}_{k}", [op], base + G - 1 + (5 * k) // 2, base + G - 1 + (5 * k) // 2 + 6))
            TT = (T + 7) % 32
            d = DMA(TT, "next" if t == 9 else "inc", TT)
            qg = {2: 0, 3: 1, 8: 2, 9: 3}.get(t)
            step = 8 if qg is not None else 16
            for pp in range(4): d[2 + pp].minpos = base + 2 + pp * step
            if qg is not None:
                qd = QDMA(qg)
                for pp in range(4): qd[2 + pp].minpos = base + 36 + pp * 8
                d += qd
            st.append(Stream(f"D{TT}", d, base, base + 4 * G - 1))
            if t == 0: st.append(Stream(f"NB{T}", next_block_calc(True), base, base + 3 * G))
            qr = {7: 0, 8: 1, 13: 2, 14: 3}.get(t)
            if qr is not None: st.append(Stream(f"QR{T}", QREAD(1 - T // 16, qr), base + 2, base + 2 * G - 1))
        if T % 16 == 15 and g == 1:
            st.append(Stream(f"E{T}_01", EPI(0, S_QCUR) + setmin(EPI(1, S_QCUR), base + 2 * G - 1 + 6), base + G - 1 + 6, G * (4 * T + 4) - 1))
        if T % 16 == 0 and g == 0:
            e2 = EPI(2, S_QPREV); e3 = setmin(EPI(3, S_QPREV, site=T // 16), base + G - 1 + 6)
            e2[-1].maxpos = base + 3 * G + 5
            st.append(Stream(f"E{T}_23", e2 + e3, base + 4, base + 4 * G + 5))
    def tfn(i):
        n = i // G; T = (n // 4) % 16
        if T == 15 and n % 4 >= 1: return cfg.seam_t
        if T == 0: return cfg.seam_t
        return 8
    return schedule(bb, st, pre, tfn)

def build_drain():
    bb = PV(31, 3, False)
    pre = {0: rotate()}
    st = [Stream("E2", EPI(2, S_QPREV) + setmin([Ins("s_nop 7", "salu")] + EPI(3, S_QPREV, site=2), 8), 3, 8)]
    out, stats = schedule(bb, st, pre)
    return out

def build_init():
    o = []
    def s(t, rd=(), wr=()): o.append(salu(t, rd, wr))
    def v(t, rd=(), wr=()): o.append(valu(t, rd, wr))
    s("s_cmp_ge_u32 s2, 256\n  s_cbranch_scc1 L_end")
    s("s_load_dwordx8 s[4:11], s[0:1], 0", [], list(range(4, 12)))
    s("s_load_dwordx4 s[12:15], s[0:1], 32", [], list(range(12, 16)))
    v("v_lshrrev_b32 v1, 6, v0", V(0), V(1))
    v("v_and_b32 v0, 63, v0", V(0), V(0))
    v(f"v_readfirstlane_b32 s{S_WAVE}, v1", V(1), Sg(S_WAVE))
    v("v_and_b32 v36, 15, v0", V(0), V(36)); v("v_lshrrev_b32 v37, 4, v0", V(0), V(37)); v("v_lshrrev_b32 v38, 2, v0", V(0), V(38))
    for kk in range(4):
        v(f"v_or_b32 v39, {4*kk}, v37", V(37), V(39)); v("v_xor_b32 v39, v39, v36", V(39) + V(36), V(39))
        v("v_lshlrev_b32 v39, 4, v39", V(39), V(39)); v(f"v_lshl_add_u32 v{V_KA+kk}, v36, 8, v39", V(36) + V(39), V(V_KA + kk))
    v("v_and_b32 v40, 7, v38", V(38), V(40)); v("v_and_b32 v41, 3, v0", V(0), V(41)); v("v_lshlrev_b32 v41, 3, v41", V(41), V(41))
    v("v_lshl_add_u32 v41, v38, 8, v41", V(38) + V(41), V(41)); v("v_add_u32 v41, 0x10000, v41", V(41), V(41))
    for dt in range(8):
        v(f"v_xor_b32 v39, {dt}, v40", V(40), V(39)); v(f"v_lshl_add_u32 v{V_VA+dt}, v39, 5, v41", V(39) + V(41), V(V_VA + dt))
    s(f"s_lshr_b32 s{S_T0}, s{S_WAVE}, 1", [S_WAVE], [S_T0])
    s(f"s_and_b32 s{S_T1}, s{S_WAVE}, 1", [S_WAVE], [S_T1])
    s(f"s_lshl_b32 s{S_WPART}, s{S_T1}, 12", [S_T1], [S_WPART])
    s(f"s_lshl_b32 s{S_LDSB}, s{S_T0}, 16", [S_T0], [S_LDSB])
    s(f"s_add_u32 s{S_LDSB}, s{S_LDSB}, s{S_WPART}", [S_LDSB, S_WPART], [S_LDSB])
    s(f"s_lshr_b32 s{S_TQ}, 15, s{S_T0}", [S_T0], [S_TQ])
    for p in range(4):
        v(f"v_add_u32 v39, {4*p}, v37", V(37), V(39)); v(f"v_and_b32 v39, s{S_TQ}, v39", V(39) + Sg(S_TQ), V(39))
        v(f"v_lshlrev_b32 v39, s{S_T0}, v39", V(39) + Sg(S_T0), V(39)); v("v_xor_b32 v39, v39, v36", V(39) + V(36), V(39))
        v("v_lshlrev_b32 v39, 4, v39", V(39), V(39)); v(f"v_lshl_add_u32 v{V_DMA+p}, v37, 8, v39", V(37) + V(39), V(V_DMA + p))
    for p in range(4):
        v(f"v_add_u32 v39, {4*p}, v37", V(37), V(39)); v("v_xor_b32 v39, v39, v36", V(39) + V(36), V(39))
        v("v_lshlrev_b32 v39, 4, v39", V(39), V(39)); v(f"v_lshl_add_u32 v{V_QDMA+p}, v37, 8, v39", V(37) + V(39), V(V_QDMA + p))
    s(f"s_lshl_b32 s{S_WQ}, s{S_WAVE}, 14", [S_WAVE], [S_WQ])
    s(f"s_lshl_b32 s{S_STG}, s{S_WAVE}, 13", [S_WAVE], [S_STG]); s(f"s_add_u32 s{S_STG}, s{S_STG}, {STG}", [S_STG], [S_STG])
    s(f"s_lshl_b32 s{S_STG2}, s{S_T0}, 16", [S_T0], [S_STG2]); s(f"s_lshl_b32 s{S_T1}, s{S_WPART}, 1", [S_WPART], [S_T1])
    s(f"s_add_u32 s{S_STG2}, s{S_STG2}, s{S_T1}", [S_STG2, S_T1], [S_STG2]); s(f"s_add_u32 s{S_STG2}, s{S_STG2}, {6*8192}", [S_STG2], [S_STG2])
    for kk in range(4):
        v(f"v_add_u32 v{V_QA+kk}, s{S_STG}, v{V_KA+kk}", V(V_KA + kk) + Sg(S_STG), V(V_QA + kk))
        v(f"v_add_u32 v{V_QA2+kk}, s{S_STG2}, v{V_KA+kk}", V(V_KA + kk) + Sg(S_STG2), V(V_QA2 + kk))
    v(f"v_lshlrev_b32 v39, 4, v0", V(0), V(39)); v(f"v_add_u32 v{V_OOFF}, s{S_WQ}, v39", V(39) + Sg(S_WQ), V(V_OOFF))
    v("v_mul_u32_u24 v39, 272, v36", V(36), V(39)); v("v_lshl_add_u32 v39, v37, 3, v39", V(37) + V(39), V(39))
    v(f"v_add_u32 v{V_OW}, s{S_STG}, v39", V(39) + Sg(S_STG), V(V_OW))
    v("v_mul_u32_u24 v39, 272, v37", V(37), V(39)); v("v_lshl_add_u32 v39, v36, 4, v39", V(36) + V(39), V(39))
    v(f"v_add_u32 v{V_OR}, s{S_STG}, v39", V(39) + Sg(S_STG), V(V_OR))
    v("v_and_b32 v39, 3, v0", V(0), V(39)); v("v_cmp_eq_u32 vcc, 0, v39", V(39), [("vcc", 0)]); v("v_mov_b32 v40, 0x3f803f80", [], V(40))
    v("v_mov_b32 v39, 0", [], V(39))
    for e in range(4): v(f"v_cndmask_b32 v{V_ONES+e}, v39, v40, vcc", V(39) + V(40) + [("vcc", 0)], V(V_ONES + e))
    for r in list(range(V_L, V_L + 16)) + list(range(V_P, V_P + 8)): v(f"v_mov_b32 v{r}, 0", [], V(r))
    s(f"s_mov_b32 s{S_C}, 0x{CSCALE:08x}", [], [S_C]); s(f"s_mov_b32 s{S_NC}, 0x{CSCALE | 0x80000000:08x}", [], [S_NC])
    s(f"s_mov_b32 s{S_THR}, 0x{f32(2.0 ** cfg.thr_log2):08x}", [], [S_THR])
    for r in range(S_BAD, S_BAD + 8): s(f"s_mov_b32 s{r}, 0", [], [r])
    s(f"s_and_b32 s{S_XCD}, s2, 7", [], [S_XCD]); s(f"s_lshr_b32 s{S_INEXT}, s2, 3", [], [S_INEXT])
    s(f"s_mov_b32 s{S_QCUR}, {OOB}", [], [S_QCUR]); s(f"s_mov_b32 s{S_KVCUR}, {OOB}", [], [S_KVCUR])
    s(f"s_mov_b32 s{S_LOOP}, 2", [], [S_LOOP])
    if cfg.stamps:
        s("s_mov_b32 s74, 1\n  s_memtime s[72:73]\n  s_memrealtime s[76:77]\n v_mov_b32 v44, 0\n v_mov_b32 v45, 0")
    o += next_block_calc(False)
    s("s_waitcnt lgkmcnt(0)")
    for srd, ptr, size in ((S_Q, 4, 0x6000000), (S_O, 10, 0x6000000), (S_K, 6, 0x4000000), (S_V, 8, 0x4000000), (S_W, 14, 402653184)):
        s(f"s_mov_b32 s{srd}, s{ptr}", [ptr], [srd]); s(f"s_mov_b32 s{srd+1}, s{ptr+1}", [ptr + 1], [srd + 1])
        s(f"s_mov_b32 s{srd+2}, {size}", [], [srd + 2]); s(f"s_mov_b32 s{srd+3}, 0x00020000", [], [srd + 3])
    s(f"s_cmp_ge_u32 s{S_WAVE}, 2\n  s_cselect_b32 s{S_X}, s8, s6\n  s_cselect_b32 s{S_X+1}, s9, s7", [S_WAVE, 6, 7, 8, 9], [S_X, S_X + 1])
    s(f"s_mov_b32 s{S_X+2}, 0x4000000", [], [S_X + 2]); s(f"s_mov_b32 s{S_X+3}, 0x00020000", [], [S_X + 3])
    def dma(TT, how):
        d = DMA(TT, how, TT); return d[:2] + [salu("s_nop 0")] + d[2:]
    def qdma(g_):
        d = QDMA(g_, S_STG if g_ < 2 else S_STG2); return d[:2] + [salu("s_nop 0")] + d[2:]
    o += dma(0, "first") + qdma(0) + qdma(1) + dma(1, "inc") + qdma(2) + qdma(3)
    for TT in range(2, 6): o += dma(TT, "inc")
    o += [wait(("vm", ["D0"])), barrier()]
    o += KREADS(0, 0) + QREAD(0, 0) + VREADS(0, 0)
    o += [wait(("lgkm", ["K0", "Q00"]))]
    o += QK(0, 0, 0)
    o += QREAD(0, 1) + QREAD(0, 2, V_QA2) + QREAD(0, 3, V_QA2)
    o += [wait(("lgkm", "all")), barrier()]
    o += dma(6, "inc")
    return o

def slow_stub():
    t = []
    for site in range(3):
        t.append(f"L_slow{site}:\n  s_branch L_ret{site}")
    return "\n".join(t)

def main():
    tail = [salu(f"s_sub_u32 s{S_LOOP}, s{S_LOOP}, 1\n  s_cbranch_scc0 L_loop", [S_LOOP], [S_LOOP], cost=8)]
    for it in range(3):
        init = build_init()
        body, stats = build_body()
        drain = build_drain()
        trace = init + (body + tail) * 3 + drain
        best = resolve_waits(trace)
        for l in (init, body, drain): apply_waits(l, best)
        dead = lambda x: (x.kind == "wait" and x.need is not None and x.text == "s_nop 0") or x.kind == "comment"
        nd = {x.tag for x in body if x.kind == "wait" and dead(x) and x.tag}
        if nd <= DEAD: break
        DEAD.update(nd)
    init = [x for x in init if not dead(x)]; body = [x for x in body if not dead(x)]; drain = [x for x in drain if not dead(x)]
    init, n1 = fix_hazards(init); body, n2 = fix_hazards(body); drain, n3 = fix_hazards(drain)
    print("nops inserted", n1, n2, n3, file=sys.stderr)
    trace = init + (body + tail) * 3 + drain
    errs = check(trace)
    seen = set()
    for e in errs:
        if e not in seen: print("ERR", e, file=sys.stderr); seen.add(e)
    tot = sum(x.cost for x in body)
    under = sum(1 for f in stats[1:] if f < 8)
    est = sum(8 + max(8, f) for f in stats[1:])
    print(f"body instrs {len(body)} issue-cycles {tot} est cycles {est} underfilled gaps {under}", file=sys.stderr)
    hdr = open("header.txt").read()
    lines = [hdr, '.amdgcn_target "amdgcn-amd-amdhsa--gfx950"', ".text", f".globl {NAME}", ".p2align 8", f".type {NAME},@function", f"{NAME}:"]
    lines += ["  " + x.text for x in init]
    lines += [".p2align 3", "L_loop:"] + ["  " + x.text for x in body + tail]
    lines += ["  " + x.text for x in drain]
    if cfg.stamps:
        lines += ["""  s_waitcnt vmcnt(0) lgkmcnt(0)
  s_memtime s[70:71]
  s_memrealtime s[78:79]
  s_waitcnt lgkmcnt(0)
  v_writelane_b32 v44, s70, 49
  v_writelane_b32 v45, s72, 49
  s_sub_u32 s78, s78, s76
  v_writelane_b32 v44, s78, 0
  v_writelane_b32 v45, s76, 0
  s_lshl_b32 s75, s2, 2
  s_add_u32 s75, s75, s%d
  s_lshl_b32 s75, s75, 9
  v_lshlrev_b32 v46, 3, v0
  buffer_store_dwordx2 v[44:45], v46, s[%d:%d], s75 offen
  s_cmp_lg_u32 s75, 0
  s_cbranch_scc1 L_end
  s_mov_b32 s84, s12
  s_mov_b32 s85, s13
  s_mov_b32 s86, 256
  s_mov_b32 s87, 0x00020000
  v_readlane_b32 s75, v45, 1
  v_add_u32 v46, 2, v0
  v_mul_u32_u24 v47, 43691, v46
  v_lshrrev_b32 v47, 17, v47
  v_mul_u32_u24 v48, 3, v47
  v_sub_u32 v48, v46, v48
  v_subrev_u32 v47, 1, v47
  v_subrev_u32 v49, s75, v44
  v_cmp_eq_u32 vcc, 0, v48
  v_mov_b32 v50, 1000
  v_cndmask_b32 v47, v50, v47, vcc
  v_cmp_lt_u32 vcc, 40, v0
  s_nop 1
  v_cndmask_b32 v47, v47, v50, vcc
  v_writelane_b32 v47, 14, 0
  v_writelane_b32 v47, 15, 49
  v_readlane_b32 s75, v44, 0
  s_nop 3
  v_writelane_b32 v49, s75, 0
  v_lshlrev_b32 v47, 2, v47
  buffer_store_dword v49, v47, s[84:87], 0 offen""" % (S_WAVE, S_W, S_W + 3)]
    lines += ["L_end:", "  s_endpgm"]
    if cfg.slow:
        import slow
        lines.append(slow.emit(globals()))
    else: lines.append(slow_stub())
    lines += ['.section .rodata,"a"', ".p2align 6", f".amdhsa_kernel {NAME}", "  .amdhsa_next_free_vgpr 512", "  .amdhsa_next_free_sgpr 102",
              "  .amdhsa_accum_offset 256", "  .amdhsa_group_segment_fixed_size 0", "  .amdhsa_kernarg_size 48", "  .amdhsa_user_sgpr_count 2",
              "  .amdhsa_user_sgpr_kernarg_segment_ptr 1", "  .amdhsa_system_sgpr_workgroup_id_x 1", ".end_amdhsa_kernel"]
    open(sys.argv[1], "w").write("\n".join(lines) + "\n")
    if errs: sys.exit(1)
main()
```

```python
import re

def R(kind, lo, n=1):
    return [(kind, lo + i) for i in range(n)]
def rs(kind, lo, n=1):
    return f"{kind}{lo}" if n == 1 else f"{kind}[{lo}:{lo+n-1}]"

class Ins:
    __slots__ = ("text", "kind", "rd", "wr", "cost", "tag", "need", "srcc", "nogap", "id", "ab", "minpos", "delay", "maxpos", "glue", "late")
    _n = 0
    def __init__(self, text, kind, rd=(), wr=(), cost=None, tag=None, need=None, srcc=(), nogap=False, ab=(), minpos=-99):
        self.text = text; self.kind = kind; self.rd = list(rd); self.wr = list(wr)
        self.cost = cost if cost is not None else {"mfma": 8, "trans": 8}.get(kind, 4)
        self.tag = tag
        self.need = need
        self.srcc = list(srcc)
        self.ab = list(ab)
        self.nogap = nogap
        self.minpos = minpos; self.delay = 0; self.maxpos = 10**9; self.glue = False; self.late = False
        Ins._n += 1; self.id = Ins._n
    def __repr__(self): return self.text

class Stream:
    def __init__(self, name, ops, release, deadline, prio=0):
        self.name = name; self.ops = list(ops); self.release = release; self.deadline = deadline
        self.pos = 0; self.lastgap = -10; self.prio = prio
    def head(self): return self.ops[self.pos] if self.pos < len(self.ops) else None

VALUK = ("valu", "trans", "perm")

def schedule(backbone, streams, pre=None, tfn=None):
    pre = pre or {}
    out = []
    n = len(backbone)
    stats = []
    streams = sorted(streams, key=lambda s: s.release)
    active = []; nxt = 0
    for i in range(-1, n):
        gap = []
        if i >= 0: out.append(backbone[i])
        while nxt < len(streams) and streams[nxt].release <= i:
            active.append(streams[nxt]); nxt += 1
        fixed = pre.get(i + 1, [])
        fill = sum(x.cost for x in fixed)
        def take(s):
            nonlocal fill
            op = s.head(); s.pos += 1; s.lastgap = i; gap.append(op); fill += op.cost
            while s.head() is not None and s.head().glue:
                op = s.head(); s.pos += 1; gap.append(op); fill += op.cost
        for s in active:
            if s.deadline <= i:
                while s.head() is not None: take(s)
            else:
                while any(o.maxpos <= i for o in s.ops[s.pos:]): take(s)
                rem = sum(1 for o in s.ops[s.pos + 1:] if o.nogap)
                if s.head() is not None and s.deadline - i <= rem and not (s.head().nogap and s.lastgap == i) and s.head().minpos <= i:
                    take(s)
                    while s.head() is not None and not s.head().nogap and s.head().minpos <= i: take(s)
        if i >= 0:
            target = tfn(i) if tfn else 8
            while fill < target:
                cands = [s for s in active if s.head() is not None and not (s.head().nogap and s.lastgap == i) and s.head().minpos <= i and i - s.lastgap >= s.head().delay]
                if not cands: break
                room = target - fill
                vfill = sum(x.cost for x in gap if x.kind in VALUK)
                lt = [s for s in cands if s.head().late]
                if lt and vfill >= 12:
                    take(lt[0]); continue
                if lt and len(lt) < len(cands): cands = [s for s in cands if not s.head().late]
                fit = [s for s in cands if s.head().cost <= room]
                pool = fit if fit else cands
                def urg(s):
                    left = 0.0; u = 1e9
                    for o in s.ops[s.pos:]:
                        left += o.cost / float(target) + o.delay
                        if o.maxpos < 10**9: u = min(u, o.maxpos - i - left)
                    return min(u, (s.deadline - i) - left) - s.prio
                s = min(pool, key=urg)
                take(s)
        active = [s for s in active if s.head() is not None]
        nv = [x for x in gap if x.kind not in VALUK]; vv = [x for x in gap if x.kind in VALUK]
        ordered = []
        pend = []
        for x in gap:
            if x.kind in VALUK: continue
            dep = False
            for y in gap:
                if y is x: break
                if y.kind in VALUK and (set(y.wr) & set(x.rd) or set(y.rd) & set(x.wr) or set(y.wr) & set(x.wr)): dep = True
            if pend: dep = True
            if dep: pend.append(x)
            else: ordered.append(x)
        rest = [x for x in gap if x.kind in VALUK or x in pend]
        lates = [x for x in rest if x.late]
        if lates:
            lw = set(r for x in lates for r in x.wr); lr = set(r for x in lates for r in x.rd)
            first = rest.index(lates[0])
            before = rest[:first]; after = []
            for x in rest[first:]:
                if x.late: continue
                if after or (set(x.rd) & lw) or (set(x.wr) & (lw | lr)) or x.kind not in VALUK: after.append(x)
                else: before.append(x)
            rest = before + lates + after
        ordered += rest
        out += ordered
        out += fixed
        stats.append(fill)
    left = [s.name for s in active if s.head() is not None] + [s.name for s in streams[nxt:]]
    assert not left, f"unscheduled streams {left}"
    return out, stats

def resolve_waits(trace):
    best = {}
    q = {"vm": [], "lgkm": []}
    for ins in trace:
        if ins.kind in ("vmem", "dma", "store"): q["vm"].append(ins)
        elif ins.kind == "ds": q["lgkm"].append(ins)
        elif ins.kind == "wait" and ins.need is not None:
            for ctr, tags in ins.need:
                lst = q[ctr]
                if tags == "all": N = 0
                else:
                    idx = [k for k, o in enumerate(lst) if o.tag in tags]
                    N = len(lst) - 1 - max(idx) if idx else None
                if N is not None:
                    Nr = N
                    if not ins.late: Nr = sum(1 for o in lst[len(lst) - N:] if o.kind != "store") if N > 0 else 0
                    best[(ins.id, ctr)] = min(best.get((ins.id, ctr), 99), Nr)
                    q[ctr] = lst[len(lst) - N:] if N > 0 else []
    return best

def apply_waits(static_list, best):
    for ins in static_list:
        if ins.kind == "wait" and ins.need is not None:
            parts = []
            for ctr, tags in ins.need:
                N = best.get((ins.id, ctr))
                if N is None: continue
                mx = 63 if ctr == "vm" else 15
                parts.append(f"{'vmcnt' if ctr=='vm' else 'lgkmcnt'}({min(N,mx)})")
            ins.text = "s_waitcnt " + " ".join(parts) if parts else "s_nop 0"

def check(trace):
    errs = []
    q = {"vm": [], "lgkm": []}
    pend = {}
    lastw = {}
    lastc = {}
    laststore = {}
    pos = 0
    for ins in trace:
        if ins.kind in ("label", "comment"): continue
        t = ins.text
        if ins.kind == "wait" and t.startswith("s_waitcnt"):
            for ctr, nm in (("vm", "vmcnt"), ("lgkm", "lgkmcnt")):
                m = re.search(nm + r"\((\d+)\)", t)
                if m:
                    N = int(m.group(1)); lst = q[ctr]
                    done = lst[:len(lst) - N] if N < len(lst) else []
                    q[ctr] = lst[len(done):]
                    for o in done:
                        for r in o.wr:
                            if pend.get(r) is o: del pend[r]
        for r in list(ins.rd) + list(ins.wr):
            if r in pend: errs.append(f"uncovered load result {r} from [{pend[r].text}] used by [{t}]")
        def dist(r): return pos - lastw[r][0] - 1
        for r in ins.rd:
            if r in lastw:
                k = lastw[r][1]; d = dist(r); need = 0
                if k == "mfma":
                    if ins.kind == "mfma":
                        if r in ins.srcc:
                            need = 0 if lastw[r][2] == tuple(ins.srcc) else 6
                        if r in ins.ab: need = 8
                    else: need = 8
                elif k in VALUK:
                    if ins.kind == "mfma": need = 2
                    elif ins.kind == "perm": need = 2
                    elif k == "trans" and ins.kind in ("valu", "perm", "store", "ds"): need = max(need, 1)
                    if r[0] == "s" or r == ("vcc", 0):
                        if ins.kind in ("vmem", "dma", "store"): need = 5
                        elif ins.kind in VALUK: need = 2
                    if "readfirstlane" in t or "readlane" in t: need = max(need, 1)
                elif k == "salu" and r == ("m0", 0) and ins.kind == "dma": need = 1
                if d < need: errs.append(f"hazard RAW {r}: [{lastw[r][3]}] -> [{t}] dist {d} < {need}")
        for r in ins.wr:
            if r in lastw and lastw[r][1] == "mfma" and ins.kind != "mfma":
                if dist(r) < 8: errs.append(f"hazard WAW {r}: [{lastw[r][3]}] -> [{t}] dist {dist(r)}")
            if r in lastw and lastw[r][1] == "mfma" and ins.kind == "mfma" and r not in ins.srcc:
                if dist(r) < 8: errs.append(f"hazard WAW(mfma) {r}: [{lastw[r][3]}] -> [{t}] dist {dist(r)}")
            if r in lastc and ins.kind in VALUK and pos - lastc[r] - 1 < 3:
                errs.append(f"hazard WAR srcC {r} -> [{t}]")
            if r in laststore and pos - laststore[r] - 1 < 2:
                errs.append(f"hazard WAR store data {r} -> [{t}]")
        if ins.kind in ("vmem", "dma", "store"):
            q["vm"].append(ins)
            if len(q["vm"]) > 63: errs.append("vmcnt overflow")
        if ins.kind == "ds": q["lgkm"].append(ins)
        if ins.kind in ("vmem", "ds"):
            for r in ins.wr: pend[r] = ins; lastw.pop(r, None)
        else:
            for r in ins.wr: lastw[r] = (pos, ins.kind, tuple(ins.wr), t)
        if ins.kind == "mfma":
            for r in ins.srcc: lastc[r] = pos
        if ins.kind == "store":
            for r in ins.rd:
                if r[0] in "va": laststore[r] = pos
        m = re.match(r"s_nop (\d+)", t)
        pos += (int(m.group(1)) + 1) if m else 1
    return errs

def fix_hazards(lst, maxit=2000):
    import re as _re
    lst = list(lst)
    nfix = 0
    while True:
        errs = check_pos(lst)
        if not errs: break
        for idx, short in sorted(errs.items(), reverse=True):
            lst.insert(idx, Ins(f"s_nop {short-1}", "salu", cost=4 * short)); nfix += 1
        maxit -= 1
        assert maxit > 0
    return lst, nfix

def check_pos(lst):
    errs = {}
    lastw = {}; lastc = {}; laststore = {}
    pos = 0
    for idx, ins in enumerate(lst):
        if ins.kind in ("label", "comment"): continue
        t = ins.text; short = 0
        for r in ins.rd:
            if r in lastw:
                k = lastw[r][1]; d = pos - lastw[r][0] - 1; need = 0
                if k == "mfma":
                    if ins.kind == "mfma":
                        if r in ins.srcc: need = 0 if lastw[r][2] == tuple(ins.srcc) else 6
                        if r in ins.ab: need = 8
                    else: need = 8
                elif k in VALUK:
                    if ins.kind == "mfma": need = 2
                    elif ins.kind == "perm": need = 2
                    elif k == "trans" and ins.kind in ("valu", "perm", "store", "ds"): need = 1
                    if r[0] == "s" or r == ("vcc", 0):
                        if ins.kind in ("vmem", "dma", "store"): need = 5
                        elif ins.kind in VALUK: need = 2
                    if "readfirstlane" in t or "readlane" in t: need = max(need, 1)
                elif k == "salu" and r == ("m0", 0) and ins.kind == "dma": need = 1
                short = max(short, need - d)
        for r in ins.wr:
            if r in lastw and lastw[r][1] == "mfma" and not (ins.kind == "mfma" and r in ins.srcc):
                short = max(short, 8 - (pos - lastw[r][0] - 1))
            if r in lastc and ins.kind in VALUK: short = max(short, 3 - (pos - lastc[r] - 1))
            if r in laststore: short = max(short, 2 - (pos - laststore[r] - 1))
        if short > 0:
            errs[idx] = short; pos += short
        if ins.kind in ("vmem", "ds"):
            for r in ins.wr: lastw.pop(r, None)
        else:
            for r in ins.wr: lastw[r] = (pos, ins.kind, tuple(ins.wr), t)
        if ins.kind == "mfma":
            for r in ins.srcc: lastc[r] = pos
        if ins.kind == "store":
            for r in ins.rd:
                if r[0] in "va": laststore[r] = pos
        m = re.match(r"s_nop (\d+)", t)
        pos += (int(m.group(1)) + 1) if m else 1
    return errs
```

```python
import sys, math, struct
from asmlib import *

class Cfg:
    nt_q = False; nt_kv = False; nt_o = False
    thr_log2 = 32
    slow = True
    stamps = False
    seam_t = 20
    abl = ''
    pk = True
    burst8 = False
    dw_gap = 1
    st_gap = 4
cfg = Cfg()
for a in sys.argv[2:]:
    k, v = a.split("="); setattr(cfg, k, eval(v))

NAME = "standalone__mha_softmax__near_ridge_kernel"
def f32(x): return struct.unpack("<I", struct.pack("<f", x))[0]
CSCALE = f32(128 ** -0.5 * math.log2(math.e))

V_KA = 2
V_VA = 6
V_DMA = 14
V_QOFF = 18; V_OOFF = 19
V_NEGM = 20
V_RINV = 24
V_T = 60
V_OT = (80, 84, 88, 92, 120, 124, 36, 40)
V_ONES = 32
V_QDMA = 48
V_QA = 52
V_OW = 56; V_OR = 57
V_QA2 = 58
V_L = 64
V_S = 96
V_P = 112
V_O = 128
A_Q = 0; A_QB = 64; A_K = 128; A_V = 192
S_Q, S_X, S_O, S_K, S_V, S_W = 16, 20, 24, 28, 32, 36
S_C, S_NC, S_THR, S_WAVE, S_LDSB, S_DOFF, S_INEXT, S_XCD = 40, 41, 42, 43, 44, 45, 46, 47
S_QNEXT, S_KVNEXT, S_QCUR, S_KVCUR, S_QPREV, S_KVPREV = 48, 49, 50, 51, 52, 53
S_BAD = 54
S_LOOP, S_RET, S_WPART, S_T0, S_T1, S_TQ, S_TO = 62, 63, 64, 65, 66, 67, 88
S_STG, S_WQ, S_STG2 = 80, 81, 82
STG = 131072
OOB = 0x40000000

def salu(t, rd=(), wr=(), **k): return Ins(t, "salu", [("s", x) if isinstance(x, int) else x for x in rd], [("s", x) if isinstance(x, int) else x for x in wr], **k)
def valu(t, rd=(), wr=(), kind="valu", **k): return Ins(t, kind, rd, wr, **k)
def V(n, c=1): return R("v", n, c)
def A(n, c=1): return R("a", n, c)
def Sg(n, c=1): return R("s", n, c)

def mfma(d, a, b, c):
    ct = "0" if c is None else rs("v", c, 4)
    t = f"v_mfma_f32_16x16x32_bf16 {rs('v', d, 4)}, {rs(a[0], a[1], 4)}, {rs(b[0], b[1], 4)}, {ct}"
    ab = R(a[0], a[1], 4) + R(b[0], b[1], 4)
    cc = [] if c is None else V(c, 4)
    return Ins(t, "mfma", ab + cc, V(d, 4), srcc=cc, ab=ab)

def QK(qb, T, g):
    out = []
    for kk in range(4):
        for t in range(2):
            d = V_S + 8 * (g % 2) + 4 * t
            out.append(mfma(d, ("a", A_K + 32 * (T % 2) + 16 * t + 4 * kk), ("a", A_Q + 64 * qb + 16 * g + 4 * kk), None if kk == 0 else d))
    return out
def PV(T, g, first):
    out = []
    p = ("v", V_P + 4 * (g % 2))
    for dt in range(8):
        d = V_O + 32 * g + 4 * dt
        out.append(mfma(d, ("a", A_V + 32 * (T % 2) + 4 * dt), p, None if first else d))
    d = V_L + 4 * g
    out.append(mfma(d, ("v", V_ONES), p, None if first else d))
    return out

def SM(g, first, cvt_min):
    s = V_S + 8 * (g % 2); p = V_P + 4 * (g % 2); nm = V_NEGM + g
    o = []
    if first:
        t0, t1 = V_T + 2 * (g % 2), V_T + 2 * (g % 2) + 1
        o.append(valu(f"v_max3_f32 v{t0}, v{s}, v{s+1}, v{s+2}", V(s, 3), V(t0)))
        o.append(valu(f"v_max3_f32 v{t1}, v{s+3}, v{s+4}, v{s+5}", V(s + 3, 3), V(t1)))
        o.append(valu(f"v_max3_f32 v{t0}, v{s+6}, v{s+7}, v{t0}", V(s + 6, 2) + V(t0), V(t0)))
        o.append(valu(f"v_max_f32 v{t0}, v{t0}, v{t1}", V(t0) + V(t1), V(t0)))
        o.append(valu(f"v_mov_b32 v{t1}, v{t0}", V(t0), V(t1)))
        o.append(valu(f"s_nop 1\n  v_permlane32_swap_b32 v{t1}, v{t0}", (), V(t0) + V(t1), cost=12))
        o.append(valu(f"v_max_f32 v{t0}, v{t0}, v{t1}", V(t0) + V(t1), V(t0)))
        o.append(valu(f"v_mov_b32 v{t1}, v{t0}", V(t0), V(t1)))
        o.append(valu(f"s_nop 1\n  v_permlane16_swap_b32 v{t1}, v{t0}", (), V(t0) + V(t1), cost=12))
        o.append(valu(f"v_max_f32 v{t0}, v{t0}, v{t1}", V(t0) + V(t1), V(t0)))
        o.append(valu(f"v_mul_f32 v{nm}, s{S_NC}, v{t0}", V(t0) + Sg(S_NC), V(nm)))
    def fma(r): return valu(f"v_fma_f32 v{s+r}, v{s+r}, s{S_C}, v{nm}", V(s + r) + V(nm) + Sg(S_C), V(s + r))
    def ex(r): return valu(f"v_exp_f32 v{s+r}, v{s+r}", V(s + r), V(s + r), kind="trans")
    def cvt(h): return valu(f"v_cvt_pk_bf16_f32 v{p+h}, v{s+2*h}, v{s+2*h+1}", V(s + 2 * h, 2), V(p + h), minpos=cvt_min, nogap=True)
    o += [fma(0), fma(1), ex(0), ex(1), fma(2), fma(3), ex(2), ex(3), cvt(0), fma(4), ex(4), cvt(1), fma(5), ex(5),
          fma(6), fma(7), ex(6), ex(7), cvt(2), cvt(3)]
    o[-1].nogap = False
    return o

def KREADS(T, tagp):
    o = []
    for kk in range(4):
        for t in range(2):
            d = A_K + 32 * (T % 2) + 16 * t + 4 * kk
            o.append(Ins(f"ds_read_b128 {rs('a', d, 4)}, v{V_KA+kk} offset:{(T % 8) * 8192 + t * 4096}", "ds", V(V_KA + kk), A(d, 4), tag=f"K{tagp}"))
    return o
def VREADS(T, tagp):
    o = []
    for dt in range(8):
        for h in range(2):
            d = A_V + 32 * (T % 2) + 4 * dt + 2 * h
            o.append(Ins(f"ds_read_b64_tr_b16 {rs('a', d, 2)}, v{V_VA+dt} offset:{(T % 8) * 8192 + h * 4096}", "ds", V(V_VA + dt), A(d, 2), tag=f"V{tagp}"))
    return o
def DMA(TT, how, tagp):
    o = []
    if how == "inc": o.append(salu(f"s_add_u32 s{S_DOFF}, s{S_DOFF}, 8192", [S_DOFF], [S_DOFF]))
    else: o.append(salu(f"s_add_u32 s{S_DOFF}, s{S_KVNEXT}, s{S_WPART}", [S_KVNEXT, S_WPART], [S_DOFF]))
    o.append(salu(f"s_add_u32 m0, s{S_LDSB}, {(TT % 8) * 8192}", [S_LDSB], [("m0", 0)]))
    nt = " nt" if cfg.nt_kv else ""
    for p in range(4):
        o.append(Ins(f"buffer_load_dwordx4 v{V_DMA+p}, {rs('s', S_X, 4)}, s{S_DOFF} offen offset:{1024*p}{nt} lds", "dma",
                     V(V_DMA + p) + Sg(S_X, 4) + Sg(S_DOFF) + [("m0", 0)], [], tag=f"D{tagp}", nogap=(p == 0), cost=(14 if p == 0 else 9)))
    return o
def QDMA(n, stg=S_STG):
    g_, c2 = n // 4, (n // 2) % 2
    o = []
    if n == 0: o.append(salu(f"s_add_u32 s{S_TQ}, s{S_QNEXT}, s{S_WQ}", [S_QNEXT, S_WQ], [S_TQ]))
    elif c2 == 0: o.append(salu(f"s_add_u32 s{S_TQ}, s{S_TQ}, 4096", [S_TQ], [S_TQ]))
    o.append(salu(f"s_add_u32 m0, s{stg}, {1024*(n%8) - 128*c2}", [stg], [("m0", 0)]))
    nt = " nt" if cfg.nt_q else ""
    for h in range(2):
        o.append(Ins(f"buffer_load_dwordx4 v{V_QDMA+h}, {rs('s', S_Q, 4)}, s{S_TQ} offen offset:{1024*h+128*c2}{nt} lds", "dma",
                     V(V_QDMA + h) + Sg(S_Q, 4) + Sg(S_TQ) + [("m0", 0)], [], tag=f"QD{n//2}", nogap=(h == 0), cost=(14 if h == 0 else 9)))
    return o
def QREAD(qb, n, va=V_QA, inbody=False):
    g_, c2 = n // 4, (n // 2) % 2
    o = [wait(("vm", [f"QD{n//2}"]), key=(f"wQD{qb}_{n}" if inbody else None))]
    for k2 in range(2):
        d = A_Q + 64 * qb + 16 * g_ + 4 * (2 * c2 + k2)
        o.append(Ins(f"ds_read_b128 {rs('a', d, 4)}, v{va+k2} offset:{1024*(n%8)}", "ds", V(va + k2), A(d, 4), tag=f"Q{qb}{g_}"))
    return o
def EPI(g, sq, site=None):
    l = V_L + 4 * g; r = V_RINV + 2 * g; to = S_TO + g
    o = [valu(f"v_rcp_f32 v{r}, v{l}", V(l), V(r), kind="trans"),
         valu(f"v_cmp_ngt_f32 {rs('s', S_BAD+2*g, 2)}, s{S_THR}, v{l}", V(l) + Sg(S_THR), Sg(S_BAD + 2 * g, 2)),
         salu(f"s_add_u32 s{to}, s{sq}, {4096*g}", [sq], [to])]
    nt = " nt" if cfg.nt_o else ""
    a0 = V_O + 32 * g
    if cfg.pk:
        M = [valu(f"v_pk_mul_f32 v[{a0+e}:{a0+e+1}], v[{a0+e}:{a0+e+1}], v[{r}:{r+1}] op_sel_hi:[1,0]", V(a0 + e, 2) + V(r), V(a0 + e, 2)) for e in range(0, 32, 2)]
        M[0].cost = 16; M[0].late = True
        for x in M[1:]: x.glue = True; x.late = True
    else:
        M = [valu(f"v_mul_f32 v{a0+e}, v{a0+e}, v{r}", V(a0 + e) + V(r), V(a0 + e)) for e in range(32)]
    C = [valu(f"v_cvt_pk_bf16_f32 v{a0+h}, v{a0+2*h}, v{a0+2*h+1}", V(a0 + 2 * h, 2), V(a0 + h)) for h in range(16)]
    W = [Ins(f"ds_write_b64 v{V_OW}, {rs('v', a0 + 2 * h, 2)} offset:{32*h}", "ds", V(V_OW) + V(a0 + 2 * h, 2), [], tag="OW", cost=12) for h in range(8)]
    for x in W: x.delay = cfg.dw_gap
    ot = V_OT[4 * (g % 2):4 * (g % 2) + 4]
    RD = [Ins(f"ds_read_b128 {rs('v', ot[p], 4)}, v{V_OR} offset:{1088*p}", "ds", V(V_OR), V(ot[p], 4), tag=f"OR{g}") for p in range(4)]
    ST = [Ins(f"buffer_store_dwordx4 {rs('v', ot[p], 4)}, v{V_OOFF}, {rs('s', S_O, 4)}, s{to} offen offset:{1024*p}{nt}", "store",
              V(ot[p], 4) + V(V_OOFF) + Sg(S_O, 4) + Sg(to), [], tag="ST", cost=16) for p in range(4)]
    for x in ST[1:]:
        if cfg.st_gap: x.delay = cfg.st_gap
        else: x.glue = True
    wt = wait(("lgkm", [f"OR{g}"])); wt.delay = 6
    ev = o + M + C; em = W + RD; es = [wt] + ST
    o = es
    if site is not None:
        b = S_BAD
        o.append(salu(f"s_or_b64 s[{b}:{b+1}], s[{b}:{b+1}], s[{b+2}:{b+3}]", Sg(b, 4), Sg(b, 2)))
        o.append(salu(f"s_or_b64 s[{b+4}:{b+5}], s[{b+4}:{b+5}], s[{b+6}:{b+7}]", Sg(b + 4, 4), Sg(b + 4, 2)))
        o.append(salu(f"s_or_b64 s[{b}:{b+1}], s[{b}:{b+1}], s[{b+4}:{b+5}]\n  s_cbranch_scc1 L_slow{site}\nL_ret{site}:", Sg(b, 2) + Sg(b + 4, 2), Sg(b, 2), cost=8))
    return ev, em, es

def next_block_calc(pre_inc):
    o = []
    if pre_inc: o.append(salu(f"s_add_u32 s{S_INEXT}, s{S_INEXT}, 32", [S_INEXT], [S_INEXT]))
    o += [salu(f"s_mul_i32 s{S_T0}, s{S_INEXT}, 43691", [S_INEXT], [S_T0]),
          salu(f"s_lshr_b32 s{S_T0}, s{S_T0}, 17", [S_T0], [S_T0]),
          salu(f"s_lshl_b32 s{S_T1}, s{S_XCD}, 6", [S_XCD], [S_T1]),
          salu(f"s_add_u32 s{S_T0}, s{S_T0}, s{S_T1}", [S_T0, S_T1], [S_T0]),
          salu(f"s_lshl_b32 s{S_KVNEXT}, s{S_T0}, 17", [S_T0], [S_KVNEXT]),
          salu(f"s_mul_i32 s{S_T1}, s{S_XCD}, 192", [S_XCD], [S_T1]),
          salu(f"s_add_u32 s{S_T1}, s{S_T1}, s{S_INEXT}", [S_T1, S_INEXT], [S_T1]),
          salu(f"s_lshl_b32 s{S_QNEXT}, s{S_T1}, 16", [S_T1], [S_QNEXT]),
          salu(f"s_cmp_lt_u32 s{S_INEXT}, 192\n  s_cselect_b32 s{S_KVNEXT}, s{S_KVNEXT}, {OOB}\n  s_cselect_b32 s{S_QNEXT}, s{S_QNEXT}, {OOB}",
               [S_INEXT, S_KVNEXT, S_QNEXT], [S_KVNEXT, S_QNEXT], cost=12)]
    return o
def rotate():
    return [salu(f"s_mov_b32 s{S_QPREV}, s{S_QCUR}", [S_QCUR], [S_QPREV]), salu(f"s_mov_b32 s{S_KVPREV}, s{S_KVCUR}", [S_KVCUR], [S_KVPREV]),
            salu(f"s_mov_b32 s{S_QCUR}, s{S_QNEXT}", [S_QNEXT], [S_QCUR]), salu(f"s_mov_b32 s{S_KVCUR}, s{S_KVNEXT}", [S_KVNEXT], [S_KVCUR])]

DEAD = set()
def wait(*need, key=None):
    w = Ins("s_waitcnt ?", "wait", need=list(need)); w.tag = key
    if key is not None and key in DEAD: w.cost = 0; w.kind = "comment"; w.text = ""; w.need = None
    return w
def barrier(): return Ins("s_barrier", "barrier", cost=4)

G = 17
NVE = 51
def setmin(ops, m):
    for o in ops: o.minpos = max(o.minpos, m)
    return ops
def QCOPY(g_):
    return [valu(f"v_accvgpr_mov_b32 a{A_Q+16*g_+r}, a{A_QB+16*g_+r}", A(A_QB + 16 * g_ + r), A(A_Q + 16 * g_ + r)) for r in range(16)]
def build_body():
    bb = []; pre = {}; st = []
    NG = 64
    for n in range(NG):
        T, g = divmod(n, 4)
        n1 = (n + 1) % NG; T1, g1 = divmod(n1, 4)
        n0 = (n - 1) % NG; T0, g0 = divmod(n0, 4)
        base = G * n
        p = pre.setdefault(base, [])
        if n == 0: p += rotate()
        if g == 0 and T % 2 == 0:
            if cfg.stamps: p.append(salu("s_memtime s[70:71]\n  s_memrealtime s[92:93]\n  v_mov_b32 v47, s72"))
            p += [wait(("vm", [f"D{(T+1)%16}", f"D{(T+2)%16}"]), ("lgkm", "all")), barrier()]
            if cfg.stamps:
                p.append(valu("s_memtime s[72:73]\n  v_mov_b32 v46, s70\n  v_cmp_eq_u32 vcc, s74, v0\n  s_add_u32 s74, s74, 1\n  s_nop 0\n  v_cndmask_b32 v44, v44, v46, vcc\n  v_cndmask_b32 v45, v45, v47, vcc\n  v_mov_b32 v46, s92\n  v_cndmask_b32 v50, v50, v46, vcc", [], V(44, 2)))
        if g1 == 0: p.append(wait(("lgkm", [f"K{T1}"]), key=f"wK{T1}"))
        if T1 == 0 and g1 >= 2: p.append(wait(("lgkm", [f"Q0{g1}"]), key=f"wQ{T1}{g1}"))
        bb += QK(0, T1, g1)
        if g0 == 0: pre.setdefault(base + 8, []).append(wait(("lgkm", [f"V{T0}"]), key=f"wV{T0}"))
        bb += PV(T0, g0, T0 == 0)
        rel = max(0, base - G + 12)
        st.append(Stream(f"SM{n}", SM(g, T == 0, base - 1), rel, base + G - 1))
        if g == 0:
            Tn = (T + 1) % 16; t = T
            for k, op in enumerate(KREADS(Tn, Tn)): st.append(Stream(f"K{Tn}_{k}", [op], base + 5 * k, base + 5 * k + 7))
            for k, op in enumerate(VREADS(Tn, Tn)): st.append(Stream(f"V{Tn}_{k}", [op], base + G - 1 + (5 * k) // 2, base + G - 1 + (5 * k) // 2 + 6))
            TT = (T + 7) % 16
            d = DMA(TT, "next" if t == 9 else "inc", TT)
            for x in d[3:]: x.glue = True
            d[2].minpos = base + 3; d[2].maxpos = base + (G if t else 3 * G)
            if 2 <= t <= 9:
                qd = QDMA(2 * (t - 2)); qd[-1].glue = True
                setmin(qd[-2:], base + 3 * G + 1)
                d += qd
            st.append(Stream(f"D{TT}", d, base, base + 4 * G - 1))
            if t == 0: st.append(Stream(f"NB{T}", next_block_calc(True), base, base + 3 * G))
            if 6 <= t <= 9: st.append(Stream(f"QR{T}", QREAD(1, 2 * (t - 6), inbody=True), base + G, base + 3 * G - 2))
            if t == 15:
                st.append(Stream("QC0", QCOPY(0), base - G + 8, base + 3 * G - 3))
                st.append(Stream("QC1", QCOPY(1), base + 8, base + 4 * G - 1))
                st.append(Stream("QR2", QREAD(0, 8, inbody=True) + QREAD(0, 10, inbody=True), base + G + 8, base + 2 * G + 7))
                st.append(Stream("QR3", QREAD(0, 12, inbody=True) + QREAD(0, 14, inbody=True), base + 2 * G + 8, base + 3 * G + 1, prio=30))
        if T == 15 and g == 1:
            e0 = EPI(0, S_QCUR); e1 = EPI(1, S_QCUR)
            st.append(Stream("E_v0", e0[0], base + G + 5, base + 2 * G + 1))
            st.append(Stream("E_m0", e0[1], base + 2 * G + 2, base + 3 * G - 1, prio=30))
            st.append(Stream("E_v1", e1[0], base + 2 * G + 5, base + 3 * G - 1))
        if n == 0:
            e0 = EPI(0, S_QCUR); e1 = EPI(1, S_QCUR); e2 = EPI(2, S_QPREV); e3 = EPI(3, S_QPREV, site=0)
            st.append(Stream("E_v2", e2[0], base + 4, base + G + 8))
            st.append(Stream("E_v3", e3[0], base + G + 9, base + 2 * G + 14))
            e1[1][-1].maxpos = base + G + 8; e2[1][-1].maxpos = base + 3 * G + 5
            if cfg.burst8:
                e1[2][1].glue = True; e3[2][1].glue = True
                c1 = [e1[2][0]] + e0[2][1:] + e1[2][1:]
                c2 = [e3[2][0]] + e2[2][1:] + e3[2][1:]
                chain = e1[1] + c1 + setmin(e2[1], base + G + 9) + setmin(e3[1], base + 2 * G + 15)
                chain[-1].maxpos = base + 4 * G + 5
                c2[1].maxpos = base + 4 * G + 14
                chain += c2
            else:
                chain = e1[1] + e0[2] + setmin(e2[1], base + G + 9) + e1[2] + setmin(e3[1], base + 2 * G + 15)
                chain[-1].maxpos = base + 4 * G + 5
                sg = max(cfg.st_gap, 2)
                for k, x in enumerate(e2[2][:5] + e3[2][:5]): x.maxpos = base + 4 * G + 12 + sg * k
                chain += e2[2] + e3[2]
            st.append(Stream("E_m", chain, base, base + 4 * G + 14 + max(cfg.st_gap, 2) * 10, prio=10))
    def tfn(i):
        n = i // G; T = (n // 4) % 16
        if T == 15 and i % (4 * G) >= 2 * G + 4: return cfg.seam_t
        if T == 0: return cfg.seam_t
        return 8
    return schedule(bb, st, pre, tfn)

def build_drain():
    bb = PV(15, 3, False)
    pre = {0: rotate()}
    e0 = EPI(0, S_QCUR); e1 = EPI(1, S_QCUR); e2 = EPI(2, S_QPREV); e3 = EPI(3, S_QPREV, site=1)
    seq = e0[2] + e1[1] + setmin(e2[0], 3) + e1[2] + e2[1] + setmin(e3[0], 8) + e2[2] + e3[1] + e3[2]
    for x in seq: x.delay = 0
    st = [Stream("E", seq, 0, 8)]
    out, stats = schedule(bb, st, pre, lambda i: 24)
    return out

def build_init():
    o = []
    def s(t, rd=(), wr=()): o.append(salu(t, rd, wr))
    def v(t, rd=(), wr=()): o.append(valu(t, rd, wr))
    s("s_cmp_ge_u32 s2, 256\n  s_cbranch_scc1 L_end")
    s("s_load_dwordx8 s[4:11], s[0:1], 0", [], list(range(4, 12)))
    s("s_load_dwordx4 s[12:15], s[0:1], 32", [], list(range(12, 16)))
    v("v_lshrrev_b32 v1, 6, v0", V(0), V(1))
    v("v_and_b32 v0, 63, v0", V(0), V(0))
    v(f"v_readfirstlane_b32 s{S_WAVE}, v1", V(1), Sg(S_WAVE))
    v("v_and_b32 v36, 15, v0", V(0), V(36)); v("v_lshrrev_b32 v37, 4, v0", V(0), V(37)); v("v_lshrrev_b32 v38, 2, v0", V(0), V(38))
    for kk in range(4):
        v(f"v_or_b32 v39, {4*kk}, v37", V(37), V(39)); v("v_xor_b32 v39, v39, v36", V(39) + V(36), V(39))
        v("v_lshlrev_b32 v39, 4, v39", V(39), V(39)); v(f"v_lshl_add_u32 v{V_KA+kk}, v36, 8, v39", V(36) + V(39), V(V_KA + kk))
    v("v_and_b32 v40, 7, v38", V(38), V(40)); v("v_and_b32 v41, 3, v0", V(0), V(41)); v("v_lshlrev_b32 v41, 3, v41", V(41), V(41))
    v("v_lshl_add_u32 v41, v38, 8, v41", V(38) + V(41), V(41)); v("v_add_u32 v41, 0x10000, v41", V(41), V(41))
    for dt in range(8):
        v(f"v_xor_b32 v39, {dt}, v40", V(40), V(39)); v(f"v_lshl_add_u32 v{V_VA+dt}, v39, 5, v41", V(39) + V(41), V(V_VA + dt))
    s(f"s_lshr_b32 s{S_T0}, s{S_WAVE}, 1", [S_WAVE], [S_T0])
    s(f"s_and_b32 s{S_T1}, s{S_WAVE}, 1", [S_WAVE], [S_T1])
    s(f"s_lshl_b32 s{S_WPART}, s{S_T1}, 12", [S_T1], [S_WPART])
    s(f"s_lshl_b32 s{S_LDSB}, s{S_T0}, 16", [S_T0], [S_LDSB])
    s(f"s_add_u32 s{S_LDSB}, s{S_LDSB}, s{S_WPART}", [S_LDSB, S_WPART], [S_LDSB])
    s(f"s_lshr_b32 s{S_TQ}, 15, s{S_T0}", [S_T0], [S_TQ])
    for p in range(4):
        v(f"v_add_u32 v39, {4*p}, v37", V(37), V(39)); v(f"v_and_b32 v39, s{S_TQ}, v39", V(39) + Sg(S_TQ), V(39))
        v(f"v_lshlrev_b32 v39, s{S_T0}, v39", V(39) + Sg(S_T0), V(39)); v("v_xor_b32 v39, v39, v36", V(39) + V(36), V(39))
        v("v_lshlrev_b32 v39, 4, v39", V(39), V(39)); v(f"v_lshl_add_u32 v{V_DMA+p}, v37, 8, v39", V(37) + V(39), V(V_DMA + p))
    v("v_lshrrev_b32 v39, 3, v0", V(0), V(39)); v("v_and_b32 v40, 6, v39", V(39), V(40)); v("v_and_b32 v41, 7, v0", V(0), V(41))
    v("v_xor_b32 v40, v40, v41", V(40) + V(41), V(40)); v("v_lshlrev_b32 v40, 4, v40", V(40), V(40))
    v(f"v_lshl_add_u32 v{V_QDMA}, v39, 8, v40", V(39) + V(40), V(V_QDMA)); v(f"v_add_u32 v{V_QDMA+1}, 1024, v{V_QDMA}", V(V_QDMA), V(V_QDMA + 1))
    s(f"s_lshl_b32 s{S_WQ}, s{S_WAVE}, 14", [S_WAVE], [S_WQ])
    s(f"s_lshl_b32 s{S_STG}, s{S_WAVE}, 13", [S_WAVE], [S_STG]); s(f"s_add_u32 s{S_STG}, s{S_STG}, {STG}", [S_STG], [S_STG])
    s(f"s_lshl_b32 s{S_STG2}, s{S_T0}, 16", [S_T0], [S_STG2]); s(f"s_lshl_b32 s{S_T1}, s{S_WPART}, 1", [S_WPART], [S_T1])
    s(f"s_add_u32 s{S_STG2}, s{S_STG2}, s{S_T1}", [S_STG2, S_T1], [S_STG2]); s(f"s_add_u32 s{S_STG2}, s{S_STG2}, {6*8192}", [S_STG2], [S_STG2])
    v("v_and_b32 v40, 6, v36", V(36), V(40)); v("v_and_b32 v41, 7, v36", V(36), V(41)); v("v_lshrrev_b32 v42, 3, v36", V(36), V(42))
    v("v_lshlrev_b32 v41, 7, v41", V(41), V(41)); v("v_lshl_add_u32 v41, v42, 10, v41", V(42) + V(41), V(41))
    for k2 in range(2):
        v(f"v_or_b32 v39, {4*k2}, v37", V(37), V(39)); v("v_xor_b32 v39, v39, v40", V(39) + V(40), V(39))
        v("v_lshl_add_u32 v39, v39, 4, v41", V(39) + V(41), V(39))
        v(f"v_add_u32 v{V_QA+k2}, s{S_STG}, v39", V(39) + Sg(S_STG), V(V_QA + k2))
        v(f"v_add_u32 v{V_QA2+k2}, s{S_STG2}, v39", V(39) + Sg(S_STG2), V(V_QA2 + k2))
    v(f"v_lshlrev_b32 v39, 4, v0", V(0), V(39)); v(f"v_add_u32 v{V_OOFF}, s{S_WQ}, v39", V(39) + Sg(S_WQ), V(V_OOFF))
    v("v_mul_u32_u24 v39, 272, v36", V(36), V(39)); v("v_lshl_add_u32 v39, v37, 3, v39", V(37) + V(39), V(39))
    v(f"v_add_u32 v{V_OW}, s{S_STG}, v39", V(39) + Sg(S_STG), V(V_OW))
    v("v_mul_u32_u24 v39, 272, v37", V(37), V(39)); v("v_lshl_add_u32 v39, v36, 4, v39", V(36) + V(39), V(39))
    v(f"v_add_u32 v{V_OR}, s{S_STG}, v39", V(39) + Sg(S_STG), V(V_OR))
    v("v_and_b32 v39, 3, v0", V(0), V(39)); v("v_cmp_eq_u32 vcc, 0, v39", V(39), [("vcc", 0)]); v("v_mov_b32 v40, 0x3f803f80", [], V(40))
    v("v_mov_b32 v39, 0", [], V(39))
    for e in range(4): v(f"v_cndmask_b32 v{V_ONES+e}, v39, v40, vcc", V(39) + V(40) + [("vcc", 0)], V(V_ONES + e))
    for r in list(range(V_L, V_L + 16)) + list(range(V_P, V_P + 8)): v(f"v_mov_b32 v{r}, 0", [], V(r))
    s(f"s_mov_b32 s{S_C}, 0x{CSCALE:08x}", [], [S_C]); s(f"s_mov_b32 s{S_NC}, 0x{CSCALE | 0x80000000:08x}", [], [S_NC])
    s(f"s_mov_b32 s{S_THR}, 0x{f32(2.0 ** cfg.thr_log2):08x}", [], [S_THR])
    for r in range(S_BAD, S_BAD + 8): s(f"s_mov_b32 s{r}, 0", [], [r])
    s(f"s_and_b32 s{S_XCD}, s2, 7", [], [S_XCD]); s(f"s_lshr_b32 s{S_INEXT}, s2, 3", [], [S_INEXT])
    s(f"s_mov_b32 s{S_QCUR}, {OOB}", [], [S_QCUR]); s(f"s_mov_b32 s{S_KVCUR}, {OOB}", [], [S_KVCUR])
    s(f"s_mov_b32 s{S_LOOP}, 5", [], [S_LOOP])
    if cfg.stamps:
        s("s_mov_b32 s74, 1\n  s_memtime s[72:73]\n  s_memrealtime s[76:77]\n v_mov_b32 v44, 0\n v_mov_b32 v45, 0\n v_mov_b32 v50, 0")
    o += next_block_calc(False)
    s("s_waitcnt lgkmcnt(0)")
    for srd, ptr, size in ((S_Q, 4, 0x6000000), (S_O, 10, 0x6000000), (S_K, 6, 0x4000000), (S_V, 8, 0x4000000), (S_W, 14, 402653184)):
        s(f"s_mov_b32 s{srd}, s{ptr}", [ptr], [srd]); s(f"s_mov_b32 s{srd+1}, s{ptr+1}", [ptr + 1], [srd + 1])
        s(f"s_mov_b32 s{srd+2}, {size}", [], [srd + 2]); s(f"s_mov_b32 s{srd+3}, 0x00020000", [], [srd + 3])
    s(f"s_cmp_ge_u32 s{S_WAVE}, 2\n  s_cselect_b32 s{S_X}, s8, s6\n  s_cselect_b32 s{S_X+1}, s9, s7", [S_WAVE, 6, 7, 8, 9], [S_X, S_X + 1])
    s(f"s_mov_b32 s{S_X+2}, 0x4000000", [], [S_X + 2]); s(f"s_mov_b32 s{S_X+3}, 0x00020000", [], [S_X + 3])
    def dma(TT, how):
        d = DMA(TT, how, TT); return d[:2] + [salu("s_nop 0")] + d[2:]
    def qdma(g_):
        r = []
        for n in (4 * g_, 4 * g_ + 2):
            d = QDMA(n, S_STG if g_ < 2 else S_STG2); r += d[:-2] + [salu("s_nop 0")] + d[-2:]
        return r
    def qread(g_): return QREAD(0, 4 * g_, V_QA if g_ < 2 else V_QA2) + QREAD(0, 4 * g_ + 2, V_QA if g_ < 2 else V_QA2)
    o += dma(0, "first") + qdma(0) + qdma(1) + dma(1, "inc") + qdma(2) + qdma(3)
    for TT in range(2, 6): o += dma(TT, "inc")
    o += [wait(("vm", ["D0"])), barrier()]
    o += KREADS(0, 0) + qread(0) + VREADS(0, 0)
    o += [wait(("lgkm", ["K0", "Q00"]))]
    o += QK(0, 0, 0)
    o += qread(1) + qread(2) + qread(3)
    o += [wait(("lgkm", "all")), barrier()]
    o += dma(6, "inc")
    return o

def slow_stub():
    t = []
    for site in range(2):
        t.append(f"L_slow{site}:\n  s_branch L_ret{site}")
    return "\n".join(t)

def main():
    tail = [salu(f"s_sub_u32 s{S_LOOP}, s{S_LOOP}, 1\n  s_cbranch_scc0 L_loop", [S_LOOP], [S_LOOP], cost=8)]
    for it in range(3):
        init = build_init()
        body, stats = build_body()
        drain = build_drain()
        trace = init + (body + tail) * 6 + drain
        best = resolve_waits(trace)
        for l in (init, body, drain): apply_waits(l, best)
        dead = lambda x: (x.kind == "wait" and x.need is not None and x.text == "s_nop 0") or x.kind == "comment"
        nd = {x.tag for x in body if x.kind == "wait" and dead(x) and x.tag}
        if nd <= DEAD: break
        DEAD.update(nd)
    init = [x for x in init if not dead(x)]; body = [x for x in body if not dead(x)]; drain = [x for x in drain if not dead(x)]
    if cfg.abl:
        def drop(x):
            t = x.text
            return (('exp' in cfg.abl and t.startswith('v_exp')) or ('fma' in cfg.abl and t.startswith('v_fma')) or
                    ('ds' in cfg.abl and t.startswith('ds_read') and ' a[' in t) or ('dma' in cfg.abl and x.kind == 'dma') or
                    ('bar' in cfg.abl and x.kind == 'barrier') or ('cvt' in cfg.abl and t.startswith('v_cvt') and int(t.split()[1][1:-1]) < 128) or
                    ('st' in cfg.abl.split(',') and x.kind == 'store') or ('dw' in cfg.abl and t.startswith('ds_write')) or ('rd' in cfg.abl and t.startswith('ds_read_b128 v')) or ('pk' in cfg.abl and t.startswith('v_pk_mul')) or ('perm' in cfg.abl and 'permlane' in t) or ('wt' in cfg.abl and x.kind == 'wait' and x.need and x.need[0][1] in (['OR0'], ['OR1'], ['OR2'], ['OR3'])) or ('ones' in cfg.abl and x.kind == 'mfma' and 'v[32:35]' in t) or
                    ('epi' in cfg.abl and (t.startswith('v_mul_f32 v1') or t.startswith('v_mul_f32 v2') or t.startswith('ds_write') or t.startswith('ds_read_b128 v') or (t.startswith('v_cvt') and int(t.split()[1][1:-1]) >= 128))))
        body = [x for x in body if not drop(x)]
    init, n1 = fix_hazards(init); body, n2 = fix_hazards(body); drain, n3 = fix_hazards(drain)
    print("nops inserted", n1, n2, n3, file=sys.stderr)
    trace = init + (body + tail) * 6 + drain
    errs = check(trace)
    seen = set()
    for e in errs:
        if e not in seen: print("ERR", e, file=sys.stderr); seen.add(e)
    tot = sum(x.cost for x in body)
    under = sum(1 for f in stats[1:] if f < 8)
    est = sum(8 + max(8, f) for f in stats[1:])
    seg = [sum(8 + max(8, f) for f in stats[1 + 136 * k:1 + 136 * (k + 1)]) for k in range(8)]
    print("est per 2 tiles", seg, file=sys.stderr)
    print(f"body instrs {len(body)} issue-cycles {tot} est cycles {est} underfilled gaps {under}", file=sys.stderr)
    hdr = open("header.txt").read()
    lines = [hdr, '.amdgcn_target "amdgcn-amd-amdhsa--gfx950"', ".text", f".globl {NAME}", ".p2align 8", f".type {NAME},@function", f"{NAME}:"]
    lines += ["  " + x.text for x in init]
    lines += [".p2align 3", "L_loop:"] + ["  " + x.text for x in body + tail]
    lines += ["  " + x.text for x in drain]
    if cfg.stamps:
        lines += ["""  s_waitcnt vmcnt(0) lgkmcnt(0)
  s_memtime s[70:71]
  s_memrealtime s[78:79]
  s_waitcnt lgkmcnt(0)
  v_writelane_b32 v44, s70, 49
  v_writelane_b32 v45, s72, 49
  s_sub_u32 s78, s78, s76
  v_writelane_b32 v44, s78, 0
  v_writelane_b32 v45, s76, 0
  s_lshl_b32 s75, s2, 2
  s_add_u32 s75, s75, s%d
  s_lshl_b32 s75, s75, 9
  v_lshlrev_b32 v46, 3, v0
  buffer_store_dwordx2 v[44:45], v46, s[%d:%d], s75 offen
  s_add_u32 s94, s75, 0x100000
  v_lshlrev_b32 v46, 2, v0
  buffer_store_dword v50, v46, s[36:39], s94 offen
  s_cmp_lg_u32 s75, 0
  s_cbranch_scc1 L_end
  s_mov_b32 s84, s12
  s_mov_b32 s85, s13
  s_mov_b32 s86, 256
  s_mov_b32 s87, 0x00020000
  v_readlane_b32 s75, v45, 1
  v_add_u32 v46, 2, v0
  v_mul_u32_u24 v47, 43691, v46
  v_lshrrev_b32 v47, 17, v47
  v_mul_u32_u24 v48, 3, v47
  v_sub_u32 v48, v46, v48
  v_subrev_u32 v47, 1, v47
  v_subrev_u32 v49, s75, v44
  v_cmp_eq_u32 vcc, 0, v48
  v_mov_b32 v50, 1000
  v_cndmask_b32 v47, v50, v47, vcc
  v_cmp_lt_u32 vcc, 40, v0
  s_nop 1
  v_cndmask_b32 v47, v47, v50, vcc
  v_writelane_b32 v47, 14, 0
  v_writelane_b32 v47, 15, 49
  v_readlane_b32 s75, v44, 0
  s_nop 3
  v_writelane_b32 v49, s75, 0
  v_lshlrev_b32 v47, 2, v47
  buffer_store_dword v49, v47, s[84:87], 0 offen""" % (S_WAVE, S_W, S_W + 3)]
    lines += ["L_end:", "  s_endpgm"]
    if cfg.slow:
        import slow
        lines.append(slow.emit(globals()))
    else: lines.append(slow_stub())
    lines += ['.section .rodata,"a"', ".p2align 6", f".amdhsa_kernel {NAME}", "  .amdhsa_next_free_vgpr 512", "  .amdhsa_next_free_sgpr 102",
              "  .amdhsa_accum_offset 256", "  .amdhsa_group_segment_fixed_size 0", "  .amdhsa_kernarg_size 48", "  .amdhsa_user_sgpr_count 2",
              "  .amdhsa_user_sgpr_kernarg_segment_ptr 1", "  .amdhsa_system_sgpr_workgroup_id_x 1", ".end_amdhsa_kernel"]
    open(sys.argv[1], "w").write("\n".join(lines) + "\n")
    if errs and not cfg.abl: sys.exit(1)
main()
```

```python
def emit(G):
    g = lambda k: G[k]
    S_Q, S_K, S_V, S_O, S_W = g("S_Q"), g("S_K"), g("S_V"), g("S_O"), g("S_W")
    S_C, S_STG, S_WQ, S_QPREV, S_KVPREV = g("S_C"), g("S_STG"), g("S_WQ"), g("S_QPREV"), g("S_KVPREV")
    V_OOFF, V_VA = g("V_OOFF"), g("V_VA")
    srd = lambda b: f"s[{b}:{b+3}]"
    L = []
    a = L.append
    a("; ---------------------------------------------------------------------------------------------")
    a("L_slow0:\n  s_mov_b32 s10, 0\n  s_branch L_slow")
    a("L_slow1:\n  s_mov_b32 s10, 1")
    a("L_slow:")
    a("  s_waitcnt vmcnt(0) lgkmcnt(0)")
    a("  s_mov_b32 s8, m0")
    for k in range(4): a(f"  s_mov_b32 s{g('S_TO')+k}, {g('OOB')}")
    a("  s_mul_i32 s9, s2, 196608")
    def saverestore(op):
        for i in range(40):
            if i % 4 == 0: a(f"  s_add_u32 s11, s9, {(i // 16) * 65536 + ((i % 16) // 4) * 4096}")
            r = 96 + 4 * i
            a(f"  buffer_{op}_dwordx4 v[{r}:{r+3}], v{V_OOFF}, {srd(S_W)}, s11 offen offset:{(i % 4) * 1024}")
        a("  s_waitcnt vmcnt(0)")
    a("  s_nop 7\n  s_nop 7")
    saverestore("store")
    a("""  v_and_b32 v111, 15, v0
  v_lshrrev_b32 v112, 4, v0
  v_lshlrev_b32 v96, 4, v112
  v_lshl_add_u32 v96, v111, 8, v96
  v_add_u32 v97, 0x1000, v96
  v_lshlrev_b32 v110, 3, v112
  v_lshl_add_u32 v110, v111, 8, v110""")
    for p in range(4):
        a(f"""  v_add_u32 v113, {4*p}, v112
  v_and_b32 v113, 7, v113
  v_lshlrev_b32 v113, 1, v113
  v_xor_b32 v113, v113, v111
  v_lshlrev_b32 v113, 4, v113
  v_lshl_add_u32 v{98+p}, v112, 8, v113""")
    a(f"  s_sub_u32 s11, s{S_STG}, 0x10000")
    for dt in range(8): a(f"  v_add_u32 v{102+dt}, s11, v{V_VA+dt}")
    a(f"  s_add_u32 s7, s{S_QPREV}, s{S_WQ}")
    a("  s_mov_b32 s4, 0")
    a("L_sl_g:")
    for kk in range(4): a(f"  buffer_load_dwordx4 v[{128+4*kk}:{131+4*kk}], v96, {srd(S_Q)}, s7 offen offset:{64*kk}")
    for r in range(220, 252): a(f"  v_mov_b32 v{r}, 0")
    a("  v_mov_b32 v252, 0xff7fffff\n  v_mov_b32 v253, 0")
    a(f"  s_mov_b32 s6, s{S_KVPREV}\n  s_mov_b32 s5, 0")
    a("L_sl_t:")
    for t in range(2):
        for kk in range(4): a(f"  buffer_load_dwordx4 v[{144+16*t+4*kk}:{147+16*t+4*kk}], v{96+t}, {srd(S_K)}, s6 offen offset:{64*kk}")
    for h in range(2):
        a(f"  s_add_u32 m0, s{S_STG}, {4096*h}\n  s_add_u32 s11, s6, {4096*h}")
        for p in range(4): a(f"  buffer_load_dwordx4 v{98+p}, {srd(S_V)}, s11 offen offset:{1024*p} lds")
    a("  s_waitcnt vmcnt(0)")
    for dt in range(8):
        for h in range(2): a(f"  ds_read_b64_tr_b16 v[{176+4*dt+2*h}:{177+4*dt+2*h}], v{102+dt} offset:{4096*h}")
    for kk in range(4):
        for t in range(2):
            d = 208 + 4 * t
            a(f"  v_mfma_f32_16x16x32_bf16 v[{d}:{d+3}], v[{144+16*t+4*kk}:{147+16*t+4*kk}], v[{128+4*kk}:{131+4*kk}], " + ("0" if kk == 0 else f"v[{d}:{d+3}]"))
    a("  s_nop 7\n  s_nop 1")
    for r in range(8): a(f"  v_mul_f32 v{208+r}, s{S_C}, v{208+r}")
    a("""  v_max3_f32 v254, v208, v209, v210
  v_max3_f32 v255, v211, v212, v213
  v_max3_f32 v254, v214, v215, v254
  v_max3_f32 v254, v254, v255, v252
  v_mov_b32 v255, v254
  s_nop 1
  v_permlane32_swap_b32 v255, v254
  v_max_f32 v254, v254, v255
  v_mov_b32 v255, v254
  s_nop 1
  v_permlane16_swap_b32 v255, v254
  v_max_f32 v254, v254, v255
  v_sub_f32 v255, v252, v254
  v_exp_f32 v255, v255
  v_mov_b32 v252, v254""")
    for r in range(8): a(f"  v_sub_f32 v{208+r}, v{208+r}, v254")
    for r in range(8): a(f"  v_exp_f32 v{208+r}, v{208+r}")
    a("  v_mul_f32 v253, v253, v255")
    for r in range(220, 252): a(f"  v_mul_f32 v{r}, v{r}, v255")
    for h in range(4): a(f"  v_cvt_pk_bf16_f32 v{216+h}, v{208+2*h}, v{209+2*h}")
    for h in range(4):
        a(f"  v_lshlrev_b32 v254, 16, v{216+h}\n  v_and_b32 v255, 0xffff0000, v{216+h}\n  v_add_f32 v253, v253, v254\n  v_add_f32 v253, v253, v255")
    a("  s_waitcnt lgkmcnt(0)")
    for dt in range(8):
        d = 220 + 4 * dt
        a(f"  v_mfma_f32_16x16x32_bf16 v[{d}:{d+3}], v[{176+4*dt}:{179+4*dt}], v[216:219], v[{d}:{d+3}]")
    a("""  s_nop 7
  s_nop 1
  s_add_u32 s6, s6, 8192
  s_add_u32 s5, s5, 1
  s_cmp_lt_u32 s5, 16
  s_cbranch_scc1 L_sl_t
  v_mov_b32 v255, v253
  s_nop 1
  v_permlane32_swap_b32 v255, v253
  v_add_f32 v253, v253, v255
  v_mov_b32 v255, v253
  s_nop 1
  v_permlane16_swap_b32 v255, v253
  v_add_f32 v253, v253, v255
  v_rcp_f32 v253, v253
  s_nop 0""")
    for r in range(220, 252): a(f"  v_mul_f32 v{r}, v{r}, v253")
    for dt in range(8):
        d = 220 + 4 * dt
        a(f"  v_cvt_pk_bf16_f32 v{144+2*dt}, v{d}, v{d+1}\n  v_cvt_pk_bf16_f32 v{145+2*dt}, v{d+2}, v{d+3}")
    for dt in range(8): a(f"  buffer_store_dwordx2 v[{144+2*dt}:{145+2*dt}], v110, {srd(S_O)}, s7 offen offset:{32*dt}")
    a("""  s_waitcnt vmcnt(0)
  s_add_u32 s7, s7, 4096
  s_add_u32 s4, s4, 1
  s_cmp_lt_u32 s4, 4
  s_cbranch_scc1 L_sl_g""")
    saverestore("load")
    a("""  s_mov_b32 m0, s8
  s_cmp_eq_u32 s10, 0
  s_cbranch_scc1 L_ret0
  s_branch L_ret1""")
    return "\n".join(L)
```

```python
import sys, math, struct
from asmlib import *

class Cfg:
    nt_q = False; nt_kv = False; nt_o = False
    thr_log2 = 32
    slow = True
    stamps = False
    seam_t = 20
    abl = ''
    pk = True
    burst8 = False
    o_pol = ''
    o_pol_last = ' sc0 sc1'
    cond_wt = 0
    codepf = False
    qd_tiles = [2, 3, 5, 6, 8, 9, 11, 12]
    qr_tiles = [6, 7, 9, 10]
    dw_gap = 1
    st_gap = 4
cfg = Cfg()
for a in sys.argv[2:]:
    k, v = a.split("="); setattr(cfg, k, eval(v))

NAME = "standalone__mha_softmax__near_ridge_kernel"
def f32(x): return struct.unpack("<I", struct.pack("<f", x))[0]
CSCALE = f32(128 ** -0.5 * math.log2(math.e))

V_KA = 2
V_VA = 6
V_DMA = 14
V_QOFF = 18; V_OOFF = 19
V_NEGM = 20
V_RINV = 24
V_T = 60
V_OT = (80, 84, 88, 92, 120, 124, 36, 40)
V_ONES = 32
V_QDMA = 48
V_QA = 52
V_OW = 56; V_OR = 57
V_QA2 = 58
V_L = 64
V_S = 96
V_P = 112
V_O = 128
A_Q = 0; A_QB = 64; A_K = 128; A_V = 192
S_Q, S_X, S_O, S_K, S_V, S_W = 16, 20, 24, 28, 32, 36
S_C, S_NC, S_THR, S_WAVE, S_LDSB, S_DOFF, S_INEXT, S_XCD = 40, 41, 42, 43, 44, 45, 46, 47
S_QNEXT, S_KVNEXT, S_QCUR, S_KVCUR, S_QPREV, S_KVPREV = 48, 49, 50, 51, 52, 53
S_BAD = 54
S_LOOP, S_RET, S_WPART, S_T0, S_T1, S_TQ, S_TO = 62, 63, 64, 65, 66, 67, 88
S_STG, S_WQ, S_STG2 = 80, 81, 82
STG = 131072
OOB = 0x40000000

def salu(t, rd=(), wr=(), **k): return Ins(t, "salu", [("s", x) if isinstance(x, int) else x for x in rd], [("s", x) if isinstance(x, int) else x for x in wr], **k)
def valu(t, rd=(), wr=(), kind="valu", **k): return Ins(t, kind, rd, wr, **k)
def V(n, c=1): return R("v", n, c)
def A(n, c=1): return R("a", n, c)
def Sg(n, c=1): return R("s", n, c)

def mfma(d, a, b, c):
    ct = "0" if c is None else rs("v", c, 4)
    t = f"v_mfma_f32_16x16x32_bf16 {rs('v', d, 4)}, {rs(a[0], a[1], 4)}, {rs(b[0], b[1], 4)}, {ct}"
    ab = R(a[0], a[1], 4) + R(b[0], b[1], 4)
    cc = [] if c is None else V(c, 4)
    return Ins(t, "mfma", ab + cc, V(d, 4), srcc=cc, ab=ab)

def QK(qb, T, g):
    out = []
    for kk in range(4):
        for t in range(2):
            d = V_S + 8 * (g % 2) + 4 * t
            out.append(mfma(d, ("a", A_K + 32 * (T % 2) + 16 * t + 4 * kk), ("a", A_Q + 64 * qb + 16 * g + 4 * kk), None if kk == 0 else d))
    return out
def PV(T, g, first):
    out = []
    p = ("v", V_P + 4 * (g % 2))
    for dt in range(8):
        d = V_O + 32 * g + 4 * dt
        out.append(mfma(d, ("a", A_V + 32 * (T % 2) + 4 * dt), p, None if first else d))
    d = V_L + 4 * g
    out.append(mfma(d, ("v", V_ONES), p, None if first else d))
    return out

def SM(g, first, cvt_min):
    s = V_S + 8 * (g % 2); p = V_P + 4 * (g % 2); nm = V_NEGM + g
    o = []
    if first:
        t0, t1 = V_T + 2 * (g % 2), V_T + 2 * (g % 2) + 1
        o.append(valu(f"v_max3_f32 v{t0}, v{s}, v{s+1}, v{s+2}", V(s, 3), V(t0)))
        o.append(valu(f"v_max3_f32 v{t1}, v{s+3}, v{s+4}, v{s+5}", V(s + 3, 3), V(t1)))
        o.append(valu(f"v_max3_f32 v{t0}, v{s+6}, v{s+7}, v{t0}", V(s + 6, 2) + V(t0), V(t0)))
        o.append(valu(f"v_max_f32 v{t0}, v{t0}, v{t1}", V(t0) + V(t1), V(t0)))
        o.append(valu(f"v_mov_b32 v{t1}, v{t0}", V(t0), V(t1)))
        o.append(valu(f"s_nop 1\n  v_permlane32_swap_b32 v{t1}, v{t0}", (), V(t0) + V(t1), cost=12))
        o.append(valu(f"v_max_f32 v{t0}, v{t0}, v{t1}", V(t0) + V(t1), V(t0)))
        o.append(valu(f"v_mov_b32 v{t1}, v{t0}", V(t0), V(t1)))
        o.append(valu(f"s_nop 1\n  v_permlane16_swap_b32 v{t1}, v{t0}", (), V(t0) + V(t1), cost=12))
        o.append(valu(f"v_max_f32 v{t0}, v{t0}, v{t1}", V(t0) + V(t1), V(t0)))
        o.append(valu(f"v_mul_f32 v{nm}, s{S_NC}, v{t0}", V(t0) + Sg(S_NC), V(nm)))
    def fma(r): return valu(f"v_fma_f32 v{s+r}, v{s+r}, s{S_C}, v{nm}", V(s + r) + V(nm) + Sg(S_C), V(s + r))
    def ex(r): return valu(f"v_exp_f32 v{s+r}, v{s+r}", V(s + r), V(s + r), kind="trans")
    def cvt(h): return valu(f"v_cvt_pk_bf16_f32 v{p+h}, v{s+2*h}, v{s+2*h+1}", V(s + 2 * h, 2), V(p + h), minpos=cvt_min, nogap=True)
    o += [fma(0), fma(1), ex(0), ex(1), fma(2), fma(3), ex(2), ex(3), cvt(0), fma(4), ex(4), cvt(1), fma(5), ex(5),
          fma(6), fma(7), ex(6), ex(7), cvt(2), cvt(3)]
    o[-1].nogap = False
    return o

def KREADS(T, tagp):
    o = []
    for kk in range(4):
        for t in range(2):
            d = A_K + 32 * (T % 2) + 16 * t + 4 * kk
            o.append(Ins(f"ds_read_b128 {rs('a', d, 4)}, v{V_KA+kk} offset:{(T % 8) * 8192 + t * 4096}", "ds", V(V_KA + kk), A(d, 4), tag=f"K{tagp}"))
    return o
def VREADS(T, tagp):
    o = []
    for dt in range(8):
        for h in range(2):
            d = A_V + 32 * (T % 2) + 4 * dt + 2 * h
            o.append(Ins(f"ds_read_b64_tr_b16 {rs('a', d, 2)}, v{V_VA+dt} offset:{(T % 8) * 8192 + h * 4096}", "ds", V(V_VA + dt), A(d, 2), tag=f"V{tagp}"))
    return o
def DMA(TT, how, tagp):
    o = []
    if how == "inc": o.append(salu(f"s_add_u32 s{S_DOFF}, s{S_DOFF}, 8192", [S_DOFF], [S_DOFF]))
    else: o.append(salu(f"s_add_u32 s{S_DOFF}, s{S_KVNEXT}, s{S_WPART}", [S_KVNEXT, S_WPART], [S_DOFF]))
    o.append(salu(f"s_add_u32 m0, s{S_LDSB}, {(TT % 8) * 8192}", [S_LDSB], [("m0", 0)]))
    nt = " nt" if cfg.nt_kv else ""
    for p in range(4):
        o.append(Ins(f"buffer_load_dwordx4 v{V_DMA+p}, {rs('s', S_X, 4)}, s{S_DOFF} offen offset:{1024*p}{nt} lds", "dma",
                     V(V_DMA + p) + Sg(S_X, 4) + Sg(S_DOFF) + [("m0", 0)], [], tag=f"D{tagp}", nogap=(p == 0), cost=(14 if p == 0 else 9)))
    return o
def QDMA(n, stg=S_STG):
    g_, c2 = n // 4, (n // 2) % 2
    o = []
    if n == 0: o.append(salu(f"s_add_u32 s{S_TQ}, s{S_QNEXT}, s{S_WQ}", [S_QNEXT, S_WQ], [S_TQ]))
    elif c2 == 0: o.append(salu(f"s_add_u32 s{S_TQ}, s{S_TQ}, 4096", [S_TQ], [S_TQ]))
    o.append(salu(f"s_add_u32 m0, s{stg}, {1024*(n%8) - 128*c2}", [stg], [("m0", 0)]))
    nt = " nt" if cfg.nt_q else ""
    for h in range(2):
        o.append(Ins(f"buffer_load_dwordx4 v{V_QDMA+h}, {rs('s', S_Q, 4)}, s{S_TQ} offen offset:{1024*h+128*c2}{nt} lds", "dma",
                     V(V_QDMA + h) + Sg(S_Q, 4) + Sg(S_TQ) + [("m0", 0)], [], tag=f"QD{n//2}", nogap=(h == 0), cost=(14 if h == 0 else 9)))
    return o
def QREAD(qb, n, va=V_QA, inbody=False):
    g_, c2 = n // 4, (n // 2) % 2
    o = [wait(("vm", [f"QD{n//2}"]), key=(f"wQD{qb}_{n}" if inbody else None))]
    for k2 in range(2):
        d = A_Q + 64 * qb + 16 * g_ + 4 * (2 * c2 + k2)
        o.append(Ins(f"ds_read_b128 {rs('a', d, 4)}, v{va+k2} offset:{1024*(n%8)}", "ds", V(va + k2), A(d, 4), tag=f"Q{qb}{g_}"))
    return o
def EPI(g, sq, site=None, pol=None):
    l = V_L + 4 * g; r = V_RINV + 2 * g; to = S_TO + g
    o = [valu(f"v_rcp_f32 v{r}, v{l}", V(l), V(r), kind="trans"),
         valu(f"v_cmp_ngt_f32 {rs('s', S_BAD+2*g, 2)}, s{S_THR}, v{l}", V(l) + Sg(S_THR), Sg(S_BAD + 2 * g, 2)),
         salu(f"s_add_u32 s{to}, s{sq}, {4096*g}", [sq], [to])]
    nt = cfg.o_pol if pol is None else pol
    a0 = V_O + 32 * g
    if cfg.pk:
        M = [valu(f"v_pk_mul_f32 v[{a0+e}:{a0+e+1}], v[{a0+e}:{a0+e+1}], v[{r}:{r+1}] op_sel_hi:[1,0]", V(a0 + e, 2) + V(r), V(a0 + e, 2)) for e in range(0, 32, 2)]
        M[0].cost = 16; M[0].late = True
        for x in M[1:]: x.glue = True; x.late = True
    else:
        M = [valu(f"v_mul_f32 v{a0+e}, v{a0+e}, v{r}", V(a0 + e) + V(r), V(a0 + e)) for e in range(32)]
    C = [valu(f"v_cvt_pk_bf16_f32 v{a0+h}, v{a0+2*h}, v{a0+2*h+1}", V(a0 + 2 * h, 2), V(a0 + h)) for h in range(16)]
    W = [Ins(f"ds_write_b64 v{V_OW}, {rs('v', a0 + 2 * h, 2)} offset:{32*h}", "ds", V(V_OW) + V(a0 + 2 * h, 2), [], tag="OW", cost=12) for h in range(8)]
    for x in W: x.delay = cfg.dw_gap
    ot = V_OT[4 * (g % 2):4 * (g % 2) + 4]
    RD = [Ins(f"ds_read_b128 {rs('v', ot[p], 4)}, v{V_OR} offset:{1088*p}", "ds", V(V_OR), V(ot[p], 4), tag=f"OR{g}") for p in range(4)]
    ST = [Ins(f"buffer_store_dwordx4 {rs('v', ot[p], 4)}, v{V_OOFF}, {rs('s', S_O, 4)}, s{to} offen offset:{1024*p}{nt}", "store",
              V(ot[p], 4) + V(V_OOFF) + Sg(S_O, 4) + Sg(to), [], tag="ST", cost=16) for p in range(4)]
    if cfg.cond_wt and pol is None:
        lab = f"L_wt{g}"
        alt = "\n  ".join(x.text + cfg.o_pol_last for x in ST)
        ST[0].text = f"s_cmp_lt_u32 s{S_LOOP}, {cfg.cond_wt}\n  s_cbranch_scc0 {lab}a\n  {alt}\n  s_branch {lab}b\n{lab}a:\n  " + ST[0].text
        ST[3].text = ST[3].text + f"\n{lab}b:"
        ST[0].cost += 8; ST[0].rd += Sg(S_LOOP)
    for x in ST[1:]:
        if cfg.st_gap: x.delay = cfg.st_gap
        else: x.glue = True
    wt = wait(("lgkm", [f"OR{g}"])); wt.delay = 6
    ev = o + M + C; em = W + RD; es = [wt] + ST
    o = es
    if site is not None:
        b = S_BAD
        o.append(salu(f"s_or_b64 s[{b}:{b+1}], s[{b}:{b+1}], s[{b+2}:{b+3}]", Sg(b, 4), Sg(b, 2)))
        o.append(salu(f"s_or_b64 s[{b+4}:{b+5}], s[{b+4}:{b+5}], s[{b+6}:{b+7}]", Sg(b + 4, 4), Sg(b + 4, 2)))
        o.append(salu(f"s_or_b64 s[{b}:{b+1}], s[{b}:{b+1}], s[{b+4}:{b+5}]\n  s_cbranch_scc1 L_slow{site}\nL_ret{site}:", Sg(b, 2) + Sg(b + 4, 2), Sg(b, 2), cost=8))
    return ev, em, es

def next_block_calc(pre_inc):
    o = []
    if pre_inc: o.append(salu(f"s_add_u32 s{S_INEXT}, s{S_INEXT}, 32", [S_INEXT], [S_INEXT]))
    o += [salu(f"s_mul_i32 s{S_T0}, s{S_INEXT}, 43691", [S_INEXT], [S_T0]),
          salu(f"s_lshr_b32 s{S_T0}, s{S_T0}, 17", [S_T0], [S_T0]),
          salu(f"s_lshl_b32 s{S_T1}, s{S_XCD}, 6", [S_XCD], [S_T1]),
          salu(f"s_add_u32 s{S_T0}, s{S_T0}, s{S_T1}", [S_T0, S_T1], [S_T0]),
          salu(f"s_lshl_b32 s{S_KVNEXT}, s{S_T0}, 17", [S_T0], [S_KVNEXT]),
          salu(f"s_mul_i32 s{S_T1}, s{S_XCD}, 192", [S_XCD], [S_T1]),
          salu(f"s_add_u32 s{S_T1}, s{S_T1}, s{S_INEXT}", [S_T1, S_INEXT], [S_T1]),
          salu(f"s_lshl_b32 s{S_QNEXT}, s{S_T1}, 16", [S_T1], [S_QNEXT]),
          salu(f"s_cmp_lt_u32 s{S_INEXT}, 192\n  s_cselect_b32 s{S_KVNEXT}, s{S_KVNEXT}, {OOB}\n  s_cselect_b32 s{S_QNEXT}, s{S_QNEXT}, {OOB}",
               [S_INEXT, S_KVNEXT, S_QNEXT], [S_KVNEXT, S_QNEXT], cost=12)]
    return o
def rotate():
    return [salu(f"s_mov_b32 s{S_QPREV}, s{S_QCUR}", [S_QCUR], [S_QPREV]), salu(f"s_mov_b32 s{S_KVPREV}, s{S_KVCUR}", [S_KVCUR], [S_KVPREV]),
            salu(f"s_mov_b32 s{S_QCUR}, s{S_QNEXT}", [S_QNEXT], [S_QCUR]), salu(f"s_mov_b32 s{S_KVCUR}, s{S_KVNEXT}", [S_KVNEXT], [S_KVCUR])]

DEAD = set()
def wait(*need, key=None):
    w = Ins("s_waitcnt ?", "wait", need=list(need)); w.tag = key
    if key is not None and key in DEAD: w.cost = 0; w.kind = "comment"; w.text = ""; w.need = None
    return w
def barrier(): return Ins("s_barrier", "barrier", cost=4)

G = 17
NVE = 51
def setmin(ops, m):
    for o in ops: o.minpos = max(o.minpos, m)
    return ops
def QCOPY(g_):
    return [valu(f"v_accvgpr_mov_b32 a{A_Q+16*g_+r}, a{A_QB+16*g_+r}", A(A_QB + 16 * g_ + r), A(A_Q + 16 * g_ + r)) for r in range(16)]
def sbar(*need, stamp=True):
    p = []
    if cfg.stamps and stamp: p.append(salu("s_memtime s[70:71]\n  s_memrealtime s[92:93]\n  v_mov_b32 v47, s72"))
    p += [wait(*need), barrier()]
    if cfg.stamps and stamp:
        p.append(valu("s_memtime s[72:73]\n  v_mov_b32 v46, s70\n  v_cmp_eq_u32 vcc, s74, v0\n  s_add_u32 s74, s74, 1\n  s_nop 0\n  v_cndmask_b32 v44, v44, v46, vcc\n  v_cndmask_b32 v45, v45, v47, vcc\n  v_mov_b32 v46, s92\n  v_cndmask_b32 v50, v50, v46, vcc", [], V(44, 2)))
    return p
def qread0(g_): return QREAD(0, 4 * g_, V_QA if g_ < 2 else V_QA2) + QREAD(0, 4 * g_ + 2, V_QA if g_ < 2 else V_QA2)
def build_prologue():
    bb = []; pre = {}; st = []; B = []
    for n in range(8):
        T, g = divmod(n, 4); T1, g1 = divmod(n + 1, 4); T0, g0 = divmod(n - 1, 4)
        base = len(bb); B.append(base)
        p = pre.setdefault(base, [])
        if n == 1: p += sbar(("vm", ["D1"]), ("lgkm", "all"))
        if n == 4: p += sbar(("vm", ["D2"]), ("lgkm", "all"), stamp=False)
        if g1 == 0: p.append(wait(("lgkm", [f"K{T1}"])))
        if T1 == 0: p.append(wait(("lgkm", [f"Q0{g1}"])))
        bb += QK(0, T1, g1)
        if n > 0:
            if g0 == 0: pre.setdefault(base + 8, []).append(wait(("lgkm", [f"V{T0}"])))
            bb += PV(T0, g0, T0 == 0)
    B.append(len(bb))
    for n in range(8):
        T, g = divmod(n, 4)
        st.append(Stream(f"SM{n}", SM(g, T == 0, B[n] - 1), (B[n - 1] + 12 if n else 0), B[n + 1] - 1))
    st.append(Stream("QR2", qread0(2), 4, B[1] - 1))
    st.append(Stream("QR3", qread0(3), B[1] + 8, B[2] - 3))
    for k, op in enumerate(KREADS(1, 1)): st.append(Stream(f"K1_{k}", [op], B[1] + 3 * k, B[1] + 3 * k + 4))
    for k, op in enumerate(VREADS(1, 1)): st.append(Stream(f"V1_{k}", [op], B[1] + (5 * k) // 2, B[1] + (5 * k) // 2 + 6))
    for k, op in enumerate(KREADS(2, 2)): st.append(Stream(f"K2_{k}", [op], B[4] + 5 * k, B[4] + 5 * k + 7))
    for k, op in enumerate(VREADS(2, 2)): st.append(Stream(f"V2_{k}", [op], B[5] - 1 + (5 * k) // 2, B[5] - 1 + (5 * k) // 2 + 6))
    d = []
    for TT, gi in ((3, 1), (4, 2), (5, 3), (6, 4), (7, 5), (8, 6)):
        x = DMA(TT, "inc", TT)
        for y in x[3:]: y.glue = True
        setmin(x, B[gi]); x[2].minpos = B[gi] + 3; x[2].maxpos = B[gi] + 10
        d += x
    st.append(Stream("D", d, B[1], B[8] - 1))
    st.append(Stream("NB", rotate() + next_block_calc(True), 0, B[4]))
    out, stats = schedule(bb, st, pre, lambda i: 12 if i < B[4] else 8)
    return out + [salu("s_branch L_entry")]

def build_body():
    bb = []; pre = {}; st = []
    NG = 64
    for n in range(NG):
        T, g = divmod(n, 4)
        n1 = (n + 1) % NG; T1, g1 = divmod(n1, 4)
        n0 = (n - 1) % NG; T0, g0 = divmod(n0, 4)
        base = G * n
        p = pre.setdefault(base, [])
        if n == 0: p += rotate()
        if n == 8: p.append(Ins("L_entry:", "label", cost=0))
        if g == 0 and T % 2 == 0:
            p += sbar(("vm", [f"D{(T+1)%16}", f"D{(T+2)%16}"]), ("lgkm", "all"))
        if g1 == 0: p.append(wait(("lgkm", [f"K{T1}"]), key=f"wK{T1}"))
        if T1 == 0 and g1 >= 2: p.append(wait(("lgkm", [f"Q0{g1}"]), key=f"wQ{T1}{g1}"))
        bb += QK(0, T1, g1)
        if g0 == 0: pre.setdefault(base + 8, []).append(wait(("lgkm", [f"V{T0}"]), key=f"wV{T0}"))
        bb += PV(T0, g0, T0 == 0)
        rel = max(0, base - G + 12) if n != 8 else base
        st.append(Stream(f"SM{n}", SM(g, T == 0, base - 1), rel, base + G - 1))
        if g == 0:
            Tn = (T + 1) % 16; t = T
            for k, op in enumerate(KREADS(Tn, Tn)): st.append(Stream(f"K{Tn}_{k}", [op], base + 5 * k, base + 5 * k + 7))
            for k, op in enumerate(VREADS(Tn, Tn)): st.append(Stream(f"V{Tn}_{k}", [op], base + G - 1 + (5 * k) // 2, base + G - 1 + (5 * k) // 2 + 6))
            TT = (T + 7) % 16
            d = DMA(TT, "next" if t == 9 else "inc", TT)
            for x in d[3:]: x.glue = True
            d[2].minpos = base + 3; d[2].maxpos = base + (G if t else 3 * G)
            if t in cfg.qd_tiles:
                qd = QDMA(2 * cfg.qd_tiles.index(t)); qd[-1].glue = True
                setmin(qd[-2:], base + 3 * G + 1)
                d += qd
            st.append(Stream(f"D{TT}", d, base, base + 4 * G - 1))
            if t == 0: st.append(Stream(f"NB{T}", next_block_calc(True), base, base + 3 * G))
            if t in cfg.qr_tiles: st.append(Stream(f"QR{T}", QREAD(1, 2 * cfg.qr_tiles.index(t), inbody=True), base + G, base + 3 * G - 2))
            if t == 15:
                st.append(Stream("QC0", QCOPY(0), base - G + 8, base + 3 * G - 3))
                st.append(Stream("QC1", QCOPY(1), base + 8, base + 4 * G - 1))
                st.append(Stream("QR2", QREAD(0, 8, inbody=True) + QREAD(0, 10, inbody=True), base + G + 8, base + 2 * G + 7))
                st.append(Stream("QR3", QREAD(0, 12, inbody=True) + QREAD(0, 14, inbody=True), base + 2 * G + 8, base + 3 * G + 1, prio=30))
        if T == 15 and g == 1:
            e0 = EPI(0, S_QCUR); e1 = EPI(1, S_QCUR)
            st.append(Stream("E_v0", e0[0], base + G + 5, base + 2 * G + 1))
            st.append(Stream("E_m0", e0[1], base + 2 * G + 2, base + 3 * G - 1, prio=30))
            st.append(Stream("E_v1", e1[0], base + 2 * G + 5, base + 3 * G - 1))
        if n == 0:
            e0 = EPI(0, S_QCUR); e1 = EPI(1, S_QCUR); e2 = EPI(2, S_QPREV); e3 = EPI(3, S_QPREV, site=0)
            st.append(Stream("E_v2", e2[0], base + 4, base + G + 8))
            st.append(Stream("E_v3", e3[0], base + G + 9, base + 2 * G + 14))
            e1[1][-1].maxpos = base + G + 8; e2[1][-1].maxpos = base + 3 * G + 5
            if cfg.burst8:
                e1[2][1].glue = True; e3[2][1].glue = True
                c1 = [e1[2][0]] + e0[2][1:] + e1[2][1:]
                c2 = [e3[2][0]] + e2[2][1:] + e3[2][1:]
                chain = e1[1] + c1 + setmin(e2[1], base + G + 9) + setmin(e3[1], base + 2 * G + 15)
                chain[-1].maxpos = base + 4 * G + 5
                c2[1].maxpos = base + 4 * G + 14
                chain += c2
            else:
                chain = e1[1] + e0[2] + setmin(e2[1], base + G + 9) + e1[2] + setmin(e3[1], base + 2 * G + 15)
                chain[-1].maxpos = base + 4 * G + 5
                sg = max(cfg.st_gap, 2)
                for k, x in enumerate(e2[2][:5] + e3[2][:5]): x.maxpos = base + 4 * G + 12 + sg * k
                chain += e2[2] + e3[2]
            st.append(Stream("E_m", chain, base, base + 4 * G + 14 + max(cfg.st_gap, 2) * 10, prio=10))
    def tfn(i):
        n = i // G; T = (n // 4) % 16
        if T == 15 and i % (4 * G) >= 2 * G + 4: return cfg.seam_t
        if T == 0: return cfg.seam_t
        return 8
    return schedule(bb, st, pre, tfn)

def build_drain():
    bb = PV(15, 3, False)
    pre = {0: rotate()}
    e0 = EPI(0, S_QCUR, pol=cfg.o_pol_last); e1 = EPI(1, S_QCUR, pol=cfg.o_pol_last); e2 = EPI(2, S_QPREV, pol=cfg.o_pol_last); e3 = EPI(3, S_QPREV, site=1, pol=cfg.o_pol_last)
    seq = e0[2] + e1[1] + setmin(e2[0], 3) + e1[2] + e2[1] + setmin(e3[0], 8) + e2[2] + e3[1] + e3[2]
    for x in seq: x.delay = 0
    st = [Stream("E", seq, 0, 8)]
    out, stats = schedule(bb, st, pre, lambda i: 24)
    return out

def build_init():
    o = []
    def s(t, rd=(), wr=()): o.append(salu(t, rd, wr))
    def v(t, rd=(), wr=()): o.append(valu(t, rd, wr))
    if cfg.stamps: s("s_memrealtime s[94:95]")
    s("s_cmp_ge_u32 s2, 256\n  s_cbranch_scc1 L_end")
    s("s_load_dwordx8 s[4:11], s[0:1], 0", [], list(range(4, 12)))
    s("s_load_dwordx4 s[12:15], s[0:1], 32", [], list(range(12, 16)))
    v("v_lshrrev_b32 v1, 6, v0", V(0), V(1))
    v("v_and_b32 v0, 63, v0", V(0), V(0))
    v(f"v_readfirstlane_b32 s{S_WAVE}, v1", V(1), Sg(S_WAVE))
    v("v_and_b32 v36, 15, v0", V(0), V(36)); v("v_lshrrev_b32 v37, 4, v0", V(0), V(37)); v("v_lshrrev_b32 v38, 2, v0", V(0), V(38))
    s(f"s_lshr_b32 s{S_T0}, s{S_WAVE}, 1", [S_WAVE], [S_T0])
    s(f"s_and_b32 s{S_T1}, s{S_WAVE}, 1", [S_WAVE], [S_T1])
    s(f"s_lshl_b32 s{S_WPART}, s{S_T1}, 12", [S_T1], [S_WPART])
    s(f"s_lshl_b32 s{S_LDSB}, s{S_T0}, 16", [S_T0], [S_LDSB])
    s(f"s_add_u32 s{S_LDSB}, s{S_LDSB}, s{S_WPART}", [S_LDSB, S_WPART], [S_LDSB])
    s(f"s_lshr_b32 s{S_TQ}, 15, s{S_T0}", [S_T0], [S_TQ])
    for p in range(4):
        v(f"v_add_u32 v39, {4*p}, v37", V(37), V(39)); v(f"v_and_b32 v39, s{S_TQ}, v39", V(39) + Sg(S_TQ), V(39))
        v(f"v_lshlrev_b32 v39, s{S_T0}, v39", V(39) + Sg(S_T0), V(39)); v("v_xor_b32 v39, v39, v36", V(39) + V(36), V(39))
        v("v_lshlrev_b32 v39, 4, v39", V(39), V(39)); v(f"v_lshl_add_u32 v{V_DMA+p}, v37, 8, v39", V(37) + V(39), V(V_DMA + p))
    v("v_lshrrev_b32 v39, 3, v0", V(0), V(39)); v("v_and_b32 v40, 6, v39", V(39), V(40)); v("v_and_b32 v41, 7, v0", V(0), V(41))
    v("v_xor_b32 v40, v40, v41", V(40) + V(41), V(40)); v("v_lshlrev_b32 v40, 4, v40", V(40), V(40))
    v(f"v_lshl_add_u32 v{V_QDMA}, v39, 8, v40", V(39) + V(40), V(V_QDMA)); v(f"v_add_u32 v{V_QDMA+1}, 1024, v{V_QDMA}", V(V_QDMA), V(V_QDMA + 1))
    s(f"s_lshl_b32 s{S_WQ}, s{S_WAVE}, 14", [S_WAVE], [S_WQ])
    s(f"s_lshl_b32 s{S_STG}, s{S_WAVE}, 13", [S_WAVE], [S_STG]); s(f"s_add_u32 s{S_STG}, s{S_STG}, {STG}", [S_STG], [S_STG])
    s(f"s_lshl_b32 s{S_STG2}, s{S_T0}, 16", [S_T0], [S_STG2]); s(f"s_lshl_b32 s{S_T1}, s{S_WPART}, 1", [S_WPART], [S_T1])
    s(f"s_add_u32 s{S_STG2}, s{S_STG2}, s{S_T1}", [S_STG2, S_T1], [S_STG2]); s(f"s_add_u32 s{S_STG2}, s{S_STG2}, {6*8192}", [S_STG2], [S_STG2])
    s(f"s_and_b32 s{S_XCD}, s2, 7", [], [S_XCD]); s(f"s_lshr_b32 s{S_INEXT}, s2, 3", [], [S_INEXT])
    early = o; o = late = []
    for kk in range(4):
        v(f"v_or_b32 v39, {4*kk}, v37", V(37), V(39)); v("v_xor_b32 v39, v39, v36", V(39) + V(36), V(39))
        v("v_lshlrev_b32 v39, 4, v39", V(39), V(39)); v(f"v_lshl_add_u32 v{V_KA+kk}, v36, 8, v39", V(36) + V(39), V(V_KA + kk))
    v("v_and_b32 v40, 7, v38", V(38), V(40)); v("v_and_b32 v41, 3, v0", V(0), V(41)); v("v_lshlrev_b32 v41, 3, v41", V(41), V(41))
    v("v_lshl_add_u32 v41, v38, 8, v41", V(38) + V(41), V(41)); v("v_add_u32 v41, 0x10000, v41", V(41), V(41))
    for dt in range(8):
        v(f"v_xor_b32 v39, {dt}, v40", V(40), V(39)); v(f"v_lshl_add_u32 v{V_VA+dt}, v39, 5, v41", V(39) + V(41), V(V_VA + dt))
    v("v_and_b32 v40, 6, v36", V(36), V(40)); v("v_and_b32 v41, 7, v36", V(36), V(41)); v("v_lshrrev_b32 v42, 3, v36", V(36), V(42))
    v("v_lshlrev_b32 v41, 7, v41", V(41), V(41)); v("v_lshl_add_u32 v41, v42, 10, v41", V(42) + V(41), V(41))
    for k2 in range(2):
        v(f"v_or_b32 v39, {4*k2}, v37", V(37), V(39)); v("v_xor_b32 v39, v39, v40", V(39) + V(40), V(39))
        v("v_lshl_add_u32 v39, v39, 4, v41", V(39) + V(41), V(39))
        v(f"v_add_u32 v{V_QA+k2}, s{S_STG}, v39", V(39) + Sg(S_STG), V(V_QA + k2))
        v(f"v_add_u32 v{V_QA2+k2}, s{S_STG2}, v39", V(39) + Sg(S_STG2), V(V_QA2 + k2))
    v(f"v_lshlrev_b32 v39, 4, v0", V(0), V(39)); v(f"v_add_u32 v{V_OOFF}, s{S_WQ}, v39", V(39) + Sg(S_WQ), V(V_OOFF))
    v("v_mul_u32_u24 v39, 272, v36", V(36), V(39)); v("v_lshl_add_u32 v39, v37, 3, v39", V(37) + V(39), V(39))
    v(f"v_add_u32 v{V_OW}, s{S_STG}, v39", V(39) + Sg(S_STG), V(V_OW))
    v("v_mul_u32_u24 v39, 272, v37", V(37), V(39)); v("v_lshl_add_u32 v39, v36, 4, v39", V(36) + V(39), V(39))
    v(f"v_add_u32 v{V_OR}, s{S_STG}, v39", V(39) + Sg(S_STG), V(V_OR))
    v("v_and_b32 v39, 3, v0", V(0), V(39)); v("v_cmp_eq_u32 vcc, 0, v39", V(39), [("vcc", 0)]); v("v_mov_b32 v40, 0x3f803f80", [], V(40))
    v("v_mov_b32 v39, 0", [], V(39))
    for e in range(4): v(f"v_cndmask_b32 v{V_ONES+e}, v39, v40, vcc", V(39) + V(40) + [("vcc", 0)], V(V_ONES + e))
    for r in list(range(V_L, V_L + 16)) + list(range(V_P, V_P + 8)): v(f"v_mov_b32 v{r}, 0", [], V(r))
    s(f"s_mov_b32 s{S_C}, 0x{CSCALE:08x}", [], [S_C]); s(f"s_mov_b32 s{S_NC}, 0x{CSCALE | 0x80000000:08x}", [], [S_NC])
    s(f"s_mov_b32 s{S_THR}, 0x{f32(2.0 ** cfg.thr_log2):08x}", [], [S_THR])
    for r in range(S_BAD, S_BAD + 8): s(f"s_mov_b32 s{r}, 0", [], [r])
    for r in range(S_TO, S_TO + 4): s(f"s_mov_b32 s{r}, {OOB}", [], [r])
    s(f"s_mov_b32 s{S_QCUR}, {OOB}", [], [S_QCUR]); s(f"s_mov_b32 s{S_KVCUR}, {OOB}", [], [S_KVCUR])
    s(f"s_mov_b32 s{S_LOOP}, 5", [], [S_LOOP])
    if cfg.stamps:
        s("s_mov_b32 s74, 1\n  s_memtime s[72:73]\n  s_memrealtime s[76:77]\n v_mov_b32 v44, 0\n v_mov_b32 v45, 0\n v_mov_b32 v50, 0")
    o = early
    o += next_block_calc(False)
    s("s_waitcnt lgkmcnt(0)")
    if cfg.stamps: s("s_memrealtime s[96:97]")
    for srd, ptr, size in ((S_Q, 4, 0x6000000), (S_O, 10, 0x6000000), (S_K, 6, 0x4000000), (S_V, 8, 0x4000000), (S_W, 14, 402653184)):
        o = early if srd == S_Q else late
        s(f"s_mov_b32 s{srd}, s{ptr}", [ptr], [srd]); s(f"s_mov_b32 s{srd+1}, s{ptr+1}", [ptr + 1], [srd + 1])
        s(f"s_mov_b32 s{srd+2}, {size}", [], [srd + 2]); s(f"s_mov_b32 s{srd+3}, 0x00020000", [], [srd + 3])
    o = early
    s(f"s_cmp_ge_u32 s{S_WAVE}, 2\n  s_cselect_b32 s{S_X}, s8, s6\n  s_cselect_b32 s{S_X+1}, s9, s7", [S_WAVE, 6, 7, 8, 9], [S_X, S_X + 1])
    s(f"s_mov_b32 s{S_X+2}, 0x4000000", [], [S_X + 2]); s(f"s_mov_b32 s{S_X+3}, 0x00020000", [], [S_X + 3])
    def dma(TT, how):
        d = DMA(TT, how, TT); return d[:2] + [salu("s_nop 0")] + d[2:]
    def qdma(g_):
        r = []
        for n in (4 * g_, 4 * g_ + 2):
            d = QDMA(n, S_STG if g_ < 2 else S_STG2); r += d[:-2] + [salu("s_nop 0")] + d[-2:]
        return r
    def qread(g_): return QREAD(0, 4 * g_, V_QA if g_ < 2 else V_QA2) + QREAD(0, 4 * g_ + 2, V_QA if g_ < 2 else V_QA2)
    o += dma(0, "first") + qdma(0) + qdma(1) + qdma(2)
    if cfg.codepf:
        s("s_getpc_b64 s[84:85]\nL_pf:", [], [84, 85]); s("s_and_b32 s84, s84, 0xffffffc0", [84], [84]); s("s_mov_b32 s86, L_end-L_pf", [], [86]); s("s_mov_b32 s87, 0x00020000", [], [87])
        s(f"s_lshl_b32 s83, s{S_WAVE}, 13", [S_WAVE], [83]); v("v_lshlrev_b32 v51, 6, v0", V(0), V(51)); s("s_add_u32 s69, s83, 4096", [83], [69])
        o.append(Ins("buffer_load_dword v54, v51, s[84:87], s83 offen", "vmem", V(51) + Sg(84, 4) + Sg(83), V(54), tag="PF"))
        o.append(Ins("buffer_load_dword v55, v51, s[84:87], s69 offen", "vmem", V(51) + Sg(84, 4) + Sg(69), V(55), tag="PF"))
    o += late
    if cfg.stamps: s("s_memrealtime s[98:99]")
    o += [wait(("vm", ["D0"])), barrier()]
    if cfg.stamps: s("s_memrealtime s[100:101]\n  s_waitcnt lgkmcnt(0)\n  v_writelane_b32 v50, s94, 50\n  v_writelane_b32 v50, s96, 51\n  v_writelane_b32 v50, s98, 52\n  v_writelane_b32 v50, s100, 53")
    o += KREADS(0, 0) + dma(1, "inc") + qread0(0) + VREADS(0, 0) + qdma(3)
    o += [wait(("lgkm", ["K0", "Q00"]))]
    qk = QK(0, 0, 0)
    o += qk[:4] + qread0(1) + qk[4:] + dma(2, "inc")
    return o

def slow_stub():
    t = []
    for site in range(2):
        t.append(f"L_slow{site}:\n  s_branch L_ret{site}")
    return "\n".join(t)

def dataflow(trace):
    errs = []; stt = {}; cnt = {}
    inS = lambda r: r[0] == "v" and V_S <= r[1] < V_S + NS
    inP = lambda r: r[0] == "v" and V_P <= r[1] < V_P + 8
    inO = lambda r: r[0] == "v" and (V_O <= r[1] < V_O + 128 or V_L <= r[1] < V_L + 16)
    for x in trace:
        t = x.text
        if x.kind == "mfma":
            for r in x.wr:
                if inS(r):
                    if cnt.get(r, 4) == 4:
                        if stt.get(r, "c") != "c": errs.append(f"S overwritten before consumed {r} [{t}]")
                        cnt[r] = 1
                    else: cnt[r] += 1
                    stt[r] = "m"
                if inO(r):
                    if not x.srcc:
                        if stt.get(r, "done") != "done": errs.append(f"O overwritten before stored {r} [{t}]")
                        cnt[r] = 1
                    else: cnt[r] = cnt.get(r, 15) + 1
                    stt[r] = "acc"
            for r in x.ab:
                if inP(r):
                    if stt.get(r, "new") != "new": errs.append(f"P read when not new {r} [{t}]")
                    cnt[r] = cnt.get(r, 0) + 1
                    if cnt[r] == 9: stt[r] = "used"; cnt[r] = 0
        else:
            for r in x.rd:
                if inS(r) and cnt.get(r, 4) != 4: errs.append(f"S read while partial {r} [{t}]")
                if inS(r) and t.startswith("v_cvt"): stt[r] = "c"
                if inO(r) and stt.get(r) == "acc" and cnt.get(r) != 16: errs.append(f"O read early {r} cnt {cnt.get(r)} [{t}]")
            if t.startswith("ds_write") and EPI_LAST_W in t:
                a0 = x.rd[1][1] - 14
                for k in range(32): stt[("v", a0 + k)] = "done"
            if t.startswith("v_cmp_ngt"):
                for k in range(4): stt[("v", x.rd[0][1] + k)] = "done"
            for r in x.wr:
                if inP(r) and t.startswith("v_cvt"):
                    if stt.get(r, "used") != "used": errs.append(f"P overwritten before used {r} [{t}]")
                    stt[r] = "new"; cnt[r] = 0
    return errs
EPI_LAST_W = "offset:224"
NS = 16
def main():
    tail = [salu(f"s_sub_u32 s{S_LOOP}, s{S_LOOP}, 1\n  s_cbranch_scc0 L_loop", [S_LOOP], [S_LOOP], cost=8)]
    for it in range(3):
        init = build_init()
        body, stats = build_body()
        drain = build_drain()
        init += build_prologue()
        ent = lambda bd: [k for k, x in enumerate(bd) if x.text == "L_entry:"][0]
        trace = init + body[ent(body):] + tail + (body + tail) * 5 + drain
        best = resolve_waits(trace)
        for l in (init, body, drain): apply_waits(l, best)
        dead = lambda x: (x.kind == "wait" and x.need is not None and x.text == "s_nop 0") or x.kind == "comment"
        nd = {x.tag for x in body if x.kind == "wait" and dead(x) and x.tag}
        if nd <= DEAD: break
        DEAD.update(nd)
    init = [x for x in init if not dead(x)]; body = [x for x in body if not dead(x)]; drain = [x for x in drain if not dead(x)]
    if cfg.abl:
        def drop(x):
            t = x.text
            return (('exp' in cfg.abl and t.startswith('v_exp')) or ('fma' in cfg.abl and t.startswith('v_fma')) or
                    ('ds' in cfg.abl and t.startswith('ds_read') and ' a[' in t) or ('dma' in cfg.abl and x.kind == 'dma') or
                    ('bar' in cfg.abl and x.kind == 'barrier') or ('cvt' in cfg.abl and t.startswith('v_cvt') and int(t.split()[1][1:-1]) < 128) or
                    ('st' in cfg.abl.split(',') and x.kind == 'store') or ('dw' in cfg.abl and t.startswith('ds_write')) or ('rd' in cfg.abl and t.startswith('ds_read_b128 v')) or ('pk' in cfg.abl and t.startswith('v_pk_mul')) or ('perm' in cfg.abl and 'permlane' in t) or ('wt' in cfg.abl and x.kind == 'wait' and x.need and x.need[0][1] in (['OR0'], ['OR1'], ['OR2'], ['OR3'])) or ('ones' in cfg.abl and x.kind == 'mfma' and 'v[32:35]' in t) or
                    ('epi' in cfg.abl and (t.startswith('v_mul_f32 v1') or t.startswith('v_mul_f32 v2') or t.startswith('ds_write') or t.startswith('ds_read_b128 v') or (t.startswith('v_cvt') and int(t.split()[1][1:-1]) >= 128))))
        body = [x for x in body if not drop(x)]
    init, n1 = fix_hazards(init); body, n2 = fix_hazards(body); drain, n3 = fix_hazards(drain)
    print("nops inserted", n1, n2, n3, file=sys.stderr)
    trace = init + body[ent(body):] + tail + (body + tail) * 5 + drain
    errs = check(trace)
    errs += dataflow(trace)
    written = {("s", 0), ("s", 1), ("s", 2), ("v", 0)}
    for x in trace:
        for r in x.rd:
            if r[0] in ("s", "m0") and r not in written: errs.append(f"uninitialised {r} read by [{x.text}]")
            if r[0] == "v" and r not in written and x.kind in ("dma", "vmem", "ds") : errs.append(f"uninitialised {r} read by [{x.text}]") if not x.text.startswith("ds_write") else None
        written.update(x.wr)
    seen = set()
    for e in errs:
        if e not in seen: print("ERR", e, file=sys.stderr); seen.add(e)
    tot = sum(x.cost for x in body)
    under = sum(1 for f in stats[1:] if f < 8)
    est = sum(8 + max(8, f) for f in stats[1:])
    seg = [sum(8 + max(8, f) for f in stats[1 + 136 * k:1 + 136 * (k + 1)]) for k in range(8)]
    print("est per 2 tiles", seg, file=sys.stderr)
    print(f"body instrs {len(body)} issue-cycles {tot} est cycles {est} underfilled gaps {under}", file=sys.stderr)
    hdr = open("header.txt").read()
    lines = [hdr, '.amdgcn_target "amdgcn-amd-amdhsa--gfx950"', ".text", f".globl {NAME}", ".p2align 8", f".type {NAME},@function", f"{NAME}:"]
    lines += ["  " + x.text for x in init]
    lines += [".p2align 3", "L_loop:"] + ["  " + x.text for x in body + tail]
    lines += ["  " + x.text for x in drain]
    if cfg.stamps:
        lines += ["""  s_waitcnt vmcnt(0) lgkmcnt(0)
  s_memtime s[70:71]
  s_memrealtime s[78:79]
  s_waitcnt lgkmcnt(0)
  v_writelane_b32 v44, s70, 49
  v_writelane_b32 v45, s72, 49
  v_writelane_b32 v50, s78, 54
  s_sub_u32 s78, s78, s76
  v_writelane_b32 v44, s78, 0
  v_writelane_b32 v45, s76, 0
  s_lshl_b32 s75, s2, 2
  s_add_u32 s75, s75, s%d
  s_lshl_b32 s75, s75, 9
  v_lshlrev_b32 v46, 3, v0
  buffer_store_dwordx2 v[44:45], v46, s[%d:%d], s75 offen
  s_add_u32 s94, s75, 0x100000
  v_lshlrev_b32 v46, 2, v0
  buffer_store_dword v50, v46, s[36:39], s94 offen
  s_cmp_lg_u32 s75, 0
  s_cbranch_scc1 L_end
  s_mov_b32 s84, s12
  s_mov_b32 s85, s13
  s_mov_b32 s86, 256
  s_mov_b32 s87, 0x00020000
  v_readlane_b32 s75, v45, 1
  v_add_u32 v46, 2, v0
  v_mul_u32_u24 v47, 43691, v46
  v_lshrrev_b32 v47, 17, v47
  v_mul_u32_u24 v48, 3, v47
  v_sub_u32 v48, v46, v48
  v_subrev_u32 v47, 1, v47
  v_subrev_u32 v49, s75, v44
  v_cmp_eq_u32 vcc, 0, v48
  v_mov_b32 v50, 1000
  v_cndmask_b32 v47, v50, v47, vcc
  v_cmp_lt_u32 vcc, 40, v0
  s_nop 1
  v_cndmask_b32 v47, v47, v50, vcc
  v_writelane_b32 v47, 14, 0
  v_writelane_b32 v47, 15, 49
  v_readlane_b32 s75, v44, 0
  s_nop 3
  v_writelane_b32 v49, s75, 0
  v_lshlrev_b32 v47, 2, v47
  buffer_store_dword v49, v47, s[84:87], 0 offen""" % (S_WAVE, S_W, S_W + 3)]
    lines += ["L_end:", "  s_endpgm"]
    if cfg.slow:
        import slow
        lines.append(slow.emit(globals()))
    else: lines.append(slow_stub())
    lines += ['.section .rodata,"a"', ".p2align 6", f".amdhsa_kernel {NAME}", "  .amdhsa_next_free_vgpr 512", "  .amdhsa_next_free_sgpr 102",
              "  .amdhsa_accum_offset 256", "  .amdhsa_group_segment_fixed_size 0", "  .amdhsa_kernarg_size 48", "  .amdhsa_user_sgpr_count 2",
              "  .amdhsa_user_sgpr_kernarg_segment_ptr 1", "  .amdhsa_system_sgpr_workgroup_id_x 1", ".end_amdhsa_kernel"]
    open(sys.argv[1], "w").write("\n".join(lines) + "\n")
    if errs and not cfg.abl: sys.exit(1)
main()
```

```python
import sys, math, struct
from asmlib import *

class Cfg:
    nt_q = False; nt_kv = False; nt_o = False
    thr_log2 = 32
    slow = True
    stamps = False
    seam_t = 28
    abl = ''
    pk = True
    burst8 = False
    o_pol = ''
    o_pol_last = ' sc0 sc1'
    cond_wt = 0
    codepf = False
    qd_tiles = [2, 3, 5, 6, 8, 9, 11, 12]
    qr_tiles = [6, 7, 9, 10]
    dw_gap = 1
    st_gap = 0
cfg = Cfg()
for a in sys.argv[2:]:
    k, v = a.split("="); setattr(cfg, k, eval(v))

NAME = "standalone__mha_softmax__near_ridge_kernel"
def f32(x): return struct.unpack("<I", struct.pack("<f", x))[0]
CSCALE = f32(128 ** -0.5 * math.log2(math.e))

V_KA = 2
V_VA = 6
V_DMA = 14
V_QOFF = 18; V_OOFF = 19
V_NEGM = 20
V_RINV = 24
V_T = 60
V_OT = (80, 84, 88, 92, 120, 124, 36, 40)
V_ONES = 32
V_QDMA = 48
V_QA = 52
V_OW = 56; V_OR = 57
V_QA2 = 58
V_L = 64
V_S = 96
V_P = 112
V_O = 128
A_Q = 0; A_QB = 64; A_K = 128; A_V = 192
S_Q, S_X, S_O, S_K, S_V, S_W = 16, 20, 24, 28, 32, 36
S_C, S_NC, S_THR, S_WAVE, S_LDSB, S_DOFF, S_INEXT, S_XCD = 40, 41, 42, 43, 44, 45, 46, 47
S_QNEXT, S_KVNEXT, S_QCUR, S_KVCUR, S_QPREV, S_KVPREV = 48, 49, 50, 51, 52, 53
S_BAD = 54
S_LOOP, S_RET, S_WPART, S_T0, S_T1, S_TQ, S_TO = 62, 63, 64, 65, 66, 67, 88
S_STG, S_WQ, S_STG2 = 80, 81, 82
STG = 131072
OOB = 0x40000000

def salu(t, rd=(), wr=(), **k): return Ins(t, "salu", [("s", x) if isinstance(x, int) else x for x in rd], [("s", x) if isinstance(x, int) else x for x in wr], **k)
def valu(t, rd=(), wr=(), kind="valu", **k): return Ins(t, kind, rd, wr, **k)
def V(n, c=1): return R("v", n, c)
def A(n, c=1): return R("a", n, c)
def Sg(n, c=1): return R("s", n, c)

def mfma(d, a, b, c):
    ct = "0" if c is None else rs("v", c, 4)
    t = f"v_mfma_f32_16x16x32_bf16 {rs('v', d, 4)}, {rs(a[0], a[1], 4)}, {rs(b[0], b[1], 4)}, {ct}"
    ab = R(a[0], a[1], 4) + R(b[0], b[1], 4)
    cc = [] if c is None else V(c, 4)
    return Ins(t, "mfma", ab + cc, V(d, 4), srcc=cc, ab=ab)

def QK(qb, T, g):
    out = []
    for kk in range(4):
        for t in range(2):
            d = V_S + 8 * (g % 2) + 4 * t
            out.append(mfma(d, ("a", A_K + 32 * (T % 2) + 16 * t + 4 * kk), ("a", A_Q + 64 * qb + 16 * g + 4 * kk), None if kk == 0 else d))
    return out
def PV(T, g, first):
    out = []
    p = ("v", V_P + 4 * (g % 2))
    for dt in range(8):
        d = V_O + 32 * g + 4 * dt
        out.append(mfma(d, ("a", A_V + 32 * (T % 2) + 4 * dt), p, None if first else d))
    d = V_L + 4 * g
    out.append(mfma(d, ("v", V_ONES), p, None if first else d))
    return out

def SM(g, first, cvt_min):
    s = V_S + 8 * (g % 2); p = V_P + 4 * (g % 2); nm = V_NEGM + g
    o = []
    if first:
        t0, t1 = V_T + 2 * (g % 2), V_T + 2 * (g % 2) + 1
        o.append(valu(f"v_max3_f32 v{t0}, v{s}, v{s+1}, v{s+2}", V(s, 3), V(t0)))
        o.append(valu(f"v_max3_f32 v{t1}, v{s+3}, v{s+4}, v{s+5}", V(s + 3, 3), V(t1)))
        o.append(valu(f"v_max3_f32 v{t0}, v{s+6}, v{s+7}, v{t0}", V(s + 6, 2) + V(t0), V(t0)))
        o.append(valu(f"v_max_f32 v{t0}, v{t0}, v{t1}", V(t0) + V(t1), V(t0)))
        o.append(valu(f"v_mov_b32 v{t1}, v{t0}", V(t0), V(t1)))
        o.append(valu(f"s_nop 1\n  v_permlane32_swap_b32 v{t1}, v{t0}", (), V(t0) + V(t1), cost=12))
        o.append(valu(f"v_max_f32 v{t0}, v{t0}, v{t1}", V(t0) + V(t1), V(t0)))
        o.append(valu(f"v_mov_b32 v{t1}, v{t0}", V(t0), V(t1)))
        o.append(valu(f"s_nop 1\n  v_permlane16_swap_b32 v{t1}, v{t0}", (), V(t0) + V(t1), cost=12))
        o.append(valu(f"v_max_f32 v{t0}, v{t0}, v{t1}", V(t0) + V(t1), V(t0)))
        o.append(valu(f"v_mul_f32 v{nm}, s{S_NC}, v{t0}", V(t0) + Sg(S_NC), V(nm)))
    def fma(r): return valu(f"v_fma_f32 v{s+r}, v{s+r}, s{S_C}, v{nm}", V(s + r) + V(nm) + Sg(S_C), V(s + r))
    def ex(r): return valu(f"v_exp_f32 v{s+r}, v{s+r}", V(s + r), V(s + r), kind="trans")
    def cvt(h): return valu(f"v_cvt_pk_bf16_f32 v{p+h}, v{s+2*h}, v{s+2*h+1}", V(s + 2 * h, 2), V(p + h), minpos=cvt_min, nogap=True)
    o += [fma(0), fma(1), ex(0), ex(1), fma(2), fma(3), ex(2), ex(3), cvt(0), fma(4), ex(4), cvt(1), fma(5), ex(5),
          fma(6), fma(7), ex(6), ex(7), cvt(2), cvt(3)]
    o[-1].nogap = False
    return o

def KREADS(T, tagp):
    o = []
    for kk in range(4):
        for t in range(2):
            d = A_K + 32 * (T % 2) + 16 * t + 4 * kk
            o.append(Ins(f"ds_read_b128 {rs('a', d, 4)}, v{V_KA+kk} offset:{(T % 8) * 8192 + t * 4096}", "ds", V(V_KA + kk), A(d, 4), tag=f"K{tagp}"))
    return o
def VREADS(T, tagp):
    o = []
    for dt in range(8):
        for h in range(2):
            d = A_V + 32 * (T % 2) + 4 * dt + 2 * h
            o.append(Ins(f"ds_read_b64_tr_b16 {rs('a', d, 2)}, v{V_VA+dt} offset:{(T % 8) * 8192 + h * 4096}", "ds", V(V_VA + dt), A(d, 2), tag=f"V{tagp}"))
    return o
def DMA(TT, how, tagp):
    o = []
    if how == "inc": o.append(salu(f"s_add_u32 s{S_DOFF}, s{S_DOFF}, 8192", [S_DOFF], [S_DOFF]))
    else: o.append(salu(f"s_add_u32 s{S_DOFF}, s{S_KVNEXT}, s{S_WPART}", [S_KVNEXT, S_WPART], [S_DOFF]))
    o.append(salu(f"s_add_u32 m0, s{S_LDSB}, {(TT % 8) * 8192}", [S_LDSB], [("m0", 0)]))
    nt = " nt" if cfg.nt_kv else ""
    for p in range(4):
        o.append(Ins(f"buffer_load_dwordx4 v{V_DMA+p}, {rs('s', S_X, 4)}, s{S_DOFF} offen offset:{1024*p}{nt} lds", "dma",
                     V(V_DMA + p) + Sg(S_X, 4) + Sg(S_DOFF) + [("m0", 0)], [], tag=f"D{tagp}", nogap=(p == 0), cost=(14 if p == 0 else 9)))
    return o
def QDMA(n, stg=S_STG):
    g_, c2 = n // 4, (n // 2) % 2
    o = []
    if n == 0: o.append(salu(f"s_add_u32 s{S_TQ}, s{S_QNEXT}, s{S_WQ}", [S_QNEXT, S_WQ], [S_TQ]))
    elif c2 == 0: o.append(salu(f"s_add_u32 s{S_TQ}, s{S_TQ}, 4096", [S_TQ], [S_TQ]))
    o.append(salu(f"s_add_u32 m0, s{stg}, {1024*(n%8) - 128*c2}", [stg], [("m0", 0)]))
    nt = " nt" if cfg.nt_q else ""
    for h in range(2):
        o.append(Ins(f"buffer_load_dwordx4 v{V_QDMA+h}, {rs('s', S_Q, 4)}, s{S_TQ} offen offset:{1024*h+128*c2}{nt} lds", "dma",
                     V(V_QDMA + h) + Sg(S_Q, 4) + Sg(S_TQ) + [("m0", 0)], [], tag=f"QD{n//2}", nogap=(h == 0), cost=(14 if h == 0 else 9)))
    return o
def QREAD(qb, n, va=V_QA, inbody=False):
    g_, c2 = n // 4, (n // 2) % 2
    o = [wait(("vm", [f"QD{n//2}"]), key=(f"wQD{qb}_{n}" if inbody else None))]
    for k2 in range(2):
        d = A_Q + 64 * qb + 16 * g_ + 4 * (2 * c2 + k2)
        o.append(Ins(f"ds_read_b128 {rs('a', d, 4)}, v{va+k2} offset:{1024*(n%8)}", "ds", V(va + k2), A(d, 4), tag=f"Q{qb}{g_}"))
    return o
def EPI(g, sq, site=None, pol=None):
    l = V_L + 4 * g; r = V_RINV + 2 * g; to = S_TO + g
    o = [valu(f"v_rcp_f32 v{r}, v{l}", V(l), V(r), kind="trans"),
         valu(f"v_cmp_ngt_f32 {rs('s', S_BAD+2*g, 2)}, s{S_THR}, v{l}", V(l) + Sg(S_THR), Sg(S_BAD + 2 * g, 2)),
         salu(f"s_add_u32 s{to}, s{sq}, {4096*g}", [sq], [to])]
    nt = cfg.o_pol if pol is None else pol
    a0 = V_O + 32 * g
    if cfg.pk:
        M = [valu(f"v_pk_mul_f32 v[{a0+e}:{a0+e+1}], v[{a0+e}:{a0+e+1}], v[{r}:{r+1}] op_sel_hi:[1,0]", V(a0 + e, 2) + V(r), V(a0 + e, 2)) for e in range(0, 32, 2)]
        M[0].cost = 16; M[0].late = True
        for x in M[1:]: x.glue = True; x.late = True
    else:
        M = [valu(f"v_mul_f32 v{a0+e}, v{a0+e}, v{r}", V(a0 + e) + V(r), V(a0 + e)) for e in range(32)]
    C = [valu(f"v_cvt_pk_bf16_f32 v{a0+h}, v{a0+2*h}, v{a0+2*h+1}", V(a0 + 2 * h, 2), V(a0 + h)) for h in range(16)]
    W = [Ins(f"ds_write_b64 v{V_OW}, {rs('v', a0 + 2 * h, 2)} offset:{32*h}", "ds", V(V_OW) + V(a0 + 2 * h, 2), [], tag="OW", cost=12) for h in range(8)]
    for x in W: x.delay = cfg.dw_gap
    ot = V_OT[4 * (g % 2):4 * (g % 2) + 4]
    RD = [Ins(f"ds_read_b128 {rs('v', ot[p], 4)}, v{V_OR} offset:{1088*p}", "ds", V(V_OR), V(ot[p], 4), tag=f"OR{g}") for p in range(4)]
    ST = [Ins(f"buffer_store_dwordx4 {rs('v', ot[p], 4)}, v{V_OOFF}, {rs('s', S_O, 4)}, s{to} offen offset:{1024*p}{nt}", "store",
              V(ot[p], 4) + V(V_OOFF) + Sg(S_O, 4) + Sg(to), [], tag="ST", cost=16) for p in range(4)]
    if cfg.cond_wt and pol is None:
        lab = f"L_wt{g}"
        alt = "\n  ".join(x.text + cfg.o_pol_last for x in ST)
        ST[0].text = f"s_cmp_lt_u32 s{S_LOOP}, {cfg.cond_wt}\n  s_cbranch_scc0 {lab}a\n  {alt}\n  s_branch {lab}b\n{lab}a:\n  " + ST[0].text
        ST[3].text = ST[3].text + f"\n{lab}b:"
        ST[0].cost += 8; ST[0].rd += Sg(S_LOOP)
    for x in ST[1:]:
        if cfg.st_gap: x.delay = cfg.st_gap
        else: x.glue = True
    wt = wait(("lgkm", [f"OR{g}"])); wt.delay = 6
    ev = o + M + C; em = W + RD; es = [wt] + ST
    o = es
    if site is not None:
        b = S_BAD
        o.append(salu(f"s_or_b64 s[{b}:{b+1}], s[{b}:{b+1}], s[{b+2}:{b+3}]", Sg(b, 4), Sg(b, 2)))
        o.append(salu(f"s_or_b64 s[{b+4}:{b+5}], s[{b+4}:{b+5}], s[{b+6}:{b+7}]", Sg(b + 4, 4), Sg(b + 4, 2)))
        o.append(salu(f"s_or_b64 s[{b}:{b+1}], s[{b}:{b+1}], s[{b+4}:{b+5}]\n  s_cbranch_scc1 L_slow{site}\nL_ret{site}:", Sg(b, 2) + Sg(b + 4, 2), Sg(b, 2), cost=8))
    return ev, em, es

def next_block_calc(pre_inc):
    o = []
    if pre_inc: o.append(salu(f"s_add_u32 s{S_INEXT}, s{S_INEXT}, 32", [S_INEXT], [S_INEXT]))
    o += [salu(f"s_mul_i32 s{S_T0}, s{S_INEXT}, 43691", [S_INEXT], [S_T0]),
          salu(f"s_lshr_b32 s{S_T0}, s{S_T0}, 17", [S_T0], [S_T0]),
          salu(f"s_lshl_b32 s{S_T1}, s{S_XCD}, 6", [S_XCD], [S_T1]),
          salu(f"s_add_u32 s{S_T0}, s{S_T0}, s{S_T1}", [S_T0, S_T1], [S_T0]),
          salu(f"s_lshl_b32 s{S_KVNEXT}, s{S_T0}, 17", [S_T0], [S_KVNEXT]),
          salu(f"s_mul_i32 s{S_T1}, s{S_XCD}, 192", [S_XCD], [S_T1]),
          salu(f"s_add_u32 s{S_T1}, s{S_T1}, s{S_INEXT}", [S_T1, S_INEXT], [S_T1]),
          salu(f"s_lshl_b32 s{S_QNEXT}, s{S_T1}, 16", [S_T1], [S_QNEXT]),
          salu(f"s_cmp_lt_u32 s{S_INEXT}, 192\n  s_cselect_b32 s{S_KVNEXT}, s{S_KVNEXT}, {OOB}\n  s_cselect_b32 s{S_QNEXT}, s{S_QNEXT}, {OOB}",
               [S_INEXT, S_KVNEXT, S_QNEXT], [S_KVNEXT, S_QNEXT], cost=12)]
    return o
def rotate():
    return [salu(f"s_mov_b32 s{S_QPREV}, s{S_QCUR}", [S_QCUR], [S_QPREV]), salu(f"s_mov_b32 s{S_KVPREV}, s{S_KVCUR}", [S_KVCUR], [S_KVPREV]),
            salu(f"s_mov_b32 s{S_QCUR}, s{S_QNEXT}", [S_QNEXT], [S_QCUR]), salu(f"s_mov_b32 s{S_KVCUR}, s{S_KVNEXT}", [S_KVNEXT], [S_KVCUR])]

DEAD = set()
def wait(*need, key=None):
    w = Ins("s_waitcnt ?", "wait", need=list(need)); w.tag = key
    if key is not None and key in DEAD: w.cost = 0; w.kind = "comment"; w.text = ""; w.need = None
    return w
def barrier(): return Ins("s_barrier", "barrier", cost=4)

G = 17
NVE = 51
def setmin(ops, m):
    for o in ops: o.minpos = max(o.minpos, m)
    return ops
def QCOPY(g_):
    return [valu(f"v_accvgpr_mov_b32 a{A_Q+16*g_+r}, a{A_QB+16*g_+r}", A(A_QB + 16 * g_ + r), A(A_Q + 16 * g_ + r)) for r in range(16)]
def sbar(*need, stamp=True):
    p = []
    if cfg.stamps and stamp: p.append(salu("s_memtime s[70:71]\n  s_memrealtime s[92:93]\n  v_mov_b32 v47, s72"))
    p += [wait(*need), barrier()]
    if cfg.stamps and stamp:
        p.append(valu("s_memtime s[72:73]\n  v_mov_b32 v46, s70\n  v_cmp_eq_u32 vcc, s74, v0\n  s_add_u32 s74, s74, 1\n  s_nop 0\n  v_cndmask_b32 v44, v44, v46, vcc\n  v_cndmask_b32 v45, v45, v47, vcc\n  v_mov_b32 v46, s92\n  v_cndmask_b32 v50, v50, v46, vcc", [], V(44, 2)))
    return p
def qread0(g_): return QREAD(0, 4 * g_, V_QA if g_ < 2 else V_QA2) + QREAD(0, 4 * g_ + 2, V_QA if g_ < 2 else V_QA2)
def build_prologue():
    bb = []; pre = {}; st = []; B = []
    for n in range(8):
        T, g = divmod(n, 4); T1, g1 = divmod(n + 1, 4); T0, g0 = divmod(n - 1, 4)
        base = len(bb); B.append(base)
        p = pre.setdefault(base, [])
        if n == 1: p += sbar(("vm", ["D1"]), ("lgkm", "all"))
        if n == 4: p += sbar(("vm", ["D2"]), ("lgkm", "all"), stamp=False)
        if g1 == 0: p.append(wait(("lgkm", [f"K{T1}"])))
        if T1 == 0: p.append(wait(("lgkm", [f"Q0{g1}"])))
        bb += QK(0, T1, g1)
        if n > 0:
            if g0 == 0: pre.setdefault(base + 8, []).append(wait(("lgkm", [f"V{T0}"])))
            bb += PV(T0, g0, T0 == 0)
    B.append(len(bb))
    for n in range(8):
        T, g = divmod(n, 4)
        st.append(Stream(f"SM{n}", SM(g, T == 0, B[n] - 1), (B[n - 1] + 12 if n else 0), B[n + 1] - 1))
    st.append(Stream("QR2", qread0(2), 4, B[1] - 1))
    st.append(Stream("QR3", qread0(3), B[1] + 8, B[2] - 3))
    for k, op in enumerate(KREADS(1, 1)): st.append(Stream(f"K1_{k}", [op], B[1] + 3 * k, B[1] + 3 * k + 4))
    for k, op in enumerate(VREADS(1, 1)): st.append(Stream(f"V1_{k}", [op], B[1] + (5 * k) // 2, B[1] + (5 * k) // 2 + 6))
    for k, op in enumerate(KREADS(2, 2)): st.append(Stream(f"K2_{k}", [op], B[4] + 5 * k, B[4] + 5 * k + 7))
    for k, op in enumerate(VREADS(2, 2)): st.append(Stream(f"V2_{k}", [op], B[5] - 1 + (5 * k) // 2, B[5] - 1 + (5 * k) // 2 + 6))
    d = []
    for TT, gi in ((3, 1), (4, 2), (5, 3), (6, 4), (7, 5), (8, 6)):
        x = DMA(TT, "inc", TT)
        for y in x[3:]: y.glue = True
        setmin(x, B[gi]); x[2].minpos = B[gi] + 3; x[2].maxpos = B[gi] + 10
        d += x
    st.append(Stream("D", d, B[1], B[8] - 1))
    st.append(Stream("NB", rotate() + next_block_calc(True), 0, B[4]))
    out, stats = schedule(bb, st, pre, lambda i: 12 if i < B[4] else 8)
    sb = sbar(("vm", ["D3", "D4"]), ("lgkm", "all"))
    k = [i_ for i_, x in enumerate(sb) if x.kind == "barrier"][0]
    return out + sb[:k] + [salu("s_branch L_entry")]

def build_body():
    bb = []; pre = {}; st = []
    NG = 64
    for n in range(NG):
        T, g = divmod(n, 4)
        n1 = (n + 1) % NG; T1, g1 = divmod(n1, 4)
        n0 = (n - 1) % NG; T0, g0 = divmod(n0, 4)
        base = G * n
        p = pre.setdefault(base, [])
        if n == 0: p += rotate()
        if g == 0 and T % 2 == 0:
            sb = sbar(("vm", [f"D{(T+1)%16}", f"D{(T+2)%16}"]), ("lgkm", "all"))
            if T == 2:
                for x in sb:
                    if x.kind == "wait": x.late = True
                k = [i_ for i_, x in enumerate(sb) if x.kind == "barrier"][0]
                sb.insert(k, Ins("L_entry:", "label", cost=0))
            p += sb
        if g1 == 0: p.append(wait(("lgkm", [f"K{T1}"]), key=f"wK{T1}"))
        if T1 == 0 and g1 >= 2: p.append(wait(("lgkm", [f"Q0{g1}"]), key=f"wQ{T1}{g1}"))
        bb += QK(0, T1, g1)
        if g0 == 0: pre.setdefault(base + 8, []).append(wait(("lgkm", [f"V{T0}"]), key=f"wV{T0}"))
        bb += PV(T0, g0, T0 == 0)
        rel = max(0, base - G + 12) if n != 8 else base
        st.append(Stream(f"SM{n}", SM(g, T == 0, base - 1), rel, base + G - 1))
        if g == 0:
            Tn = (T + 1) % 16; t = T
            for k, op in enumerate(KREADS(Tn, Tn)): st.append(Stream(f"K{Tn}_{k}", [op], base + 5 * k, base + 5 * k + 7))
            for k, op in enumerate(VREADS(Tn, Tn)): st.append(Stream(f"V{Tn}_{k}", [op], base + G - 1 + (5 * k) // 2, base + G - 1 + (5 * k) // 2 + 6))
            TT = (T + 7) % 16
            d = DMA(TT, "next" if t == 9 else "inc", TT)
            for x in d[3:]: x.glue = True
            d[2].minpos = base + 3; d[2].maxpos = base + (G if t else 3 * G)
            if t in cfg.qd_tiles:
                qd = QDMA(2 * cfg.qd_tiles.index(t)); qd[-1].glue = True
                setmin(qd[-2:], base + 3 * G + 1)
                d += qd
            st.append(Stream(f"D{TT}", d, base, base + 4 * G - 1))
            if t == 0: st.append(Stream(f"NB{T}", next_block_calc(True), base, base + 3 * G))
            if t in cfg.qr_tiles: st.append(Stream(f"QR{T}", QREAD(1, 2 * cfg.qr_tiles.index(t), inbody=True), base + G, base + 3 * G - 2))
            if t == 15:
                st.append(Stream("QC0", QCOPY(0), base - G + 8, base + 3 * G - 3))
                st.append(Stream("QC1", QCOPY(1), base + 8, base + 4 * G - 1))
                st.append(Stream("QR2", QREAD(0, 8, inbody=True) + QREAD(0, 10, inbody=True), base + G + 8, base + 2 * G + 7))
                st.append(Stream("QR3", QREAD(0, 12, inbody=True) + QREAD(0, 14, inbody=True), base + 2 * G + 8, base + 3 * G + 1, prio=30))
        if T == 15 and g == 1:
            e0 = EPI(0, S_QCUR); e1 = EPI(1, S_QCUR)
            st.append(Stream("E_v0", e0[0], base + G + 5, base + 2 * G + 1))
            st.append(Stream("E_m0", e0[1], base + 2 * G + 2, base + 3 * G - 1, prio=30))
            st.append(Stream("E_v1", e1[0], base + 2 * G + 5, base + 3 * G - 1))
        if n == 0:
            e0 = EPI(0, S_QCUR); e1 = EPI(1, S_QCUR); e2 = EPI(2, S_QPREV); e3 = EPI(3, S_QPREV, site=0)
            st.append(Stream("E_v2", e2[0], base + 4, base + G + 8))
            st.append(Stream("E_v3", e3[0], base + G + 9, base + 2 * G + 14))
            e1[1][-1].maxpos = base + G + 8; e2[1][-1].maxpos = base + 3 * G + 5
            if cfg.burst8:
                e1[2][1].glue = True; e3[2][1].glue = True
                c1 = [e1[2][0]] + e0[2][1:] + e1[2][1:]
                c2 = [e3[2][0]] + e2[2][1:] + e3[2][1:]
                chain = e1[1] + c1 + setmin(e2[1], base + G + 9) + setmin(e3[1], base + 2 * G + 15)
                chain[-1].maxpos = base + 4 * G + 5
                c2[1].maxpos = base + 4 * G + 14
                chain += c2
            else:
                chain = e1[1] + e0[2] + setmin(e2[1], base + G + 9) + e1[2] + setmin(e3[1], base + 2 * G + 15)
                chain[-1].maxpos = base + 4 * G + 5
                sg = max(cfg.st_gap, 2)
                for k, x in enumerate(e2[2][:5] + e3[2][:5]): x.maxpos = base + 4 * G + 12 + sg * k
                chain += e2[2] + e3[2]
            st.append(Stream("E_m", chain, base, base + 4 * G + 14 + max(cfg.st_gap, 2) * 10, prio=10))
    def tfn(i):
        n = i // G; T = (n // 4) % 16
        if T == 15 and i % (4 * G) >= 2 * G + 4: return cfg.seam_t
        if T == 0: return cfg.seam_t
        return 8
    return schedule(bb, st, pre, tfn)

def build_drain():
    bb = PV(15, 3, False)
    pre = {0: rotate()}
    e0 = EPI(0, S_QCUR, pol=cfg.o_pol_last); e1 = EPI(1, S_QCUR, pol=cfg.o_pol_last); e2 = EPI(2, S_QPREV, pol=cfg.o_pol_last); e3 = EPI(3, S_QPREV, site=1, pol=cfg.o_pol_last)
    seq = e0[2] + e1[1] + setmin(e2[0], 3) + e1[2] + e2[1] + setmin(e3[0], 8) + e2[2] + e3[1] + e3[2]
    for x in seq: x.delay = 0
    st = [Stream("E", seq, 0, 8)]
    out, stats = schedule(bb, st, pre, lambda i: 24)
    return out

def build_init():
    o = []
    def s(t, rd=(), wr=()): o.append(salu(t, rd, wr))
    def v(t, rd=(), wr=()): o.append(valu(t, rd, wr))
    if cfg.stamps: s("s_memrealtime s[94:95]")
    s("s_cmp_ge_u32 s2, 256\n  s_cbranch_scc1 L_end")
    s("s_load_dwordx8 s[4:11], s[0:1], 0", [], list(range(4, 12)))
    s("s_load_dwordx4 s[12:15], s[0:1], 32", [], list(range(12, 16)))
    v("v_lshrrev_b32 v1, 6, v0", V(0), V(1))
    v("v_and_b32 v0, 63, v0", V(0), V(0))
    v(f"v_readfirstlane_b32 s{S_WAVE}, v1", V(1), Sg(S_WAVE))
    v("v_and_b32 v36, 15, v0", V(0), V(36)); v("v_lshrrev_b32 v37, 4, v0", V(0), V(37)); v("v_lshrrev_b32 v38, 2, v0", V(0), V(38))
    s(f"s_lshr_b32 s{S_T0}, s{S_WAVE}, 1", [S_WAVE], [S_T0])
    s(f"s_and_b32 s{S_T1}, s{S_WAVE}, 1", [S_WAVE], [S_T1])
    s(f"s_lshl_b32 s{S_WPART}, s{S_T1}, 12", [S_T1], [S_WPART])
    s(f"s_lshl_b32 s{S_LDSB}, s{S_T0}, 16", [S_T0], [S_LDSB])
    s(f"s_add_u32 s{S_LDSB}, s{S_LDSB}, s{S_WPART}", [S_LDSB, S_WPART], [S_LDSB])
    s(f"s_lshr_b32 s{S_TQ}, 15, s{S_T0}", [S_T0], [S_TQ])
    for p in range(4):
        v(f"v_add_u32 v39, {4*p}, v37", V(37), V(39)); v(f"v_and_b32 v39, s{S_TQ}, v39", V(39) + Sg(S_TQ), V(39))
        v(f"v_lshlrev_b32 v39, s{S_T0}, v39", V(39) + Sg(S_T0), V(39)); v("v_xor_b32 v39, v39, v36", V(39) + V(36), V(39))
        v("v_lshlrev_b32 v39, 4, v39", V(39), V(39)); v(f"v_lshl_add_u32 v{V_DMA+p}, v37, 8, v39", V(37) + V(39), V(V_DMA + p))
    v("v_lshrrev_b32 v39, 3, v0", V(0), V(39)); v("v_and_b32 v40, 6, v39", V(39), V(40)); v("v_and_b32 v41, 7, v0", V(0), V(41))
    v("v_xor_b32 v40, v40, v41", V(40) + V(41), V(40)); v("v_lshlrev_b32 v40, 4, v40", V(40), V(40))
    v(f"v_lshl_add_u32 v{V_QDMA}, v39, 8, v40", V(39) + V(40), V(V_QDMA)); v(f"v_add_u32 v{V_QDMA+1}, 1024, v{V_QDMA}", V(V_QDMA), V(V_QDMA + 1))
    s(f"s_lshl_b32 s{S_WQ}, s{S_WAVE}, 14", [S_WAVE], [S_WQ])
    s(f"s_lshl_b32 s{S_STG}, s{S_WAVE}, 13", [S_WAVE], [S_STG]); s(f"s_add_u32 s{S_STG}, s{S_STG}, {STG}", [S_STG], [S_STG])
    s(f"s_lshl_b32 s{S_STG2}, s{S_T0}, 16", [S_T0], [S_STG2]); s(f"s_lshl_b32 s{S_T1}, s{S_WPART}, 1", [S_WPART], [S_T1])
    s(f"s_add_u32 s{S_STG2}, s{S_STG2}, s{S_T1}", [S_STG2, S_T1], [S_STG2]); s(f"s_add_u32 s{S_STG2}, s{S_STG2}, {6*8192}", [S_STG2], [S_STG2])
    s(f"s_and_b32 s{S_XCD}, s2, 7", [], [S_XCD]); s(f"s_lshr_b32 s{S_INEXT}, s2, 3", [], [S_INEXT])
    early = o; o = late = []
    for kk in range(4):
        v(f"v_or_b32 v39, {4*kk}, v37", V(37), V(39)); v("v_xor_b32 v39, v39, v36", V(39) + V(36), V(39))
        v("v_lshlrev_b32 v39, 4, v39", V(39), V(39)); v(f"v_lshl_add_u32 v{V_KA+kk}, v36, 8, v39", V(36) + V(39), V(V_KA + kk))
    v("v_and_b32 v40, 7, v38", V(38), V(40)); v("v_and_b32 v41, 3, v0", V(0), V(41)); v("v_lshlrev_b32 v41, 3, v41", V(41), V(41))
    v("v_lshl_add_u32 v41, v38, 8, v41", V(38) + V(41), V(41)); v("v_add_u32 v41, 0x10000, v41", V(41), V(41))
    for dt in range(8):
        v(f"v_xor_b32 v39, {dt}, v40", V(40), V(39)); v(f"v_lshl_add_u32 v{V_VA+dt}, v39, 5, v41", V(39) + V(41), V(V_VA + dt))
    v("v_and_b32 v40, 6, v36", V(36), V(40)); v("v_and_b32 v41, 7, v36", V(36), V(41)); v("v_lshrrev_b32 v42, 3, v36", V(36), V(42))
    v("v_lshlrev_b32 v41, 7, v41", V(41), V(41)); v("v_lshl_add_u32 v41, v42, 10, v41", V(42) + V(41), V(41))
    for k2 in range(2):
        v(f"v_or_b32 v39, {4*k2}, v37", V(37), V(39)); v("v_xor_b32 v39, v39, v40", V(39) + V(40), V(39))
        v("v_lshl_add_u32 v39, v39, 4, v41", V(39) + V(41), V(39))
        v(f"v_add_u32 v{V_QA+k2}, s{S_STG}, v39", V(39) + Sg(S_STG), V(V_QA + k2))
        v(f"v_add_u32 v{V_QA2+k2}, s{S_STG2}, v39", V(39) + Sg(S_STG2), V(V_QA2 + k2))
    v(f"v_lshlrev_b32 v39, 4, v0", V(0), V(39)); v(f"v_add_u32 v{V_OOFF}, s{S_WQ}, v39", V(39) + Sg(S_WQ), V(V_OOFF))
    v("v_mul_u32_u24 v39, 272, v36", V(36), V(39)); v("v_lshl_add_u32 v39, v37, 3, v39", V(37) + V(39), V(39))
    v(f"v_add_u32 v{V_OW}, s{S_STG}, v39", V(39) + Sg(S_STG), V(V_OW))
    v("v_mul_u32_u24 v39, 272, v37", V(37), V(39)); v("v_lshl_add_u32 v39, v36, 4, v39", V(36) + V(39), V(39))
    v(f"v_add_u32 v{V_OR}, s{S_STG}, v39", V(39) + Sg(S_STG), V(V_OR))
    v("v_and_b32 v39, 3, v0", V(0), V(39)); v("v_cmp_eq_u32 vcc, 0, v39", V(39), [("vcc", 0)]); v("v_mov_b32 v40, 0x3f803f80", [], V(40))
    v("v_mov_b32 v39, 0", [], V(39))
    for e in range(4): v(f"v_cndmask_b32 v{V_ONES+e}, v39, v40, vcc", V(39) + V(40) + [("vcc", 0)], V(V_ONES + e))
    for r in list(range(V_L, V_L + 16)) + list(range(V_P, V_P + 8)): v(f"v_mov_b32 v{r}, 0", [], V(r))
    s(f"s_mov_b32 s{S_C}, 0x{CSCALE:08x}", [], [S_C]); s(f"s_mov_b32 s{S_NC}, 0x{CSCALE | 0x80000000:08x}", [], [S_NC])
    s(f"s_mov_b32 s{S_THR}, 0x{f32(2.0 ** cfg.thr_log2):08x}", [], [S_THR])
    for r in range(S_BAD, S_BAD + 8): s(f"s_mov_b32 s{r}, 0", [], [r])
    for r in range(S_TO, S_TO + 4): s(f"s_mov_b32 s{r}, {OOB}", [], [r])
    s(f"s_mov_b32 s{S_QCUR}, {OOB}", [], [S_QCUR]); s(f"s_mov_b32 s{S_KVCUR}, {OOB}", [], [S_KVCUR])
    s(f"s_mov_b32 s{S_LOOP}, 5", [], [S_LOOP])
    if cfg.stamps:
        s("s_mov_b32 s74, 1\n  s_memtime s[72:73]\n  s_memrealtime s[76:77]\n v_mov_b32 v44, 0\n v_mov_b32 v45, 0\n v_mov_b32 v50, 0")
    o = early
    o += next_block_calc(False)
    s("s_waitcnt lgkmcnt(0)")
    if cfg.stamps: s("s_memrealtime s[96:97]")
    for srd, ptr, size in ((S_Q, 4, 0x6000000), (S_O, 10, 0x6000000), (S_K, 6, 0x4000000), (S_V, 8, 0x4000000), (S_W, 14, 402653184)):
        o = early if srd == S_Q else late
        s(f"s_mov_b32 s{srd}, s{ptr}", [ptr], [srd]); s(f"s_mov_b32 s{srd+1}, s{ptr+1}", [ptr + 1], [srd + 1])
        s(f"s_mov_b32 s{srd+2}, {size}", [], [srd + 2]); s(f"s_mov_b32 s{srd+3}, 0x00020000", [], [srd + 3])
    o = early
    s(f"s_cmp_ge_u32 s{S_WAVE}, 2\n  s_cselect_b32 s{S_X}, s8, s6\n  s_cselect_b32 s{S_X+1}, s9, s7", [S_WAVE, 6, 7, 8, 9], [S_X, S_X + 1])
    s(f"s_mov_b32 s{S_X+2}, 0x4000000", [], [S_X + 2]); s(f"s_mov_b32 s{S_X+3}, 0x00020000", [], [S_X + 3])
    def dma(TT, how):
        d = DMA(TT, how, TT); return d[:2] + [salu("s_nop 0")] + d[2:]
    def qdma(g_):
        r = []
        for n in (4 * g_, 4 * g_ + 2):
            d = QDMA(n, S_STG if g_ < 2 else S_STG2); r += d[:-2] + [salu("s_nop 0")] + d[-2:]
        return r
    def qread(g_): return QREAD(0, 4 * g_, V_QA if g_ < 2 else V_QA2) + QREAD(0, 4 * g_ + 2, V_QA if g_ < 2 else V_QA2)
    o += dma(0, "first") + qdma(0) + qdma(1) + qdma(2)
    if cfg.codepf:
        s("s_getpc_b64 s[84:85]\nL_pf:", [], [84, 85]); s("s_and_b32 s84, s84, 0xffffffc0", [84], [84]); s("s_mov_b32 s86, L_end-L_pf", [], [86]); s("s_mov_b32 s87, 0x00020000", [], [87])
        s(f"s_lshl_b32 s83, s{S_WAVE}, 13", [S_WAVE], [83]); v("v_lshlrev_b32 v51, 6, v0", V(0), V(51)); s("s_add_u32 s69, s83, 4096", [83], [69])
        o.append(Ins("buffer_load_dword v54, v51, s[84:87], s83 offen", "vmem", V(51) + Sg(84, 4) + Sg(83), V(54), tag="PF"))
        o.append(Ins("buffer_load_dword v55, v51, s[84:87], s69 offen", "vmem", V(51) + Sg(84, 4) + Sg(69), V(55), tag="PF"))
    o += late
    if cfg.stamps: s("s_memrealtime s[98:99]")
    o += [wait(("vm", ["D0"])), barrier()]
    if cfg.stamps: s("s_memrealtime s[100:101]\n  s_waitcnt lgkmcnt(0)\n  v_writelane_b32 v50, s94, 50\n  v_writelane_b32 v50, s96, 51\n  v_writelane_b32 v50, s98, 52\n  v_writelane_b32 v50, s100, 53")
    o += KREADS(0, 0) + dma(1, "inc") + qread0(0) + VREADS(0, 0) + qdma(3)
    o += [wait(("lgkm", ["K0", "Q00"]))]
    qk = QK(0, 0, 0)
    o += qk[:4] + qread0(1) + qk[4:] + dma(2, "inc")
    return o

def slow_stub():
    t = []
    for site in range(2):
        t.append(f"L_slow{site}:\n  s_branch L_ret{site}")
    return "\n".join(t)

def dataflow(trace):
    errs = []; stt = {}; cnt = {}
    inS = lambda r: r[0] == "v" and V_S <= r[1] < V_S + NS
    inP = lambda r: r[0] == "v" and V_P <= r[1] < V_P + 8
    inO = lambda r: r[0] == "v" and (V_O <= r[1] < V_O + 128 or V_L <= r[1] < V_L + 16)
    for x in trace:
        t = x.text
        if x.kind == "mfma":
            for r in x.wr:
                if inS(r):
                    if cnt.get(r, 4) == 4:
                        if stt.get(r, "c") != "c": errs.append(f"S overwritten before consumed {r} [{t}]")
                        cnt[r] = 1
                    else: cnt[r] += 1
                    stt[r] = "m"
                if inO(r):
                    if not x.srcc:
                        if stt.get(r, "done") != "done": errs.append(f"O overwritten before stored {r} [{t}]")
                        cnt[r] = 1
                    else: cnt[r] = cnt.get(r, 15) + 1
                    stt[r] = "acc"
            for r in x.ab:
                if inP(r):
                    if stt.get(r, "new") != "new": errs.append(f"P read when not new {r} [{t}]")
                    cnt[r] = cnt.get(r, 0) + 1
                    if cnt[r] == 9: stt[r] = "used"; cnt[r] = 0
        else:
            for r in x.rd:
                if inS(r) and cnt.get(r, 4) != 4: errs.append(f"S read while partial {r} [{t}]")
                if inS(r) and t.startswith("v_cvt"): stt[r] = "c"
                if inO(r) and stt.get(r) == "acc" and cnt.get(r) != 16: errs.append(f"O read early {r} cnt {cnt.get(r)} [{t}]")
            if t.startswith("ds_write") and EPI_LAST_W in t:
                a0 = x.rd[1][1] - 14
                for k in range(32): stt[("v", a0 + k)] = "done"
            if t.startswith("v_cmp_ngt"):
                for k in range(4): stt[("v", x.rd[0][1] + k)] = "done"
            for r in x.wr:
                if inP(r) and t.startswith("v_cvt"):
                    if stt.get(r, "used") != "used": errs.append(f"P overwritten before used {r} [{t}]")
                    stt[r] = "new"; cnt[r] = 0
    return errs
def ldsflow(trace):
    import re
    errs = []
    vm = []; lg = []
    vis = {}
    rdst = {}
    m0 = None
    def region_of_read(x):
        t = x.text; off = int(re.search(r"offset:(\d+)", t).group(1)); a = x.rd[0][1]
        if V_KA <= a < V_KA + 4: return [("ring", off // 8192)]
        if V_VA <= a < V_VA + 8: return [("ring", off // 8192)]
        if a in (V_QA, V_QA + 1): return [("stg", off // 1024), ("stg", off // 1024 + 1)]
        if a in (V_QA2, V_QA2 + 1): return [("ring", 6), ("ring", 7), ("stg2", off // 1024), ("stg2", off // 1024 + 1)]
        return None
    for x in trace:
        t = x.text
        if x.kind == "salu" and " m0," in t:
            m = re.search(r"m0, s(\d+), (-?\d+)", t); m0 = (int(m.group(1)), int(m.group(2)))
        if x.kind == "dma":
            off = int(re.search(r"offset:(\d+)", t).group(1))
            if m0[0] == S_LDSB: reg = ("ring", m0[1] // 8192); shared = True
            elif m0[0] == S_STG: reg = ("stg", (m0[1] + off) // 1024); shared = False
            else: reg = ("stg2", (m0[1] + off) // 1024); shared = False
            st_ = rdst.get(reg, "free")
            if st_ == "pending" or (shared and st_ != "free"): errs.append(f"LDS WAR: DMA into {reg} while reads {st_} [{t}]")
            vis[reg] = "flight"; vm.append(reg)
        elif x.kind in ("vmem", "store"): vm.append(None)
        elif x.kind == "ds":
            regs = region_of_read(x) if t.startswith("ds_read") else None
            if regs:
                for reg in regs:
                    if reg[0] == "ring" and len(regs) > 1: rdst[reg] = "pending"; continue
                    need = "visible" if reg[0] == "ring" else "landed"
                    if vis.get(reg) != need and not (need == "landed" and vis.get(reg) == "visible"): errs.append(f"LDS RAW: read of {reg} state {vis.get(reg)} [{t}]")
                    rdst[reg] = "pending"
            if t.startswith("ds_write"):
                for k in range(5):
                    if vis.get(("stg", k)) == "flight": errs.append(f"O staging write while Q DMA in flight [{t}]")
            if t.startswith("ds_read_b128 v"): regs = [("stg", k) for k in range(5)]; [rdst.__setitem__(r, "pending") for r in regs]
            lg.append(regs or [])
        elif x.kind == "wait":
            m = re.search(r"vmcnt\((\d+)\)", t)
            if m:
                N = int(m.group(1)); done = vm[:max(0, len(vm) - N)]; vm = vm[len(done):]
                for reg in done:
                    if reg is not None and reg not in vm: vis[reg] = "landed"
            m = re.search(r"lgkmcnt\((\d+)\)", t)
            if m:
                N = int(m.group(1)); done = lg[:max(0, len(lg) - N)]; lg = lg[len(done):]
                still = {r for l in lg for r in l}
                for l in done:
                    for reg in l:
                        if reg not in still: rdst[reg] = "retired"
        elif x.kind == "barrier":
            for reg, v_ in vis.items():
                if v_ == "landed": vis[reg] = "visible"
            for reg, v_ in rdst.items():
                if v_ == "retired": rdst[reg] = "free"
    return errs
EPI_LAST_W = "offset:224"
NS = 16
def main():
    tail = [salu(f"s_sub_u32 s{S_LOOP}, s{S_LOOP}, 1\n  s_cbranch_scc0 L_loop", [S_LOOP], [S_LOOP], cost=8)]
    for it in range(3):
        init = build_init()
        body, stats = build_body()
        drain = build_drain()
        init += build_prologue()
        ent = lambda bd: [k for k, x in enumerate(bd) if x.text == "L_entry:"][0]
        trace = init + body[ent(body):] + tail + (body + tail) * 5 + drain
        best = resolve_waits(trace)
        for l in (init, body, drain): apply_waits(l, best)
        dead = lambda x: (x.kind == "wait" and x.need is not None and x.text == "s_nop 0") or x.kind == "comment"
        nd = {x.tag for x in body if x.kind == "wait" and dead(x) and x.tag}
        if nd <= DEAD: break
        DEAD.update(nd)
    init = [x for x in init if not dead(x)]; body = [x for x in body if not dead(x)]; drain = [x for x in drain if not dead(x)]
    if cfg.abl:
        def drop(x):
            t = x.text
            return (('exp' in cfg.abl and t.startswith('v_exp')) or ('fma' in cfg.abl and t.startswith('v_fma')) or
                    ('ds' in cfg.abl and t.startswith('ds_read') and ' a[' in t) or ('dma' in cfg.abl and x.kind == 'dma') or
                    ('bar' in cfg.abl and x.kind == 'barrier') or ('cvt' in cfg.abl and t.startswith('v_cvt') and int(t.split()[1][1:-1]) < 128) or
                    ('st' in cfg.abl.split(',') and x.kind == 'store') or ('dw' in cfg.abl and t.startswith('ds_write')) or ('rd' in cfg.abl and t.startswith('ds_read_b128 v')) or ('pk' in cfg.abl and t.startswith('v_pk_mul')) or ('perm' in cfg.abl and 'permlane' in t) or ('wt' in cfg.abl and x.kind == 'wait' and x.need and x.need[0][1] in (['OR0'], ['OR1'], ['OR2'], ['OR3'])) or ('ones' in cfg.abl and x.kind == 'mfma' and 'v[32:35]' in t) or
                    ('epi' in cfg.abl and (t.startswith('v_mul_f32 v1') or t.startswith('v_mul_f32 v2') or t.startswith('ds_write') or t.startswith('ds_read_b128 v') or (t.startswith('v_cvt') and int(t.split()[1][1:-1]) >= 128))))
        body = [x for x in body if not drop(x)]
    init, n1 = fix_hazards(init); body, n2 = fix_hazards(body); drain, n3 = fix_hazards(drain)
    print("nops inserted", n1, n2, n3, file=sys.stderr)
    trace = init + body[ent(body):] + tail + (body + tail) * 5 + drain
    errs = check(trace)
    errs += dataflow(trace) + ldsflow(trace)
    written = {("s", 0), ("s", 1), ("s", 2), ("v", 0)}
    for x in trace:
        for r in x.rd:
            if r[0] in ("s", "m0") and r not in written: errs.append(f"uninitialised {r} read by [{x.text}]")
            if r[0] == "v" and r not in written and x.kind in ("dma", "vmem", "ds") : errs.append(f"uninitialised {r} read by [{x.text}]") if not x.text.startswith("ds_write") else None
        written.update(x.wr)
    seen = set()
    for e in errs:
        if e not in seen: print("ERR", e, file=sys.stderr); seen.add(e)
    tot = sum(x.cost for x in body)
    under = sum(1 for f in stats[1:] if f < 8)
    est = sum(8 + max(8, f) for f in stats[1:])
    seg = [sum(8 + max(8, f) for f in stats[1 + 136 * k:1 + 136 * (k + 1)]) for k in range(8)]
    print("est per 2 tiles", seg, file=sys.stderr)
    print(f"body instrs {len(body)} issue-cycles {tot} est cycles {est} underfilled gaps {under}", file=sys.stderr)
    hdr = open("header.txt").read()
    lines = [hdr, '.amdgcn_target "amdgcn-amd-amdhsa--gfx950"', ".text", f".globl {NAME}", ".p2align 8", f".type {NAME},@function", f"{NAME}:"]
    lines += ["  " + x.text for x in init]
    lines += [".p2align 3", "L_loop:"] + ["  " + x.text for x in body + tail]
    lines += ["  " + x.text for x in drain]
    if cfg.stamps:
        lines += ["""  s_waitcnt vmcnt(0) lgkmcnt(0)
  s_memtime s[70:71]
  s_memrealtime s[78:79]
  s_waitcnt lgkmcnt(0)
  v_writelane_b32 v44, s70, 49
  v_writelane_b32 v45, s72, 49
  v_writelane_b32 v50, s78, 54
  s_sub_u32 s78, s78, s76
  v_writelane_b32 v44, s78, 0
  v_writelane_b32 v45, s76, 0
  s_lshl_b32 s75, s2, 2
  s_add_u32 s75, s75, s%d
  s_lshl_b32 s75, s75, 9
  v_lshlrev_b32 v46, 3, v0
  buffer_store_dwordx2 v[44:45], v46, s[%d:%d], s75 offen
  s_add_u32 s94, s75, 0x100000
  v_lshlrev_b32 v46, 2, v0
  buffer_store_dword v50, v46, s[36:39], s94 offen
  s_cmp_lg_u32 s75, 0
  s_cbranch_scc1 L_end
  s_mov_b32 s84, s12
  s_mov_b32 s85, s13
  s_mov_b32 s86, 256
  s_mov_b32 s87, 0x00020000
  v_readlane_b32 s75, v45, 1
  v_add_u32 v46, 2, v0
  v_mul_u32_u24 v47, 43691, v46
  v_lshrrev_b32 v47, 17, v47
  v_mul_u32_u24 v48, 3, v47
  v_sub_u32 v48, v46, v48
  v_subrev_u32 v47, 1, v47
  v_subrev_u32 v49, s75, v44
  v_cmp_eq_u32 vcc, 0, v48
  v_mov_b32 v50, 1000
  v_cndmask_b32 v47, v50, v47, vcc
  v_cmp_lt_u32 vcc, 40, v0
  s_nop 1
  v_cndmask_b32 v47, v47, v50, vcc
  v_writelane_b32 v47, 14, 0
  v_writelane_b32 v47, 15, 49
  v_readlane_b32 s75, v44, 0
  s_nop 3
  v_writelane_b32 v49, s75, 0
  v_lshlrev_b32 v47, 2, v47
  buffer_store_dword v49, v47, s[84:87], 0 offen""" % (S_WAVE, S_W, S_W + 3)]
    lines += ["L_end:", "  s_endpgm"]
    if cfg.slow:
        import slow
        lines.append(slow.emit(globals()))
    else: lines.append(slow_stub())
    lines += ['.section .rodata,"a"', ".p2align 6", f".amdhsa_kernel {NAME}", "  .amdhsa_next_free_vgpr 512", "  .amdhsa_next_free_sgpr 102",
              "  .amdhsa_accum_offset 256", "  .amdhsa_group_segment_fixed_size 0", "  .amdhsa_kernarg_size 48", "  .amdhsa_user_sgpr_count 2",
              "  .amdhsa_user_sgpr_kernarg_segment_ptr 1", "  .amdhsa_system_sgpr_workgroup_id_x 1", ".end_amdhsa_kernel"]
    open(sys.argv[1], "w").write("\n".join(lines) + "\n")
    if errs and not cfg.abl: sys.exit(1)
main()
```

```python
import re

def R(kind, lo, n=1):
    return [(kind, lo + i) for i in range(n)]
def rs(kind, lo, n=1):
    return f"{kind}{lo}" if n == 1 else f"{kind}[{lo}:{lo+n-1}]"

class Ins:
    __slots__ = ("text", "kind", "rd", "wr", "cost", "tag", "need", "srcc", "nogap", "id", "ab", "minpos", "delay", "maxpos", "glue", "late", "last", "cntst")
    _n = 0
    def __init__(self, text, kind, rd=(), wr=(), cost=None, tag=None, need=None, srcc=(), nogap=False, ab=(), minpos=-99):
        self.text = text; self.kind = kind; self.rd = list(rd); self.wr = list(wr)
        self.cost = cost if cost is not None else {"mfma": 8, "trans": 8}.get(kind, 4)
        self.tag = tag
        self.need = need
        self.srcc = list(srcc)
        self.ab = list(ab)
        self.nogap = nogap
        self.minpos = minpos; self.delay = 0; self.maxpos = 10**9; self.glue = False; self.late = False; self.last = False; self.cntst = False
        Ins._n += 1; self.id = Ins._n
    def __repr__(self): return self.text

class Stream:
    def __init__(self, name, ops, release, deadline, prio=0):
        self.name = name; self.ops = list(ops); self.release = release; self.deadline = deadline
        self.pos = 0; self.lastgap = -10; self.prio = prio
    def head(self): return self.ops[self.pos] if self.pos < len(self.ops) else None

VALUK = ("valu", "trans", "perm")
BULK = "EN"

def schedule(backbone, streams, pre=None, tfn=None):
    pre = pre or {}
    out = []
    n = len(backbone)
    stats = []
    streams = sorted(streams, key=lambda s: s.release)
    active = []; nxt = 0
    for i in range(-1, n):
        gap = []
        if i >= 0: out.append(backbone[i])
        while nxt < len(streams) and streams[nxt].release <= i:
            active.append(streams[nxt]); nxt += 1
        fixed = pre.get(i + 1, [])
        fill = sum(x.cost for x in fixed)
        def take(s):
            nonlocal fill
            op = s.head(); s.pos += 1; s.lastgap = i; gap.append(op); fill += op.cost
            while s.head() is not None and s.head().glue:
                op = s.head(); s.pos += 1; gap.append(op); fill += op.cost
        for s in active:
            if s.deadline <= i:
                while s.head() is not None: take(s)
            else:
                while any(o.maxpos <= i for o in s.ops[s.pos:]): take(s)
                rem = sum(1 for o in s.ops[s.pos + 1:] if o.nogap)
                if s.head() is not None and s.deadline - i <= rem and not (s.head().nogap and s.lastgap == i) and s.head().minpos <= i:
                    take(s)
                    while s.head() is not None and not s.head().nogap and s.head().minpos <= i: take(s)
        if i >= 0:
            target = tfn(i) if tfn else 8
            while fill < target:
                cands = [s for s in active if s.head() is not None and not (s.head().nogap and s.lastgap == i) and s.head().minpos <= i and i - s.lastgap >= s.head().delay]
                if fill >= 8: cands = [s for s in cands if s.name[0] in BULK]
                if not cands: break
                room = target - fill
                vfill = sum(x.cost for x in gap if x.kind in VALUK)
                lt = [s for s in cands if s.head().late]
                if lt and vfill >= 12:
                    take(lt[0]); continue
                if lt and len(lt) < len(cands): cands = [s for s in cands if not s.head().late]
                fit = [s for s in cands if s.head().cost <= room]
                pool = fit if fit else cands
                def urg(s):
                    left = 0.0; u = 1e9
                    for o in s.ops[s.pos:]:
                        left += o.cost / float(target) + o.delay
                        if o.maxpos < 10**9: u = min(u, o.maxpos - i - left)
                    return min(u, (s.deadline - i) - left) - s.prio
                s = min(pool, key=urg)
                take(s)
        active = [s for s in active if s.head() is not None]
        nv = [x for x in gap if x.kind not in VALUK]; vv = [x for x in gap if x.kind in VALUK]
        ordered = []
        pend = []
        for x in gap:
            if x.kind in VALUK: continue
            dep = False
            for y in gap:
                if y is x: break
                if y.kind in VALUK and (set(y.wr) & set(x.rd) or set(y.rd) & set(x.wr) or set(y.wr) & set(x.wr)): dep = True
            if pend: dep = True
            if dep: pend.append(x)
            else: ordered.append(x)
        rest = [x for x in gap if x.kind in VALUK or x in pend]
        lates = [x for x in rest if x.late]
        if lates:
            lw = set(r for x in lates for r in x.wr); lr = set(r for x in lates for r in x.rd)
            first = rest.index(lates[0])
            before = rest[:first]; after = []
            for x in rest[first:]:
                if x.late: continue
                if after or (set(x.rd) & lw) or (set(x.wr) & (lw | lr)) or x.kind not in VALUK: after.append(x)
                else: before.append(x)
            rest = before + lates + after
        for x in [y for y in rest if y.last]:
            k = rest.index(x)
            while k + 1 < len(rest) and k < 2:
                y = rest[k + 1]
                if (set(y.rd) | set(y.wr)) & (set(x.wr) | set(x.rd)) or y.late or y.glue: break
                rest[k], rest[k + 1] = y, x; k += 1
        ordered += rest
        out += ordered
        out += fixed
        stats.append(fill)
    left = [s.name for s in active if s.head() is not None] + [s.name for s in streams[nxt:]]
    assert not left, f"unscheduled streams {left}"
    return out, stats

def resolve_waits(trace):
    best = {}
    q = {"vm": [], "lgkm": []}
    for ins in trace:
        if ins.kind in ("vmem", "dma", "store"): q["vm"].append(ins)
        elif ins.kind == "ds": q["lgkm"].append(ins)
        elif ins.kind == "wait" and ins.need is not None:
            for ctr, tags in ins.need:
                lst = q[ctr]
                if tags == "all": N = 0
                else:
                    idx = [k for k, o in enumerate(lst) if o.tag in tags]
                    N = len(lst) - 1 - max(idx) if idx else None
                if N is not None:
                    Nr = N
                    if not ins.cntst: Nr = sum(1 for o in lst[len(lst) - N:] if o.kind != "store") if N > 0 else 0
                    best[(ins.id, ctr)] = min(best.get((ins.id, ctr), 99), Nr)
                    q[ctr] = lst[len(lst) - N:] if N > 0 else []
    return best

def apply_waits(static_list, best):
    for ins in static_list:
        if ins.kind == "wait" and ins.need is not None:
            parts = []
            for ctr, tags in ins.need:
                N = best.get((ins.id, ctr))
                if N is None: continue
                mx = 63 if ctr == "vm" else 15
                parts.append(f"{'vmcnt' if ctr=='vm' else 'lgkmcnt'}({min(N,mx)})")
            ins.text = "s_waitcnt " + " ".join(parts) if parts else "s_nop 0"

def check(trace):
    errs = []
    q = {"vm": [], "lgkm": []}
    pend = {}
    lastw = {}
    lastc = {}
    laststore = {}
    pos = 0
    for ins in trace:
        if ins.kind in ("label", "comment"): continue
        t = ins.text
        if ins.kind == "wait" and t.startswith("s_waitcnt"):
            for ctr, nm in (("vm", "vmcnt"), ("lgkm", "lgkmcnt")):
                m = re.search(nm + r"\((\d+)\)", t)
                if m:
                    N = int(m.group(1)); lst = q[ctr]
                    done = lst[:len(lst) - N] if N < len(lst) else []
                    q[ctr] = lst[len(done):]
                    for o in done:
                        for r in o.wr:
                            if pend.get(r) is o: del pend[r]
        for r in list(ins.rd) + list(ins.wr):
            if r in pend: errs.append(f"uncovered load result {r} from [{pend[r].text}] used by [{t}]")
        def dist(r): return pos - lastw[r][0] - 1
        for r in ins.rd:
            if r in lastw:
                k = lastw[r][1]; d = dist(r); need = 0
                if k == "mfma":
                    if ins.kind == "mfma":
                        if r in ins.srcc:
                            need = 0 if lastw[r][2] == tuple(ins.srcc) else 6
                        if r in ins.ab: need = 8
                    else: need = 8
                elif k in VALUK:
                    if ins.kind == "mfma": need = 2
                    elif ins.kind == "perm": need = 2
                    elif k == "trans" and ins.kind in ("valu", "perm", "store", "ds"): need = max(need, 1)
                    if r[0] == "s" or r == ("vcc", 0):
                        if ins.kind in ("vmem", "dma", "store"): need = 5
                        elif ins.kind in VALUK: need = 2
                    if "readfirstlane" in t or "readlane" in t: need = max(need, 1)
                elif k == "salu" and r == ("m0", 0) and ins.kind == "dma": need = 1
                if d < need: errs.append(f"hazard RAW {r}: [{lastw[r][3]}] -> [{t}] dist {d} < {need}")
        for r in ins.wr:
            if r in lastw and lastw[r][1] == "mfma" and ins.kind != "mfma":
                if dist(r) < 8: errs.append(f"hazard WAW {r}: [{lastw[r][3]}] -> [{t}] dist {dist(r)}")
            if r in lastw and lastw[r][1] == "mfma" and ins.kind == "mfma" and r not in ins.srcc:
                if dist(r) < 8: errs.append(f"hazard WAW(mfma) {r}: [{lastw[r][3]}] -> [{t}] dist {dist(r)}")
            if r in lastc and ins.kind in VALUK and pos - lastc[r] - 1 < 3:
                errs.append(f"hazard WAR srcC {r} -> [{t}]")
            if r in laststore and pos - laststore[r] - 1 < 2:
                errs.append(f"hazard WAR store data {r} -> [{t}]")
        if ins.kind in ("vmem", "dma", "store"):
            q["vm"].append(ins)
            if len(q["vm"]) > 63: errs.append("vmcnt overflow")
        if ins.kind == "ds": q["lgkm"].append(ins)
        if ins.kind in ("vmem", "ds"):
            for r in ins.wr: pend[r] = ins; lastw.pop(r, None)
        else:
            for r in ins.wr: lastw[r] = (pos, ins.kind, tuple(ins.wr), t)
        if ins.kind == "mfma":
            for r in ins.srcc: lastc[r] = pos
        if ins.kind == "store":
            for r in ins.rd:
                if r[0] in "va": laststore[r] = pos
        m = re.match(r"s_nop (\d+)", t)
        pos += (int(m.group(1)) + 1) if m else 1
    return errs

def fix_hazards(lst, maxit=2000):
    import re as _re
    lst = list(lst)
    nfix = 0
    while True:
        errs = check_pos(lst)
        if not errs: break
        for idx, short in sorted(errs.items(), reverse=True):
            lst.insert(idx, Ins(f"s_nop {short-1}", "salu", cost=4 * short)); nfix += 1
        maxit -= 1
        assert maxit > 0
    return lst, nfix

def check_pos(lst):
    errs = {}
    lastw = {}; lastc = {}; laststore = {}
    pos = 0
    for idx, ins in enumerate(lst):
        if ins.kind in ("label", "comment"): continue
        t = ins.text; short = 0
        for r in ins.rd:
            if r in lastw:
                k = lastw[r][1]; d = pos - lastw[r][0] - 1; need = 0
                if k == "mfma":
                    if ins.kind == "mfma":
                        if r in ins.srcc: need = 0 if lastw[r][2] == tuple(ins.srcc) else 6
                        if r in ins.ab: need = 8
                    else: need = 8
                elif k in VALUK:
                    if ins.kind == "mfma": need = 2
                    elif ins.kind == "perm": need = 2
                    elif k == "trans" and ins.kind in ("valu", "perm", "store", "ds"): need = 1
                    if r[0] == "s" or r == ("vcc", 0):
                        if ins.kind in ("vmem", "dma", "store"): need = 5
                        elif ins.kind in VALUK: need = 2
                    if "readfirstlane" in t or "readlane" in t: need = max(need, 1)
                elif k == "salu" and r == ("m0", 0) and ins.kind == "dma": need = 1
                short = max(short, need - d)
        for r in ins.wr:
            if r in lastw and lastw[r][1] == "mfma" and not (ins.kind == "mfma" and r in ins.srcc):
                short = max(short, 8 - (pos - lastw[r][0] - 1))
            if r in lastc and ins.kind in VALUK: short = max(short, 3 - (pos - lastc[r] - 1))
            if r in laststore: short = max(short, 2 - (pos - laststore[r] - 1))
        if short > 0:
            errs[idx] = short; pos += short
        if ins.kind in ("vmem", "ds"):
            for r in ins.wr: lastw.pop(r, None)
        else:
            for r in ins.wr: lastw[r] = (pos, ins.kind, tuple(ins.wr), t)
        if ins.kind == "mfma":
            for r in ins.srcc: lastc[r] = pos
        if ins.kind == "store":
            for r in ins.rd:
                if r[0] in "va": laststore[r] = pos
        m = re.match(r"s_nop (\d+)", t)
        pos += (int(m.group(1)) + 1) if m else 1
    return errs
```

```python
import sys, math, struct
from asmlib import *

class Cfg:
    nt_q = False; nt_kv = False; nt_o = False
    thr_log2 = 24
    slow = True
    stamps = False
    seam_t = 28
    abl = ''
    pk = True
    burst8 = False
    o_pol = ''
    o_pol_last = ' sc0 sc1'
    cond_wt = 0
    codepf = False
    dma_seam = True
    direct_o = False
    kv_pol = ''
    q_pol = ' nt'
    qd_tiles = [2, 3, 5, 6, 8, 9, 11, 12]
    qr_tiles = [6, 7, 9, 10]
    dw_gap = 1
    st_gap = 0
cfg = Cfg()
for a in sys.argv[2:]:
    k, v = a.split("="); setattr(cfg, k, eval(v))

NAME = "standalone__mha_softmax__near_ridge_kernel"
def f32(x): return struct.unpack("<I", struct.pack("<f", x))[0]
CSCALE = f32(128 ** -0.5 * math.log2(math.e))

V_KA = 2
V_VA = 6
V_DMA = 14
V_QOFF = 18; V_OOFF = 19
V_NEGM = 20
V_RINV = 24
V_T = 60
V_OT = (80, 84, 88, 92, 120, 124, 36, 40)
V_ONES = 32
V_QDMA = 48
V_QA = 52
V_OW = 56; V_OR = 57
V_QA2 = 58
V_L = 64
V_S = 96
V_P = 112
V_O = 128
A_Q = 0; A_QB = 64; A_K = 128; A_V = 192
S_Q, S_X, S_O, S_K, S_V, S_W = 16, 20, 24, 28, 32, 36
S_C, S_NC, S_THR, S_WAVE, S_LDSB, S_DOFF, S_INEXT, S_XCD = 40, 41, 42, 43, 44, 45, 46, 47
S_QNEXT, S_KVNEXT, S_QCUR, S_KVCUR, S_QPREV, S_KVPREV = 48, 49, 50, 51, 52, 53
S_BAD = 54
S_LOOP, S_RET, S_WPART, S_T0, S_T1, S_TQ, S_TO = 62, 63, 64, 65, 66, 67, 88
S_STG, S_WQ, S_STG2 = 80, 81, 82
STG = 131072
OOB = 0x40000000

def salu(t, rd=(), wr=(), **k): return Ins(t, "salu", [("s", x) if isinstance(x, int) else x for x in rd], [("s", x) if isinstance(x, int) else x for x in wr], **k)
def valu(t, rd=(), wr=(), kind="valu", **k): return Ins(t, kind, rd, wr, **k)
def V(n, c=1): return R("v", n, c)
def A(n, c=1): return R("a", n, c)
def Sg(n, c=1): return R("s", n, c)

def mfma(d, a, b, c):
    ct = "0" if c is None else rs("v", c, 4)
    t = f"v_mfma_f32_16x16x32_bf16 {rs('v', d, 4)}, {rs(a[0], a[1], 4)}, {rs(b[0], b[1], 4)}, {ct}"
    ab = R(a[0], a[1], 4) + R(b[0], b[1], 4)
    cc = [] if c is None else V(c, 4)
    return Ins(t, "mfma", ab + cc, V(d, 4), srcc=cc, ab=ab)

def QK(qb, T, g):
    out = []
    for kk in range(4):
        for t in range(2):
            d = V_S + 8 * (g % 2) + 4 * t
            out.append(mfma(d, ("a", A_K + 32 * (T % 2) + 16 * t + 4 * kk), ("a", A_Q + 64 * qb + 16 * g + 4 * kk), None if kk == 0 else d))
    return out
def PV(T, g, first):
    out = []
    p = ("v", V_P + 4 * (g % 2))
    for dt in range(8):
        d = V_O + 32 * g + 4 * dt
        out.append(mfma(d, ("a", A_V + 32 * (T % 2) + 4 * dt), p, None if first else d))
    d = V_L + 4 * g
    out.append(mfma(d, ("v", V_ONES), p, None if first else d))
    return out

def SM(g, first, cvt_min):
    s = V_S + 8 * (g % 2); p = V_P + 4 * (g % 2); nm = V_NEGM + g
    o = []
    if first:
        t0, t1 = V_T + 2 * (g % 2), V_T + 2 * (g % 2) + 1
        o.append(valu(f"v_max3_f32 v{t0}, v{s}, v{s+1}, v{s+2}", V(s, 3), V(t0)))
        o.append(valu(f"v_max3_f32 v{t1}, v{s+3}, v{s+4}, v{s+5}", V(s + 3, 3), V(t1)))
        o.append(valu(f"v_max3_f32 v{t0}, v{s+6}, v{s+7}, v{t0}", V(s + 6, 2) + V(t0), V(t0)))
        o.append(valu(f"v_max_f32 v{t0}, v{t0}, v{t1}", V(t0) + V(t1), V(t0)))
        o.append(valu(f"v_mov_b32 v{t1}, v{t0}", V(t0), V(t1)))
        o.append(valu(f"v_permlane32_swap_b32 v{t1}, v{t0}", V(t0) + V(t1), V(t0) + V(t1), kind="perm", cost=8, nogap=True)); o[-1].last = True
        o.append(valu(f"v_max_f32 v{t0}, v{t0}, v{t1}", V(t0) + V(t1), V(t0)))
        o.append(valu(f"v_mov_b32 v{t1}, v{t0}", V(t0), V(t1)))
        o.append(valu(f"v_permlane16_swap_b32 v{t1}, v{t0}", V(t0) + V(t1), V(t0) + V(t1), kind="perm", cost=8, nogap=True)); o[-1].last = True
        o.append(valu(f"v_max_f32 v{t0}, v{t0}, v{t1}", V(t0) + V(t1), V(t0)))
        o.append(valu(f"v_mul_f32 v{nm}, s{S_NC}, v{t0}", V(t0) + Sg(S_NC), V(nm)))
    def fma(r): return valu(f"v_fma_f32 v{s+r}, v{s+r}, s{S_C}, v{nm}", V(s + r) + V(nm) + Sg(S_C), V(s + r))
    def ex(r): return valu(f"v_exp_f32 v{s+r}, v{s+r}", V(s + r), V(s + r), kind="trans")
    def cvt(h): return valu(f"v_cvt_pk_bf16_f32 v{p+h}, v{s+2*h}, v{s+2*h+1}", V(s + 2 * h, 2), V(p + h), minpos=cvt_min, nogap=True)
    o += [fma(0), fma(1), ex(0), ex(1), fma(2), fma(3), ex(2), ex(3), cvt(0), fma(4), ex(4), cvt(1), fma(5), ex(5),
          fma(6), fma(7), ex(6), ex(7), cvt(2), cvt(3)]
    o[-1].nogap = False
    return o

def KREADS(T, tagp):
    o = []
    for kk in range(4):
        for t in range(2):
            d = A_K + 32 * (T % 2) + 16 * t + 4 * kk
            o.append(Ins(f"ds_read_b128 {rs('a', d, 4)}, v{V_KA+kk} offset:{(T % 8) * 8192 + t * 4096}", "ds", V(V_KA + kk), A(d, 4), tag=f"K{tagp}"))
    return o
def VREADS(T, tagp):
    o = []
    for dt in range(8):
        for h in range(2):
            d = A_V + 32 * (T % 2) + 4 * dt + 2 * h
            o.append(Ins(f"ds_read_b64_tr_b16 {rs('a', d, 2)}, v{V_VA+dt} offset:{(T % 8) * 8192 + h * 4096}", "ds", V(V_VA + dt), A(d, 2), tag=f"V{tagp}"))
    return o
def DMA(TT, how, tagp):
    o = []
    if how == "inc": o.append(salu(f"s_add_u32 s{S_DOFF}, s{S_DOFF}, 8192", [S_DOFF], [S_DOFF]))
    else: o.append(salu(f"s_add_u32 s{S_DOFF}, s{S_KVNEXT}, s{S_WPART}", [S_KVNEXT, S_WPART], [S_DOFF]))
    o.append(salu(f"s_add_u32 m0, s{S_LDSB}, {(TT % 8) * 8192}", [S_LDSB], [("m0", 0)]))
    nt = cfg.kv_pol
    for p in range(4):
        o.append(Ins(f"buffer_load_dwordx4 v{V_DMA+p}, {rs('s', S_X, 4)}, s{S_DOFF} offen offset:{1024*p}{nt} lds", "dma",
                     V(V_DMA + p) + Sg(S_X, 4) + Sg(S_DOFF) + [("m0", 0)], [], tag=f"D{tagp}", nogap=(p == 0), cost=(14 if p == 0 else 9)))
    return o
def QDMA(n, stg=S_STG):
    g_, c2 = n // 4, (n // 2) % 2
    o = []
    if n == 0: o.append(salu(f"s_add_u32 s{S_TQ}, s{S_QNEXT}, s{S_WQ}", [S_QNEXT, S_WQ], [S_TQ]))
    elif c2 == 0: o.append(salu(f"s_add_u32 s{S_TQ}, s{S_TQ}, 4096", [S_TQ], [S_TQ]))
    o.append(salu(f"s_add_u32 m0, s{stg}, {1024*(n%8) - 128*c2}", [stg], [("m0", 0)]))
    nt = cfg.q_pol
    for h in range(2):
        o.append(Ins(f"buffer_load_dwordx4 v{V_QDMA+h}, {rs('s', S_Q, 4)}, s{S_TQ} offen offset:{1024*h+128*c2}{nt} lds", "dma",
                     V(V_QDMA + h) + Sg(S_Q, 4) + Sg(S_TQ) + [("m0", 0)], [], tag=f"QD{n//2}", nogap=(h == 0), cost=(14 if h == 0 else 9)))
    return o
def QREAD(qb, n, va=V_QA, inbody=False):
    g_, c2 = n // 4, (n // 2) % 2
    o = [wait(("vm", [f"QD{n//2}"]), key=(f"wQD{qb}_{n}" if inbody else None))]
    for k2 in range(2):
        d = A_Q + 64 * qb + 16 * g_ + 4 * (2 * c2 + k2)
        o.append(Ins(f"ds_read_b128 {rs('a', d, 4)}, v{va+k2} offset:{1024*(n%8)}", "ds", V(va + k2), A(d, 4), tag=f"Q{qb}{g_}"))
    return o
def EPI(g, sq, site=None, pol=None):
    l = V_L + 4 * g; r = V_RINV + 2 * g; to = S_TO + g
    o = [valu(f"v_rcp_f32 v{r}, v{l}", V(l), V(r), kind="trans"),
         valu(f"v_cmp_ngt_f32 {rs('s', S_BAD+2*g, 2)}, s{S_THR}, v{l}", V(l) + Sg(S_THR), Sg(S_BAD + 2 * g, 2)),
         salu(f"s_add_u32 s{to}, s{sq}, {4096*g}", [sq], [to])]
    nt = cfg.o_pol if pol is None else pol
    a0 = V_O + 32 * g
    if cfg.pk:
        M = [valu(f"v_pk_mul_f32 v[{a0+e}:{a0+e+1}], v[{a0+e}:{a0+e+1}], v[{r}:{r+1}] op_sel_hi:[1,0]", V(a0 + e, 2) + V(r), V(a0 + e, 2)) for e in range(0, 32, 2)]
        M[0].cost = 16; M[0].late = True
        for x in M[1:]: x.glue = True; x.late = True
    else:
        M = [valu(f"v_mul_f32 v{a0+e}, v{a0+e}, v{r}", V(a0 + e) + V(r), V(a0 + e)) for e in range(32)]
    C = [valu(f"v_cvt_pk_bf16_f32 v{a0+h}, v{a0+2*h}, v{a0+2*h+1}", V(a0 + 2 * h, 2), V(a0 + h)) for h in range(16)]
    W = [Ins(f"ds_write_b64 v{V_OW}, {rs('v', a0 + 2 * h, 2)} offset:{32*h}", "ds", V(V_OW) + V(a0 + 2 * h, 2), [], tag="OW", cost=12) for h in range(8)]
    for x in W: x.delay = cfg.dw_gap
    ot = V_OT[4 * (g % 2):4 * (g % 2) + 4]
    RD = [Ins(f"ds_read_b128 {rs('v', ot[p], 4)}, v{V_OR} offset:{1088*p}", "ds", V(V_OR), V(ot[p], 4), tag=f"OR{g}") for p in range(4)]
    ST = [Ins(f"buffer_store_dwordx4 {rs('v', ot[p], 4)}, v{V_OOFF}, {rs('s', S_O, 4)}, s{to} offen offset:{1024*p}{nt}", "store",
              V(ot[p], 4) + V(V_OOFF) + Sg(S_O, 4) + Sg(to), [], tag="ST", cost=16) for p in range(4)]
    if cfg.cond_wt and pol is None:
        lab = f"L_wt{g}"
        alt = "\n  ".join(x.text + cfg.o_pol_last for x in ST)
        ST[0].text = f"s_cmp_lt_u32 s{S_LOOP}, {cfg.cond_wt}\n  s_cbranch_scc0 {lab}a\n  {alt}\n  s_branch {lab}b\n{lab}a:\n  " + ST[0].text
        ST[3].text = ST[3].text + f"\n{lab}b:"
        ST[0].cost += 8; ST[0].rd += Sg(S_LOOP)
    for x in ST[1:]:
        if cfg.st_gap: x.delay = cfg.st_gap
        else: x.glue = True
    wt = wait(("lgkm", [f"OR{g}"])); wt.delay = 6
    ev = o + M + C; em = W + RD; es = [wt] + ST
    if cfg.direct_o:
        SW = []
        for p in range(4):
            a = a0 + 4 * p
            SW += [valu(f"v_permlane16_swap_b32 v{a}, v{a+2}", V(a) + V(a + 2), V(a) + V(a + 2), kind="perm", cost=8),
                   valu(f"v_permlane16_swap_b32 v{a+1}, v{a+3}", V(a + 1) + V(a + 3), V(a + 1) + V(a + 3), kind="perm", cost=8)]
        ST = [Ins(f"buffer_store_dwordx4 {rs('v', a0 + 4 * p, 4)}, v{V_OW}, {rs('s', S_O, 4)}, s{to} offen offset:{64*p}{nt}", "store",
                  V(a0 + 4 * p, 4) + V(V_OW) + Sg(S_O, 4) + Sg(to), [], tag="ST", cost=24) for p in range(4)]
        for x in ST[1:]: x.glue = True
        ST[0].nogap = True
        ev = o + M + C + SW; em = ST; es = [Ins("", "comment", cost=0)] * 5
    o = es = list(es)
    if site is not None:
        b = S_BAD
        o.append(salu(f"s_or_b64 s[{b}:{b+1}], s[{b}:{b+1}], s[{b+2}:{b+3}]", Sg(b, 4), Sg(b, 2)))
        o.append(salu(f"s_or_b64 s[{b+4}:{b+5}], s[{b+4}:{b+5}], s[{b+6}:{b+7}]", Sg(b + 4, 4), Sg(b + 4, 2)))
        o.append(salu(f"s_or_b64 s[{b}:{b+1}], s[{b}:{b+1}], s[{b+4}:{b+5}]\n  s_cbranch_scc1 L_slow{site}\nL_ret{site}:", Sg(b, 2) + Sg(b + 4, 2), Sg(b, 2), cost=8))
    return ev, em, es

def next_block_calc(pre_inc):
    o = []
    if pre_inc: o.append(salu(f"s_add_u32 s{S_INEXT}, s{S_INEXT}, 32", [S_INEXT], [S_INEXT]))
    o += [salu(f"s_mul_i32 s{S_T0}, s{S_INEXT}, 43691", [S_INEXT], [S_T0]),
          salu(f"s_lshr_b32 s{S_T0}, s{S_T0}, 17", [S_T0], [S_T0]),
          salu(f"s_lshl_b32 s{S_T1}, s{S_XCD}, 6", [S_XCD], [S_T1]),
          salu(f"s_add_u32 s{S_T0}, s{S_T0}, s{S_T1}", [S_T0, S_T1], [S_T0]),
          salu(f"s_lshl_b32 s{S_KVNEXT}, s{S_T0}, 17", [S_T0], [S_KVNEXT]),
          salu(f"s_mul_i32 s{S_T1}, s{S_XCD}, 192", [S_XCD], [S_T1]),
          salu(f"s_add_u32 s{S_T1}, s{S_T1}, s{S_INEXT}", [S_T1, S_INEXT], [S_T1]),
          salu(f"s_lshl_b32 s{S_QNEXT}, s{S_T1}, 16", [S_T1], [S_QNEXT]),
          salu(f"s_cmp_lt_u32 s{S_INEXT}, 192\n  s_cselect_b32 s{S_KVNEXT}, s{S_KVNEXT}, {OOB}\n  s_cselect_b32 s{S_QNEXT}, s{S_QNEXT}, {OOB}",
               [S_INEXT, S_KVNEXT, S_QNEXT], [S_KVNEXT, S_QNEXT], cost=12)]
    return o
def rotate():
    return [salu(f"s_mov_b32 s{S_QPREV}, s{S_QCUR}", [S_QCUR], [S_QPREV]), salu(f"s_mov_b32 s{S_KVPREV}, s{S_KVCUR}", [S_KVCUR], [S_KVPREV]),
            salu(f"s_mov_b32 s{S_QCUR}, s{S_QNEXT}", [S_QNEXT], [S_QCUR]), salu(f"s_mov_b32 s{S_KVCUR}, s{S_KVNEXT}", [S_KVNEXT], [S_KVCUR])]

DEAD = set()
def wait(*need, key=None):
    w = Ins("s_waitcnt ?", "wait", need=list(need)); w.tag = key
    if key is not None and key in DEAD: w.cost = 0; w.kind = "comment"; w.text = ""; w.need = None
    return w
def barrier(): return Ins("s_barrier", "barrier", cost=4)

G = 17
NVE = 51
def setmin(ops, m):
    for o in ops: o.minpos = max(o.minpos, m)
    return ops
def QCOPY(g_):
    return [valu(f"v_accvgpr_mov_b32 a{A_Q+16*g_+r}, a{A_QB+16*g_+r}", A(A_QB + 16 * g_ + r), A(A_Q + 16 * g_ + r)) for r in range(16)]
def sbar(*need, stamp=True):
    p = []
    if cfg.stamps and stamp: p.append(salu("s_memtime s[70:71]\n  s_memrealtime s[92:93]\n  v_mov_b32 v47, s72"))
    p += [wait(*need), barrier()]
    if cfg.stamps and stamp:
        p.append(valu("s_memtime s[72:73]\n  v_mov_b32 v46, s70\n  v_cmp_eq_u32 vcc, s74, v0\n  s_add_u32 s74, s74, 1\n  s_nop 0\n  v_cndmask_b32 v44, v44, v46, vcc\n  v_cndmask_b32 v45, v45, v47, vcc\n  v_mov_b32 v46, s92\n  v_cndmask_b32 v50, v50, v46, vcc", [], V(44, 2)))
    return p
def qread0(g_): return QREAD(0, 4 * g_, V_QA if g_ < 2 else V_QA2) + QREAD(0, 4 * g_ + 2, V_QA if g_ < 2 else V_QA2)
def build_prologue():
    bb = []; pre = {}; st = []; B = []
    for n in range(8):
        T, g = divmod(n, 4); T1, g1 = divmod(n + 1, 4); T0, g0 = divmod(n - 1, 4)
        base = len(bb); B.append(base)
        p = pre.setdefault(base, [])
        if n == 1: p += sbar(("vm", ["D1"]), ("lgkm", "all"))
        if n == 4: p += sbar(("vm", ["D2"]), ("lgkm", "all"), stamp=False)
        if g1 == 0: p.append(wait(("lgkm", [f"K{T1}"])))
        if T1 == 0: p.append(wait(("lgkm", [f"Q0{g1}"])))
        bb += QK(0, T1, g1)
        if n > 0:
            if g0 == 0: pre.setdefault(base + 8, []).append(wait(("lgkm", [f"V{T0}"])))
            bb += PV(T0, g0, T0 == 0)
    B.append(len(bb))
    for n in range(8):
        T, g = divmod(n, 4)
        st.append(Stream(f"SM{n}", SM(g, T == 0, B[n] - 1), (B[n - 1] + 12 if n else 0), B[n + 1] - 1))
    st.append(Stream("QR2", qread0(2), 4, B[1] - 1))
    st.append(Stream("QR3", qread0(3), B[1] + 8, B[2] - 3))
    for k, op in enumerate(KREADS(1, 1)): st.append(Stream(f"K1_{k}", [op], B[1] + 3 * k, B[1] + 3 * k + 4))
    for k, op in enumerate(VREADS(1, 1)): st.append(Stream(f"V1_{k}", [op], B[1] + (5 * k) // 2, B[1] + (5 * k) // 2 + 6))
    for k, op in enumerate(KREADS(2, 2)): st.append(Stream(f"K2_{k}", [op], B[4] + 5 * k, B[4] + 5 * k + 7))
    for k, op in enumerate(VREADS(2, 2)): st.append(Stream(f"V2_{k}", [op], B[5] - 1 + (5 * k) // 2, B[5] - 1 + (5 * k) // 2 + 6))
    d = []
    for TT, gi in ((3, 1), (4, 2), (5, 3), (6, 4), (7, 5), (8, 6)):
        x = DMA(TT, "inc", TT)
        for y in x[3:]: y.glue = True
        setmin(x, B[gi]); x[2].minpos = B[gi] + 3; x[2].maxpos = B[gi] + 10
        d += x
    st.append(Stream("D", d, B[1], B[8] - 1))
    st.append(Stream("NB", rotate() + next_block_calc(True), 0, B[4]))
    out, stats = schedule(bb, st, pre, lambda i: 12 if i < B[4] else 8)
    sb = sbar(("vm", ["D3", "D4"]), ("lgkm", "all"))
    k = [i_ for i_, x in enumerate(sb) if x.kind == "barrier"][0]
    return out + sb[:k] + [salu("s_branch L_entry")]

def build_body():
    bb = []; pre = {}; st = []
    NG = 64
    for n in range(NG):
        T, g = divmod(n, 4)
        n1 = (n + 1) % NG; T1, g1 = divmod(n1, 4)
        n0 = (n - 1) % NG; T0, g0 = divmod(n0, 4)
        base = G * n
        p = pre.setdefault(base, [])
        if n == 0: p += rotate()
        if g == 0 and T % 2 == 0:
            sb = sbar(("vm", [f"D{(T+1)%16}", f"D{(T+2)%16}"]), ("lgkm", "all"))
            if T == 2:
                for x in sb:
                    if x.kind == "wait": x.late = True
                k = [i_ for i_, x in enumerate(sb) if x.kind == "barrier"][0]
                sb.insert(k, Ins("L_entry:", "label", cost=0))
            p += sb
        if g1 == 0: p.append(wait(("lgkm", [f"K{T1}"]), key=f"wK{T1}"))
        if T1 == 0 and g1 >= 2: p.append(wait(("lgkm", [f"Q0{g1}"]), key=f"wQ{T1}{g1}"))
        bb += QK(0, T1, g1)
        if g0 == 0: pre.setdefault(base + 8, []).append(wait(("lgkm", [f"V{T0}"]), key=f"wV{T0}"))
        bb += PV(T0, g0, T0 == 0)
        rel = max(0, base - G + 12) if n != 8 else base
        st.append(Stream(f"SM{n}", SM(g, T == 0, base - 1), rel, base + G - 1))
        if g == 0:
            Tn = (T + 1) % 16; t = T
            for k, op in enumerate(KREADS(Tn, Tn)): st.append(Stream(f"K{Tn}_{k}", [op], base + 5 * k, base + 5 * k + 7))
            for k, op in enumerate(VREADS(Tn, Tn)): st.append(Stream(f"V{Tn}_{k}", [op], base + G - 1 + (5 * k) // 2, base + G - 1 + (5 * k) // 2 + 6))
            TT = (T + 7) % 16
            d = DMA(TT, "next" if t == 9 else "inc", TT)
            for x in d[3:]: x.glue = True
            d[2].minpos = base + 3; d[2].maxpos = base + G
            if cfg.dma_seam:
                if t == 0: d[2].minpos = base + 1; d[2].maxpos = base + 2
                if t == 1: setmin(d, base + 3 * G); d[2].minpos = base + 3 * G + 2; d[2].maxpos = base + 4 * G - 2
            elif t == 0: d[2].maxpos = base + 3 * G
            if t in cfg.qd_tiles:
                qd = QDMA(2 * cfg.qd_tiles.index(t)); qd[-1].glue = True
                setmin(qd[-2:], base + 3 * G + 1)
                d += qd
            st.append(Stream(f"D{TT}", d, base, base + 4 * G - 1))
            if t == 0: st.append(Stream(f"NB{T}", next_block_calc(True), base, base + 3 * G))
            if t in cfg.qr_tiles: st.append(Stream(f"QR{T}", QREAD(1, 2 * cfg.qr_tiles.index(t), inbody=True), base + G, base + 3 * G - 2))
            if t == 15:
                st.append(Stream("QC0", QCOPY(0), base - G + 8, base + 3 * G - 3))
                st.append(Stream("QC1", QCOPY(1), base + 8, base + 4 * G - 1))
                st.append(Stream("QR2", QREAD(0, 8, inbody=True) + QREAD(0, 10, inbody=True), base + G + 8, base + 2 * G + 7))
                st.append(Stream("QR3", QREAD(0, 12, inbody=True) + QREAD(0, 14, inbody=True), base + 2 * G + 8, base + 3 * G + 1, prio=30))
        if T == 15 and g == 1:
            e0 = EPI(0, S_QCUR); e1 = EPI(1, S_QCUR)
            st.append(Stream("E_v0", e0[0], base + G + 5, base + 2 * G + 1))
            st.append(Stream("E_m0", e0[1], base + 2 * G + 2, base + 3 * G - 1, prio=30))
            st.append(Stream("E_v1", e1[0], base + 2 * G + 5, base + 3 * G - 1))
        if n == 0:
            e0 = EPI(0, S_QCUR); e1 = EPI(1, S_QCUR); e2 = EPI(2, S_QPREV); e3 = EPI(3, S_QPREV, site=0)
            st.append(Stream("E_v2", e2[0], base + 4, base + G + 8))
            st.append(Stream("E_v3", e3[0], base + G + 9, base + 2 * G + 14))
            e1[1][-1].maxpos = base + G + 8; e2[1][-1].maxpos = base + 3 * G + 5
            if cfg.burst8:
                e1[2][1].glue = True; e3[2][1].glue = True
                c1 = [e1[2][0]] + e0[2][1:] + e1[2][1:]
                c2 = [e3[2][0]] + e2[2][1:] + e3[2][1:]
                chain = e1[1] + c1 + setmin(e2[1], base + G + 9) + setmin(e3[1], base + 2 * G + 15)
                chain[-1].maxpos = base + 4 * G + 5
                c2[1].maxpos = base + 4 * G + 14
                chain += c2
            else:
                chain = e1[1] + e0[2] + setmin(e2[1], base + G + 9) + e1[2] + setmin(e3[1], base + 2 * G + 15)
                chain[-1].maxpos = base + 4 * G + 5
                sg = max(cfg.st_gap, 2)
                for k, x in enumerate(e2[2][:5] + e3[2][:5]): x.maxpos = base + 4 * G + 12 + sg * k
                chain += e2[2] + e3[2]
            st.append(Stream("E_m", chain, base, base + 4 * G + 14 + max(cfg.st_gap, 2) * 10, prio=10))
    def tfn(i):
        n = i // G; T = (n // 4) % 16
        if T == 15 and i % (4 * G) >= 2 * G + 4: return cfg.seam_t
        if T == 0: return cfg.seam_t
        return 8
    return schedule(bb, st, pre, tfn)

def build_drain():
    bb = PV(15, 3, False)
    pre = {0: rotate()}
    e0 = EPI(0, S_QCUR, pol=cfg.o_pol_last); e1 = EPI(1, S_QCUR, pol=cfg.o_pol_last); e2 = EPI(2, S_QPREV, pol=cfg.o_pol_last); e3 = EPI(3, S_QPREV, site=1, pol=cfg.o_pol_last)
    seq = e0[2] + e1[1] + setmin(e2[0], 3) + e1[2] + e2[1] + setmin(e3[0], 8) + e2[2] + e3[1] + e3[2]
    for x in seq: x.delay = 0
    st = [Stream("E", seq, 0, 8)]
    out, stats = schedule(bb, st, pre, lambda i: 24)
    return out

def build_init():
    o = []
    def s(t, rd=(), wr=()): o.append(salu(t, rd, wr))
    def v(t, rd=(), wr=()): o.append(valu(t, rd, wr))
    if cfg.stamps: s("s_memrealtime s[94:95]")
    s("s_cmp_ge_u32 s2, 256\n  s_cbranch_scc1 L_end")
    s("s_load_dwordx8 s[4:11], s[0:1], 0", [], list(range(4, 12)))
    s("s_load_dwordx4 s[12:15], s[0:1], 32", [], list(range(12, 16)))
    v("v_lshrrev_b32 v1, 6, v0", V(0), V(1))
    v("v_and_b32 v0, 63, v0", V(0), V(0))
    v(f"v_readfirstlane_b32 s{S_WAVE}, v1", V(1), Sg(S_WAVE))
    v("v_and_b32 v36, 15, v0", V(0), V(36)); v("v_lshrrev_b32 v37, 4, v0", V(0), V(37)); v("v_lshrrev_b32 v38, 2, v0", V(0), V(38))
    s(f"s_lshr_b32 s{S_T0}, s{S_WAVE}, 1", [S_WAVE], [S_T0])
    s(f"s_and_b32 s{S_T1}, s{S_WAVE}, 1", [S_WAVE], [S_T1])
    s(f"s_lshl_b32 s{S_WPART}, s{S_T1}, 12", [S_T1], [S_WPART])
    s(f"s_lshl_b32 s{S_LDSB}, s{S_T0}, 16", [S_T0], [S_LDSB])
    s(f"s_add_u32 s{S_LDSB}, s{S_LDSB}, s{S_WPART}", [S_LDSB, S_WPART], [S_LDSB])
    s(f"s_lshr_b32 s{S_TQ}, 15, s{S_T0}", [S_T0], [S_TQ])
    for p in range(4):
        v(f"v_add_u32 v39, {4*p}, v37", V(37), V(39)); v(f"v_and_b32 v39, s{S_TQ}, v39", V(39) + Sg(S_TQ), V(39))
        v(f"v_lshlrev_b32 v39, s{S_T0}, v39", V(39) + Sg(S_T0), V(39)); v("v_xor_b32 v39, v39, v36", V(39) + V(36), V(39))
        v("v_lshlrev_b32 v39, 4, v39", V(39), V(39)); v(f"v_lshl_add_u32 v{V_DMA+p}, v37, 8, v39", V(37) + V(39), V(V_DMA + p))
    v("v_lshrrev_b32 v39, 3, v0", V(0), V(39)); v("v_and_b32 v40, 6, v39", V(39), V(40)); v("v_and_b32 v41, 7, v0", V(0), V(41))
    v("v_xor_b32 v40, v40, v41", V(40) + V(41), V(40)); v("v_lshlrev_b32 v40, 4, v40", V(40), V(40))
    v(f"v_lshl_add_u32 v{V_QDMA}, v39, 8, v40", V(39) + V(40), V(V_QDMA)); v(f"v_add_u32 v{V_QDMA+1}, 1024, v{V_QDMA}", V(V_QDMA), V(V_QDMA + 1))
    s(f"s_lshl_b32 s{S_WQ}, s{S_WAVE}, 14", [S_WAVE], [S_WQ])
    s(f"s_lshl_b32 s{S_STG}, s{S_WAVE}, 13", [S_WAVE], [S_STG]); s(f"s_add_u32 s{S_STG}, s{S_STG}, {STG}", [S_STG], [S_STG])
    s(f"s_lshl_b32 s{S_STG2}, s{S_T0}, 16", [S_T0], [S_STG2]); s(f"s_lshl_b32 s{S_T1}, s{S_WPART}, 1", [S_WPART], [S_T1])
    s(f"s_add_u32 s{S_STG2}, s{S_STG2}, s{S_T1}", [S_STG2, S_T1], [S_STG2]); s(f"s_add_u32 s{S_STG2}, s{S_STG2}, {6*8192}", [S_STG2], [S_STG2])
    s(f"s_and_b32 s{S_XCD}, s2, 7", [], [S_XCD]); s(f"s_lshr_b32 s{S_INEXT}, s2, 3", [], [S_INEXT])
    early = o; o = late = []
    for kk in range(4):
        v(f"v_or_b32 v39, {4*kk}, v37", V(37), V(39)); v("v_xor_b32 v39, v39, v36", V(39) + V(36), V(39))
        v("v_lshlrev_b32 v39, 4, v39", V(39), V(39)); v(f"v_lshl_add_u32 v{V_KA+kk}, v36, 8, v39", V(36) + V(39), V(V_KA + kk))
    v("v_and_b32 v40, 7, v38", V(38), V(40)); v("v_and_b32 v41, 3, v0", V(0), V(41)); v("v_lshlrev_b32 v41, 3, v41", V(41), V(41))
    v("v_lshl_add_u32 v41, v38, 8, v41", V(38) + V(41), V(41)); v("v_add_u32 v41, 0x10000, v41", V(41), V(41))
    for dt in range(8):
        v(f"v_xor_b32 v39, {dt}, v40", V(40), V(39)); v(f"v_lshl_add_u32 v{V_VA+dt}, v39, 5, v41", V(39) + V(41), V(V_VA + dt))
    v("v_and_b32 v40, 6, v36", V(36), V(40)); v("v_and_b32 v41, 7, v36", V(36), V(41)); v("v_lshrrev_b32 v42, 3, v36", V(36), V(42))
    v("v_lshlrev_b32 v41, 7, v41", V(41), V(41)); v("v_lshl_add_u32 v41, v42, 10, v41", V(42) + V(41), V(41))
    for k2 in range(2):
        v(f"v_or_b32 v39, {4*k2}, v37", V(37), V(39)); v("v_xor_b32 v39, v39, v40", V(39) + V(40), V(39))
        v("v_lshl_add_u32 v39, v39, 4, v41", V(39) + V(41), V(39))
        v(f"v_add_u32 v{V_QA+k2}, s{S_STG}, v39", V(39) + Sg(S_STG), V(V_QA + k2))
        v(f"v_add_u32 v{V_QA2+k2}, s{S_STG2}, v39", V(39) + Sg(S_STG2), V(V_QA2 + k2))
    v(f"v_lshlrev_b32 v39, 4, v0", V(0), V(39)); v(f"v_add_u32 v{V_OOFF}, s{S_WQ}, v39", V(39) + Sg(S_WQ), V(V_OOFF))
    v("v_mul_u32_u24 v39, 272, v36", V(36), V(39)); v("v_lshl_add_u32 v39, v37, 3, v39", V(37) + V(39), V(39))
    v(f"v_add_u32 v{V_OW}, s{S_STG}, v39", V(39) + Sg(S_STG), V(V_OW))
    if cfg.direct_o:
        v("v_and_b32 v39, 1, v37", V(37), V(39)); v("v_lshlrev_b32 v39, 5, v39", V(39), V(39)); v("v_lshrrev_b32 v40, 1, v37", V(37), V(40))
        v("v_lshl_add_u32 v39, v40, 4, v39", V(40) + V(39), V(39)); v("v_lshl_add_u32 v39, v36, 8, v39", V(36) + V(39), V(39))
        v(f"v_add_u32 v{V_OW}, s{S_WQ}, v39", V(39) + Sg(S_WQ), V(V_OW))
    v("v_mul_u32_u24 v39, 272, v37", V(37), V(39)); v("v_lshl_add_u32 v39, v36, 4, v39", V(36) + V(39), V(39))
    v(f"v_add_u32 v{V_OR}, s{S_STG}, v39", V(39) + Sg(S_STG), V(V_OR))
    v("v_and_b32 v39, 3, v0", V(0), V(39)); v("v_cmp_eq_u32 vcc, 0, v39", V(39), [("vcc", 0)]); v("v_mov_b32 v40, 0x3f803f80", [], V(40))
    v("v_mov_b32 v39, 0", [], V(39))
    for e in range(4): v(f"v_cndmask_b32 v{V_ONES+e}, v39, v40, vcc", V(39) + V(40) + [("vcc", 0)], V(V_ONES + e))
    for r in list(range(V_L, V_L + 16)) + list(range(V_P, V_P + 8)): v(f"v_mov_b32 v{r}, 0", [], V(r))
    s(f"s_mov_b32 s{S_C}, 0x{CSCALE:08x}", [], [S_C]); s(f"s_mov_b32 s{S_NC}, 0x{CSCALE | 0x80000000:08x}", [], [S_NC])
    s(f"s_mov_b32 s{S_THR}, 0x{f32(2.0 ** cfg.thr_log2):08x}", [], [S_THR])
    for r in range(S_BAD, S_BAD + 8): s(f"s_mov_b32 s{r}, 0", [], [r])
    for r in range(S_TO, S_TO + 4): s(f"s_mov_b32 s{r}, {OOB}", [], [r])
    s(f"s_mov_b32 s{S_QCUR}, {OOB}", [], [S_QCUR]); s(f"s_mov_b32 s{S_KVCUR}, {OOB}", [], [S_KVCUR])
    s(f"s_mov_b32 s{S_LOOP}, 5", [], [S_LOOP])
    if cfg.stamps:
        s("s_mov_b32 s74, 1\n  s_memtime s[72:73]\n  s_memrealtime s[76:77]\n v_mov_b32 v44, 0\n v_mov_b32 v45, 0\n v_mov_b32 v50, 0")
    o = early
    o += next_block_calc(False)
    s("s_waitcnt lgkmcnt(0)")
    if cfg.stamps: s("s_memrealtime s[96:97]")
    for srd, ptr, size in ((S_Q, 4, 0x6000000), (S_O, 10, 0x6000000), (S_K, 6, 0x4000000), (S_V, 8, 0x4000000), (S_W, 14, 402653184)):
        o = early if srd == S_Q else late
        s(f"s_mov_b32 s{srd}, s{ptr}", [ptr], [srd]); s(f"s_mov_b32 s{srd+1}, s{ptr+1}", [ptr + 1], [srd + 1])
        s(f"s_mov_b32 s{srd+2}, {size}", [], [srd + 2]); s(f"s_mov_b32 s{srd+3}, 0x00020000", [], [srd + 3])
    o = early
    s(f"s_cmp_ge_u32 s{S_WAVE}, 2\n  s_cselect_b32 s{S_X}, s8, s6\n  s_cselect_b32 s{S_X+1}, s9, s7", [S_WAVE, 6, 7, 8, 9], [S_X, S_X + 1])
    s(f"s_mov_b32 s{S_X+2}, 0x4000000", [], [S_X + 2]); s(f"s_mov_b32 s{S_X+3}, 0x00020000", [], [S_X + 3])
    def dma(TT, how):
        d = DMA(TT, how, TT); return d[:2] + [salu("s_nop 0")] + d[2:]
    def qdma(g_):
        r = []
        for n in (4 * g_, 4 * g_ + 2):
            d = QDMA(n, S_STG if g_ < 2 else S_STG2); r += d[:-2] + [salu("s_nop 0")] + d[-2:]
        return r
    def qread(g_): return QREAD(0, 4 * g_, V_QA if g_ < 2 else V_QA2) + QREAD(0, 4 * g_ + 2, V_QA if g_ < 2 else V_QA2)
    o += dma(0, "first") + qdma(0) + qdma(1) + qdma(2)
    if cfg.codepf:
        s("s_getpc_b64 s[84:85]\nL_pf:", [], [84, 85]); s("s_and_b32 s84, s84, 0xffffffc0", [84], [84]); s("s_mov_b32 s86, L_end-L_pf", [], [86]); s("s_mov_b32 s87, 0x00020000", [], [87])
        s(f"s_lshl_b32 s83, s{S_WAVE}, 13", [S_WAVE], [83]); v("v_lshlrev_b32 v51, 6, v0", V(0), V(51)); s("s_add_u32 s69, s83, 4096", [83], [69])
        o.append(Ins("buffer_load_dword v54, v51, s[84:87], s83 offen", "vmem", V(51) + Sg(84, 4) + Sg(83), V(54), tag="PF"))
        o.append(Ins("buffer_load_dword v55, v51, s[84:87], s69 offen", "vmem", V(51) + Sg(84, 4) + Sg(69), V(55), tag="PF"))
    o += late
    if cfg.stamps: s("s_memrealtime s[98:99]")
    o += [wait(("vm", ["D0"])), barrier()]
    if cfg.stamps: s("s_memrealtime s[100:101]\n  s_waitcnt lgkmcnt(0)\n  v_writelane_b32 v50, s94, 50\n  v_writelane_b32 v50, s96, 51\n  v_writelane_b32 v50, s98, 52\n  v_writelane_b32 v50, s100, 53")
    o += KREADS(0, 0) + dma(1, "inc") + qread0(0) + VREADS(0, 0) + qdma(3)
    o += [wait(("lgkm", ["K0", "Q00"]))]
    qk = QK(0, 0, 0)
    o += qk[:4] + qread0(1) + qk[4:] + dma(2, "inc")
    return o

def slow_stub():
    t = []
    for site in range(2):
        t.append(f"L_slow{site}:\n  s_branch L_ret{site}")
    return "\n".join(t)

def dataflow(trace):
    errs = []; stt = {}; cnt = {}
    inS = lambda r: r[0] == "v" and V_S <= r[1] < V_S + NS
    inP = lambda r: r[0] == "v" and V_P <= r[1] < V_P + 8
    inO = lambda r: r[0] == "v" and (V_O <= r[1] < V_O + 128 or V_L <= r[1] < V_L + 16)
    for x in trace:
        t = x.text
        if x.kind == "mfma":
            for r in x.wr:
                if inS(r):
                    if cnt.get(r, 4) == 4:
                        if stt.get(r, "c") != "c": errs.append(f"S overwritten before consumed {r} [{t}]")
                        cnt[r] = 1
                    else: cnt[r] += 1
                    stt[r] = "m"
                if inO(r):
                    if not x.srcc:
                        if stt.get(r, "done") != "done": errs.append(f"O overwritten before stored {r} [{t}]")
                        cnt[r] = 1
                    else: cnt[r] = cnt.get(r, 15) + 1
                    stt[r] = "acc"
            for r in x.ab:
                if inP(r):
                    if stt.get(r, "new") != "new": errs.append(f"P read when not new {r} [{t}]")
                    cnt[r] = cnt.get(r, 0) + 1
                    if cnt[r] == 9: stt[r] = "used"; cnt[r] = 0
        else:
            for r in x.rd:
                if inS(r) and cnt.get(r, 4) != 4: errs.append(f"S read while partial {r} [{t}]")
                if inS(r) and t.startswith("v_cvt"): stt[r] = "c"
                if inO(r) and stt.get(r) == "acc" and cnt.get(r) != 16: errs.append(f"O read early {r} cnt {cnt.get(r)} [{t}]")
            if x.kind == "store" and "offset:192" in t:
                for k in range(32): stt[("v", x.rd[0][1] - 12 + k)] = "done"
            if t.startswith("ds_write") and EPI_LAST_W in t:
                a0 = x.rd[1][1] - 14
                for k in range(32): stt[("v", a0 + k)] = "done"
            if t.startswith("v_cmp_ngt"):
                for k in range(4): stt[("v", x.rd[0][1] + k)] = "done"
            for r in x.wr:
                if inP(r) and t.startswith("v_cvt"):
                    if stt.get(r, "used") != "used": errs.append(f"P overwritten before used {r} [{t}]")
                    stt[r] = "new"; cnt[r] = 0
    return errs
def ldsflow(trace):
    import re
    errs = []
    vm = []; lg = []
    vis = {}
    rdst = {}
    m0 = None
    def region_of_read(x):
        t = x.text; off = int(re.search(r"offset:(\d+)", t).group(1)); a = x.rd[0][1]
        if V_KA <= a < V_KA + 4: return [("ring", off // 8192)]
        if V_VA <= a < V_VA + 8: return [("ring", off // 8192)]
        if a in (V_QA, V_QA + 1): return [("stg", off // 1024), ("stg", off // 1024 + 1)]
        if a in (V_QA2, V_QA2 + 1): return [("ring", 6), ("ring", 7), ("stg2", off // 1024), ("stg2", off // 1024 + 1)]
        return None
    for x in trace:
        t = x.text
        if x.kind == "salu" and " m0," in t:
            m = re.search(r"m0, s(\d+), (-?\d+)", t); m0 = (int(m.group(1)), int(m.group(2)))
        if x.kind == "dma":
            off = int(re.search(r"offset:(\d+)", t).group(1))
            if m0[0] == S_LDSB: reg = ("ring", m0[1] // 8192); shared = True
            elif m0[0] == S_STG: reg = ("stg", (m0[1] + off) // 1024); shared = False
            else: reg = ("stg2", (m0[1] + off) // 1024); shared = False
            st_ = rdst.get(reg, "free")
            if st_ == "pending" or (shared and st_ != "free"): errs.append(f"LDS WAR: DMA into {reg} while reads {st_} [{t}]")
            vis[reg] = "flight"; vm.append(reg)
        elif x.kind in ("vmem", "store"): vm.append(None)
        elif x.kind == "ds":
            regs = region_of_read(x) if t.startswith("ds_read") else None
            if regs:
                for reg in regs:
                    if reg[0] == "ring" and len(regs) > 1: rdst[reg] = "pending"; continue
                    need = "visible" if reg[0] == "ring" else "landed"
                    if vis.get(reg) != need and not (need == "landed" and vis.get(reg) == "visible"): errs.append(f"LDS RAW: read of {reg} state {vis.get(reg)} [{t}]")
                    rdst[reg] = "pending"
            if t.startswith("ds_write"):
                for k in range(5):
                    if vis.get(("stg", k)) == "flight": errs.append(f"O staging write while Q DMA in flight [{t}]")
            if t.startswith("ds_read_b128 v"): regs = [("stg", k) for k in range(5)]; [rdst.__setitem__(r, "pending") for r in regs]
            lg.append(regs or [])
        elif x.kind == "wait":
            m = re.search(r"vmcnt\((\d+)\)", t)
            if m:
                N = int(m.group(1)); done = vm[:max(0, len(vm) - N)]; vm = vm[len(done):]
                for reg in done:
                    if reg is not None and reg not in vm: vis[reg] = "landed"
            m = re.search(r"lgkmcnt\((\d+)\)", t)
            if m:
                N = int(m.group(1)); done = lg[:max(0, len(lg) - N)]; lg = lg[len(done):]
                still = {r for l in lg for r in l}
                for l in done:
                    for reg in l:
                        if reg not in still: rdst[reg] = "retired"
        elif x.kind == "barrier":
            for reg, v_ in vis.items():
                if v_ == "landed": vis[reg] = "visible"
            for reg, v_ in rdst.items():
                if v_ == "retired": rdst[reg] = "free"
    return errs
EPI_LAST_W = "offset:224"
NS = 16
def main():
    tail = [salu(f"s_sub_u32 s{S_LOOP}, s{S_LOOP}, 1\n  s_cbranch_scc0 L_loop", [S_LOOP], [S_LOOP], cost=8)]
    for it in range(3):
        init = build_init()
        body, stats = build_body()
        drain = build_drain()
        init += build_prologue()
        ent = lambda bd: [k for k, x in enumerate(bd) if x.text == "L_entry:"][0]
        trace = init + body[ent(body):] + tail + (body + tail) * 5 + drain
        best = resolve_waits(trace)
        for l in (init, body, drain): apply_waits(l, best)
        dead = lambda x: (x.kind == "wait" and x.need is not None and x.text == "s_nop 0") or x.kind == "comment"
        nd = {x.tag for x in body if x.kind == "wait" and dead(x) and x.tag}
        if nd <= DEAD: break
        DEAD.update(nd)
    init = [x for x in init if not dead(x)]; body = [x for x in body if not dead(x)]; drain = [x for x in drain if not dead(x)]
    if cfg.abl:
        def drop(x):
            t = x.text
            return (('exp' in cfg.abl and t.startswith('v_exp')) or ('fma' in cfg.abl and t.startswith('v_fma')) or
                    ('ds' in cfg.abl and t.startswith('ds_read') and ' a[' in t) or ('dma' in cfg.abl and x.kind == 'dma') or
                    ('bar' in cfg.abl and x.kind == 'barrier') or ('cvt' in cfg.abl.split(',') and t.startswith('v_cvt') and int(t.split()[1][1:-1]) < 128) or
                    ('st' in cfg.abl.split(',') and x.kind == 'store') or ('dw' in cfg.abl and t.startswith('ds_write')) or ('rd' in cfg.abl and t.startswith('ds_read_b128 v')) or ('pk' in cfg.abl and t.startswith('v_pk_mul')) or ('perm' in cfg.abl and 'permlane' in t) or ('qc' in cfg.abl and 'accvgpr_mov' in t) or ('ecvt' in cfg.abl and t.startswith('v_cvt') and int(t.split()[1][1:-1]) >= 128) or ('wt' in cfg.abl and x.kind == 'wait' and x.need and x.need[0][1] in (['OR0'], ['OR1'], ['OR2'], ['OR3'])) or ('ones' in cfg.abl and x.kind == 'mfma' and 'v[32:35]' in t) or
                    ('epi' in cfg.abl and (t.startswith('v_mul_f32 v1') or t.startswith('v_mul_f32 v2') or t.startswith('ds_write') or t.startswith('ds_read_b128 v') or (t.startswith('v_cvt') and int(t.split()[1][1:-1]) >= 128))))
        body = [x for x in body if not drop(x)]
    init, n1 = fix_hazards(init); body, n2 = fix_hazards(body); drain, n3 = fix_hazards(drain)
    print("nops inserted", n1, n2, n3, file=sys.stderr)
    trace = init + body[ent(body):] + tail + (body + tail) * 5 + drain
    errs = check(trace)
    errs += dataflow(trace) + ldsflow(trace)
    written = {("s", 0), ("s", 1), ("s", 2), ("v", 0)}
    for x in trace:
        for r in x.rd:
            if r[0] in ("s", "m0") and r not in written: errs.append(f"uninitialised {r} read by [{x.text}]")
            if r[0] == "v" and r not in written and x.kind in ("dma", "vmem", "ds") : errs.append(f"uninitialised {r} read by [{x.text}]") if not x.text.startswith("ds_write") else None
        written.update(x.wr)
    seen = set()
    for e in errs:
        if e not in seen: print("ERR", e, file=sys.stderr); seen.add(e)
    tot = sum(x.cost for x in body)
    under = sum(1 for f in stats[1:] if f < 8)
    est = sum(8 + max(8, f) for f in stats[1:])
    seg = [sum(8 + max(8, f) for f in stats[1 + 136 * k:1 + 136 * (k + 1)]) for k in range(8)]
    print("est per 2 tiles", seg, file=sys.stderr)
    print(f"body instrs {len(body)} issue-cycles {tot} est cycles {est} underfilled gaps {under}", file=sys.stderr)
    hdr = open("header.txt").read()
    lines = [hdr, '.amdgcn_target "amdgcn-amd-amdhsa--gfx950"', ".text", f".globl {NAME}", ".p2align 8", f".type {NAME},@function", f"{NAME}:"]
    lines += ["  " + x.text for x in init]
    lines += [".p2align 3", "L_loop:"] + ["  " + x.text for x in body + tail]
    lines += ["  " + x.text for x in drain]
    if cfg.stamps:
        lines += ["""  s_waitcnt vmcnt(0) lgkmcnt(0)
  s_memtime s[70:71]
  s_memrealtime s[78:79]
  s_waitcnt lgkmcnt(0)
  v_writelane_b32 v44, s70, 49
  v_writelane_b32 v45, s72, 49
  v_writelane_b32 v50, s78, 54
  s_sub_u32 s78, s78, s76
  v_writelane_b32 v44, s78, 0
  v_writelane_b32 v45, s76, 0
  s_lshl_b32 s75, s2, 2
  s_add_u32 s75, s75, s%d
  s_lshl_b32 s75, s75, 9
  v_lshlrev_b32 v46, 3, v0
  buffer_store_dwordx2 v[44:45], v46, s[%d:%d], s75 offen
  s_add_u32 s94, s75, 0x100000
  v_lshlrev_b32 v46, 2, v0
  buffer_store_dword v50, v46, s[36:39], s94 offen
  s_cmp_lg_u32 s75, 0
  s_cbranch_scc1 L_end
  s_mov_b32 s84, s12
  s_mov_b32 s85, s13
  s_mov_b32 s86, 256
  s_mov_b32 s87, 0x00020000
  v_readlane_b32 s75, v45, 1
  v_add_u32 v46, 2, v0
  v_mul_u32_u24 v47, 43691, v46
  v_lshrrev_b32 v47, 17, v47
  v_mul_u32_u24 v48, 3, v47
  v_sub_u32 v48, v46, v48
  v_subrev_u32 v47, 1, v47
  v_subrev_u32 v49, s75, v44
  v_cmp_eq_u32 vcc, 0, v48
  v_mov_b32 v50, 1000
  v_cndmask_b32 v47, v50, v47, vcc
  v_cmp_lt_u32 vcc, 40, v0
  s_nop 1
  v_cndmask_b32 v47, v47, v50, vcc
  v_writelane_b32 v47, 14, 0
  v_writelane_b32 v47, 15, 49
  v_readlane_b32 s75, v44, 0
  s_nop 3
  v_writelane_b32 v49, s75, 0
  v_lshlrev_b32 v47, 2, v47
  buffer_store_dword v49, v47, s[84:87], 0 offen""" % (S_WAVE, S_W, S_W + 3)]
    lines += ["L_end:", "  s_endpgm"]
    if cfg.slow:
        import slow
        lines.append(slow.emit(globals()))
    else: lines.append(slow_stub())
    lines += ['.section .rodata,"a"', ".p2align 6", f".amdhsa_kernel {NAME}", "  .amdhsa_next_free_vgpr 512", "  .amdhsa_next_free_sgpr 102",
              "  .amdhsa_accum_offset 256", "  .amdhsa_group_segment_fixed_size 0", "  .amdhsa_kernarg_size 48", "  .amdhsa_user_sgpr_count 2",
              "  .amdhsa_user_sgpr_kernarg_segment_ptr 1", "  .amdhsa_system_sgpr_workgroup_id_x 1", ".end_amdhsa_kernel"]
    open(sys.argv[1], "w").write("\n".join(lines) + "\n")
    if errs and not cfg.abl: sys.exit(1)
main()
```

```python
import sys, math, struct
from asmlib import *

class Cfg:
    nt_q = False; nt_kv = False; nt_o = False
    thr_log2 = 24
    slow = True
    stamps = False
    seam_t = 28
    abl = ''
    pk = True
    burst8 = False
    o_pol = ''
    o_pol_last = ' sc0 sc1'
    cond_wt = 0
    codepf = False
    pad = 0
    e64 = False
    dma_seam = True
    direct_o = False
    kv_pol = ''
    q_pol = ' nt'
    qd_tiles = [2, 3, 5, 6, 8, 9, 11, 12]
    qr_tiles = [6, 7, 9, 10]
    dw_gap = 1
    st_gap = 0
cfg = Cfg()
for a in sys.argv[2:]:
    k, v = a.split("="); setattr(cfg, k, eval(v))

NAME = "standalone__mha_softmax__near_ridge_kernel"
def f32(x): return struct.unpack("<I", struct.pack("<f", x))[0]
CSCALE = f32(128 ** -0.5 * math.log2(math.e))

V_KA = 2
V_VA = 6
V_DMA = 14
V_QOFF = 18; V_OOFF = 19
V_NEGM = 20
V_RINV = 24
V_T = 60
V_OT = (80, 84, 88, 92, 120, 124, 36, 40)
V_ONES = 32
V_QDMA = 48
V_QA = 52
V_OW = 56; V_OR = 57
V_QA2 = 58
V_L = 64
V_S = 96
V_P = 112
V_O = 128
A_Q = 0; A_QB = 64; A_K = 128; A_V = 192
S_Q, S_X, S_O, S_K, S_V, S_W = 16, 20, 24, 28, 32, 36
S_C, S_NC, S_THR, S_WAVE, S_LDSB, S_DOFF, S_INEXT, S_XCD = 40, 41, 42, 43, 44, 45, 46, 47
S_QNEXT, S_KVNEXT, S_QCUR, S_KVCUR, S_QPREV, S_KVPREV = 48, 49, 50, 51, 52, 53
S_BAD = 54
S_LOOP, S_RET, S_WPART, S_T0, S_T1, S_TQ, S_TO = 62, 63, 64, 65, 66, 67, 88
S_STG, S_WQ, S_STG2 = 80, 81, 82
STG = 131072
OOB = 0x40000000

def salu(t, rd=(), wr=(), **k): return Ins(t, "salu", [("s", x) if isinstance(x, int) else x for x in rd], [("s", x) if isinstance(x, int) else x for x in wr], **k)
def valu(t, rd=(), wr=(), kind="valu", **k): return Ins(t, kind, rd, wr, **k)
def V(n, c=1): return R("v", n, c)
def A(n, c=1): return R("a", n, c)
def Sg(n, c=1): return R("s", n, c)

def mfma(d, a, b, c):
    ct = "0" if c is None else rs("v", c, 4)
    t = f"v_mfma_f32_16x16x32_bf16 {rs('v', d, 4)}, {rs(a[0], a[1], 4)}, {rs(b[0], b[1], 4)}, {ct}"
    ab = R(a[0], a[1], 4) + R(b[0], b[1], 4)
    cc = [] if c is None else V(c, 4)
    return Ins(t, "mfma", ab + cc, V(d, 4), srcc=cc, ab=ab)

def QK(qb, T, g):
    out = []
    for kk in range(4):
        for t in range(2):
            d = V_S + 8 * (g % 2) + 4 * t
            out.append(mfma(d, ("a", A_K + 32 * (T % 2) + 16 * t + 4 * kk), ("a", A_Q + 64 * qb + 16 * g + 4 * kk), None if kk == 0 else d))
    return out
def PV(T, g, first):
    out = []
    p = ("v", V_P + 4 * (g % 2))
    for dt in range(8):
        d = V_O + 32 * g + 4 * dt
        out.append(mfma(d, ("a", A_V + 32 * (T % 2) + 4 * dt), p, None if first else d))
    d = V_L + 4 * g
    out.append(mfma(d, ("v", V_ONES), p, None if first else d))
    return out

def SM(g, first, cvt_min):
    s = V_S + 8 * (g % 2); p = V_P + 4 * (g % 2); nm = V_NEGM + g
    o = []
    if first:
        t0, t1 = V_T + 2 * (g % 2), V_T + 2 * (g % 2) + 1
        o.append(valu(f"v_max3_f32 v{t0}, v{s}, v{s+1}, v{s+2}", V(s, 3), V(t0)))
        o.append(valu(f"v_max3_f32 v{t1}, v{s+3}, v{s+4}, v{s+5}", V(s + 3, 3), V(t1)))
        o.append(valu(f"v_max3_f32 v{t0}, v{s+6}, v{s+7}, v{t0}", V(s + 6, 2) + V(t0), V(t0)))
        o.append(valu(f"v_max_f32 v{t0}, v{t0}, v{t1}", V(t0) + V(t1), V(t0)))
        o.append(valu(f"v_mov_b32 v{t1}, v{t0}", V(t0), V(t1)))
        o.append(valu(f"v_permlane32_swap_b32 v{t1}, v{t0}", V(t0) + V(t1), V(t0) + V(t1), kind="perm", cost=8, nogap=True)); o[-1].last = True
        o.append(valu(f"v_max_f32 v{t0}, v{t0}, v{t1}", V(t0) + V(t1), V(t0)))
        o.append(valu(f"v_mov_b32 v{t1}, v{t0}", V(t0), V(t1)))
        o.append(valu(f"v_permlane16_swap_b32 v{t1}, v{t0}", V(t0) + V(t1), V(t0) + V(t1), kind="perm", cost=8, nogap=True)); o[-1].last = True
        o.append(valu(f"v_max_f32 v{t0}, v{t0}, v{t1}", V(t0) + V(t1), V(t0)))
        o.append(valu(f"v_mul_f32 v{nm}, s{S_NC}, v{t0}", V(t0) + Sg(S_NC), V(nm)))
    def fma(r): return valu(f"v_fma_f32 v{s+r}, v{s+r}, s{S_C}, v{nm}", V(s + r) + V(nm) + Sg(S_C), V(s + r))
    def ex(r): return valu(f"v_exp_f32{'_e64' if cfg.e64 else ''} v{s+r}, v{s+r}", V(s + r), V(s + r), kind="trans")
    def cvt(h): return valu(f"v_cvt_pk_bf16_f32 v{p+h}, v{s+2*h}, v{s+2*h+1}", V(s + 2 * h, 2), V(p + h), minpos=cvt_min, nogap=True)
    o += [fma(0), fma(1), ex(0), ex(1), fma(2), fma(3), ex(2), ex(3), cvt(0), fma(4), ex(4), cvt(1), fma(5), ex(5),
          fma(6), fma(7), ex(6), ex(7), cvt(2), cvt(3)]
    o[-1].nogap = False
    return o

def KREADS(T, tagp):
    o = []
    for kk in range(4):
        for t in range(2):
            d = A_K + 32 * (T % 2) + 16 * t + 4 * kk
            o.append(Ins(f"ds_read_b128 {rs('a', d, 4)}, v{V_KA+kk} offset:{(T % 8) * 8192 + t * 4096}", "ds", V(V_KA + kk), A(d, 4), tag=f"K{tagp}"))
    return o
def VREADS(T, tagp):
    o = []
    for dt in range(8):
        for h in range(2):
            d = A_V + 32 * (T % 2) + 4 * dt + 2 * h
            o.append(Ins(f"ds_read_b64_tr_b16 {rs('a', d, 2)}, v{V_VA+dt} offset:{(T % 8) * 8192 + h * 4096}", "ds", V(V_VA + dt), A(d, 2), tag=f"V{tagp}"))
    return o
def DMA(TT, how, tagp):
    o = []
    if how == "inc": o.append(salu(f"s_add_u32 s{S_DOFF}, s{S_DOFF}, 8192", [S_DOFF], [S_DOFF]))
    else: o.append(salu(f"s_add_u32 s{S_DOFF}, s{S_KVNEXT}, s{S_WPART}", [S_KVNEXT, S_WPART], [S_DOFF]))
    o.append(salu(f"s_add_u32 m0, s{S_LDSB}, {(TT % 8) * 8192}", [S_LDSB], [("m0", 0)]))
    nt = cfg.kv_pol
    for p in range(4):
        o.append(Ins(f"buffer_load_dwordx4 v{V_DMA+p}, {rs('s', S_X, 4)}, s{S_DOFF} offen offset:{1024*p}{nt} lds", "dma",
                     V(V_DMA + p) + Sg(S_X, 4) + Sg(S_DOFF) + [("m0", 0)], [], tag=f"D{tagp}", nogap=(p == 0), cost=(14 if p == 0 else 9)))
    return o
def QDMA(n, stg=S_STG):
    g_, c2 = n // 4, (n // 2) % 2
    o = []
    if n == 0: o.append(salu(f"s_add_u32 s{S_TQ}, s{S_QNEXT}, s{S_WQ}", [S_QNEXT, S_WQ], [S_TQ]))
    elif c2 == 0: o.append(salu(f"s_add_u32 s{S_TQ}, s{S_TQ}, 4096", [S_TQ], [S_TQ]))
    o.append(salu(f"s_add_u32 m0, s{stg}, {1024*(n%8) - 128*c2}", [stg], [("m0", 0)]))
    nt = cfg.q_pol
    for h in range(2):
        o.append(Ins(f"buffer_load_dwordx4 v{V_QDMA+h}, {rs('s', S_Q, 4)}, s{S_TQ} offen offset:{1024*h+128*c2}{nt} lds", "dma",
                     V(V_QDMA + h) + Sg(S_Q, 4) + Sg(S_TQ) + [("m0", 0)], [], tag=f"QD{n//2}", nogap=(h == 0), cost=(14 if h == 0 else 9)))
    return o
def QREAD(qb, n, va=V_QA, inbody=False):
    g_, c2 = n // 4, (n // 2) % 2
    o = [wait(("vm", [f"QD{n//2}"]), key=(f"wQD{qb}_{n}" if inbody else None))]
    for k2 in range(2):
        d = A_Q + 64 * qb + 16 * g_ + 4 * (2 * c2 + k2)
        o.append(Ins(f"ds_read_b128 {rs('a', d, 4)}, v{va+k2} offset:{1024*(n%8)}", "ds", V(va + k2), A(d, 4), tag=f"Q{qb}{g_}"))
    return o
def EPI(g, sq, site=None, pol=None):
    l = V_L + 4 * g; r = V_RINV + 2 * g; to = S_TO + g
    o = [valu(f"v_rcp_f32 v{r}, v{l}", V(l), V(r), kind="trans"),
         valu(f"v_cmp_ngt_f32 {rs('s', S_BAD+2*g, 2)}, s{S_THR}, v{l}", V(l) + Sg(S_THR), Sg(S_BAD + 2 * g, 2)),
         salu(f"s_add_u32 s{to}, s{sq}, {4096*g}", [sq], [to])]
    nt = cfg.o_pol if pol is None else pol
    a0 = V_O + 32 * g
    if cfg.pk:
        M = [valu(f"v_pk_mul_f32 v[{a0+e}:{a0+e+1}], v[{a0+e}:{a0+e+1}], v[{r}:{r+1}] op_sel_hi:[1,0]", V(a0 + e, 2) + V(r), V(a0 + e, 2)) for e in range(0, 32, 2)]
        M[0].cost = 16; M[0].late = True
        for x in M[1:]: x.glue = True; x.late = True
    else:
        M = [valu(f"v_mul_f32 v{a0+e}, v{a0+e}, v{r}", V(a0 + e) + V(r), V(a0 + e)) for e in range(32)]
    C = [valu(f"v_cvt_pk_bf16_f32 v{a0+h}, v{a0+2*h}, v{a0+2*h+1}", V(a0 + 2 * h, 2), V(a0 + h)) for h in range(16)]
    W = [Ins(f"ds_write_b64 v{V_OW}, {rs('v', a0 + 2 * h, 2)} offset:{32*h}", "ds", V(V_OW) + V(a0 + 2 * h, 2), [], tag="OW", cost=12) for h in range(8)]
    for x in W: x.delay = cfg.dw_gap
    ot = V_OT[4 * (g % 2):4 * (g % 2) + 4]
    RD = [Ins(f"ds_read_b128 {rs('v', ot[p], 4)}, v{V_OR} offset:{1088*p}", "ds", V(V_OR), V(ot[p], 4), tag=f"OR{g}") for p in range(4)]
    ST = [Ins(f"buffer_store_dwordx4 {rs('v', ot[p], 4)}, v{V_OOFF}, {rs('s', S_O, 4)}, s{to} offen offset:{1024*p}{nt}", "store",
              V(ot[p], 4) + V(V_OOFF) + Sg(S_O, 4) + Sg(to), [], tag="ST", cost=16) for p in range(4)]
    if cfg.cond_wt and pol is None:
        lab = f"L_wt{g}"
        alt = "\n  ".join(x.text + cfg.o_pol_last for x in ST)
        ST[0].text = f"s_cmp_lt_u32 s{S_LOOP}, {cfg.cond_wt}\n  s_cbranch_scc0 {lab}a\n  {alt}\n  s_branch {lab}b\n{lab}a:\n  " + ST[0].text
        ST[3].text = ST[3].text + f"\n{lab}b:"
        ST[0].cost += 8; ST[0].rd += Sg(S_LOOP)
    for x in ST[1:]:
        if cfg.st_gap: x.delay = cfg.st_gap
        else: x.glue = True
    wt = wait(("lgkm", [f"OR{g}"])); wt.delay = 6
    ev = o + M + C; em = W + RD; es = [wt] + ST
    if cfg.direct_o:
        SW = []
        for p in range(4):
            a = a0 + 4 * p
            SW += [valu(f"v_permlane16_swap_b32 v{a}, v{a+2}", V(a) + V(a + 2), V(a) + V(a + 2), kind="perm", cost=8),
                   valu(f"v_permlane16_swap_b32 v{a+1}, v{a+3}", V(a + 1) + V(a + 3), V(a + 1) + V(a + 3), kind="perm", cost=8)]
        ST = [Ins(f"buffer_store_dwordx4 {rs('v', a0 + 4 * p, 4)}, v{V_OW}, {rs('s', S_O, 4)}, s{to} offen offset:{64*p}{nt}", "store",
                  V(a0 + 4 * p, 4) + V(V_OW) + Sg(S_O, 4) + Sg(to), [], tag="ST", cost=24) for p in range(4)]
        for x in ST[1:]: x.glue = True
        ST[0].nogap = True
        ev = o + M + C + SW; em = ST; es = [Ins("", "comment", cost=0)] * 5
    o = es = list(es)
    if site is not None:
        b = S_BAD
        o.append(salu(f"s_or_b64 s[{b}:{b+1}], s[{b}:{b+1}], s[{b+2}:{b+3}]", Sg(b, 4), Sg(b, 2)))
        o.append(salu(f"s_or_b64 s[{b+4}:{b+5}], s[{b+4}:{b+5}], s[{b+6}:{b+7}]", Sg(b + 4, 4), Sg(b + 4, 2)))
        o.append(salu(f"s_or_b64 s[{b}:{b+1}], s[{b}:{b+1}], s[{b+4}:{b+5}]\n  s_cbranch_scc1 L_slow{site}\nL_ret{site}:", Sg(b, 2) + Sg(b + 4, 2), Sg(b, 2), cost=8))
    return ev, em, es

def next_block_calc(pre_inc):
    o = []
    if pre_inc: o.append(salu(f"s_add_u32 s{S_INEXT}, s{S_INEXT}, 32", [S_INEXT], [S_INEXT]))
    o += [salu(f"s_mul_i32 s{S_T0}, s{S_INEXT}, 43691", [S_INEXT], [S_T0]),
          salu(f"s_lshr_b32 s{S_T0}, s{S_T0}, 17", [S_T0], [S_T0]),
          salu(f"s_lshl_b32 s{S_T1}, s{S_XCD}, 6", [S_XCD], [S_T1]),
          salu(f"s_add_u32 s{S_T0}, s{S_T0}, s{S_T1}", [S_T0, S_T1], [S_T0]),
          salu(f"s_lshl_b32 s{S_KVNEXT}, s{S_T0}, 17", [S_T0], [S_KVNEXT]),
          salu(f"s_mul_i32 s{S_T1}, s{S_XCD}, 192", [S_XCD], [S_T1]),
          salu(f"s_add_u32 s{S_T1}, s{S_T1}, s{S_INEXT}", [S_T1, S_INEXT], [S_T1]),
          salu(f"s_lshl_b32 s{S_QNEXT}, s{S_T1}, 16", [S_T1], [S_QNEXT]),
          salu(f"s_cmp_lt_u32 s{S_INEXT}, 192\n  s_cselect_b32 s{S_KVNEXT}, s{S_KVNEXT}, {OOB}\n  s_cselect_b32 s{S_QNEXT}, s{S_QNEXT}, {OOB}",
               [S_INEXT, S_KVNEXT, S_QNEXT], [S_KVNEXT, S_QNEXT], cost=12)]
    return o
def rotate():
    return [salu(f"s_mov_b32 s{S_QPREV}, s{S_QCUR}", [S_QCUR], [S_QPREV]), salu(f"s_mov_b32 s{S_KVPREV}, s{S_KVCUR}", [S_KVCUR], [S_KVPREV]),
            salu(f"s_mov_b32 s{S_QCUR}, s{S_QNEXT}", [S_QNEXT], [S_QCUR]), salu(f"s_mov_b32 s{S_KVCUR}, s{S_KVNEXT}", [S_KVNEXT], [S_KVCUR])]

DEAD = set()
def wait(*need, key=None):
    w = Ins("s_waitcnt ?", "wait", need=list(need)); w.tag = key
    if key is not None and key in DEAD: w.cost = 0; w.kind = "comment"; w.text = ""; w.need = None
    return w
def barrier(): return Ins("s_barrier", "barrier", cost=4)

G = 17
NVE = 51
def setmin(ops, m):
    for o in ops: o.minpos = max(o.minpos, m)
    return ops
def QCOPY(g_):
    return [valu(f"v_accvgpr_mov_b32 a{A_Q+16*g_+r}, a{A_QB+16*g_+r}", A(A_QB + 16 * g_ + r), A(A_Q + 16 * g_ + r)) for r in range(16)]
def sbar(*need, stamp=True):
    p = []
    if cfg.stamps and stamp: p.append(salu("s_memtime s[70:71]\n  s_memrealtime s[92:93]\n  v_mov_b32 v47, s72"))
    p += [wait(*need), barrier()]
    if cfg.stamps and stamp:
        p.append(valu("s_memtime s[72:73]\n  v_mov_b32 v46, s70\n  v_cmp_eq_u32 vcc, s74, v0\n  s_add_u32 s74, s74, 1\n  s_nop 0\n  v_cndmask_b32 v44, v44, v46, vcc\n  v_cndmask_b32 v45, v45, v47, vcc\n  v_mov_b32 v46, s92\n  v_cndmask_b32 v50, v50, v46, vcc", [], V(44, 2)))
    return p
def qread0(g_): return QREAD(0, 4 * g_, V_QA if g_ < 2 else V_QA2) + QREAD(0, 4 * g_ + 2, V_QA if g_ < 2 else V_QA2)
def build_prologue():
    bb = []; pre = {}; st = []; B = []
    for n in range(8):
        T, g = divmod(n, 4); T1, g1 = divmod(n + 1, 4); T0, g0 = divmod(n - 1, 4)
        base = len(bb); B.append(base)
        p = pre.setdefault(base, [])
        if n == 1: p += sbar(("vm", ["D1"]), ("lgkm", "all"))
        if n == 4: p += sbar(("vm", ["D2"]), ("lgkm", "all"), stamp=False)
        if g1 == 0: p.append(wait(("lgkm", [f"K{T1}"])))
        if T1 == 0: p.append(wait(("lgkm", [f"Q0{g1}"])))
        bb += QK(0, T1, g1)
        if n > 0:
            if g0 == 0: pre.setdefault(base + 8, []).append(wait(("lgkm", [f"V{T0}"])))
            bb += PV(T0, g0, T0 == 0)
    B.append(len(bb))
    for n in range(8):
        T, g = divmod(n, 4)
        st.append(Stream(f"SM{n}", SM(g, T == 0, B[n] - 1), (B[n - 1] + 12 if n else 0), B[n + 1] - 1))
    st.append(Stream("QR2", qread0(2), 4, B[1] - 1))
    st.append(Stream("QR3", qread0(3), B[1] + 8, B[2] - 3))
    for k, op in enumerate(KREADS(1, 1)): st.append(Stream(f"K1_{k}", [op], B[1] + 3 * k, B[1] + 3 * k + 4))
    for k, op in enumerate(VREADS(1, 1)): st.append(Stream(f"V1_{k}", [op], B[1] + (5 * k) // 2, B[1] + (5 * k) // 2 + 6))
    for k, op in enumerate(KREADS(2, 2)): st.append(Stream(f"K2_{k}", [op], B[4] + 5 * k, B[4] + 5 * k + 7))
    for k, op in enumerate(VREADS(2, 2)): st.append(Stream(f"V2_{k}", [op], B[5] - 1 + (5 * k) // 2, B[5] - 1 + (5 * k) // 2 + 6))
    d = []
    for TT, gi in ((3, 1), (4, 2), (5, 3), (6, 4), (7, 5), (8, 6)):
        x = DMA(TT, "inc", TT)
        for y in x[3:]: y.glue = True
        setmin(x, B[gi]); x[2].minpos = B[gi] + 3; x[2].maxpos = B[gi] + 10
        d += x
    st.append(Stream("D", d, B[1], B[8] - 1))
    st.append(Stream("NB", rotate() + next_block_calc(True), 0, B[4]))
    out, stats = schedule(bb, st, pre, lambda i: 12 if i < B[4] else 8)
    sb = sbar(("vm", ["D3", "D4"]), ("lgkm", "all"))
    k = [i_ for i_, x in enumerate(sb) if x.kind == "barrier"][0]
    return out + sb[:k] + [salu("s_branch L_entry")]

def build_body():
    bb = []; pre = {}; st = []
    NG = 64
    for n in range(NG):
        T, g = divmod(n, 4)
        n1 = (n + 1) % NG; T1, g1 = divmod(n1, 4)
        n0 = (n - 1) % NG; T0, g0 = divmod(n0, 4)
        base = G * n
        p = pre.setdefault(base, [])
        if n == 0: p += rotate()
        if g == 0 and T % 2 == 0:
            sb = sbar(("vm", [f"D{(T+1)%16}", f"D{(T+2)%16}"]), ("lgkm", "all"))
            if T == 2:
                for x in sb:
                    if x.kind == "wait": x.late = True
                k = [i_ for i_, x in enumerate(sb) if x.kind == "barrier"][0]
                sb.insert(k, Ins("L_entry:", "label", cost=0))
            p += sb
        if g1 == 0: p.append(wait(("lgkm", [f"K{T1}"]), key=f"wK{T1}"))
        if T1 == 0 and g1 >= 2: p.append(wait(("lgkm", [f"Q0{g1}"]), key=f"wQ{T1}{g1}"))
        bb += QK(0, T1, g1)
        if g0 == 0: pre.setdefault(base + 8, []).append(wait(("lgkm", [f"V{T0}"]), key=f"wV{T0}"))
        bb += PV(T0, g0, T0 == 0)
        rel = max(0, base - G + 12) if n != 8 else base
        st.append(Stream(f"SM{n}", SM(g, T == 0, base - 1), rel, base + G - 1))
        if g == 0:
            Tn = (T + 1) % 16; t = T
            for k, op in enumerate(KREADS(Tn, Tn)): st.append(Stream(f"K{Tn}_{k}", [op], base + 5 * k, base + 5 * k + 7))
            for k, op in enumerate(VREADS(Tn, Tn)): st.append(Stream(f"V{Tn}_{k}", [op], base + G - 1 + (5 * k) // 2, base + G - 1 + (5 * k) // 2 + 6))
            TT = (T + 7) % 16
            d = DMA(TT, "next" if t == 9 else "inc", TT)
            for x in d[3:]: x.glue = True
            d[2].minpos = base + 3; d[2].maxpos = base + G
            if cfg.dma_seam:
                if t == 0: d[2].minpos = base + 1; d[2].maxpos = base + 2
                if t == 1: setmin(d, base + 3 * G); d[2].minpos = base + 3 * G + 2; d[2].maxpos = base + 4 * G - 2
            elif t == 0: d[2].maxpos = base + 3 * G
            if t in cfg.qd_tiles:
                qd = QDMA(2 * cfg.qd_tiles.index(t)); qd[-1].glue = True
                setmin(qd[-2:], base + 3 * G + 1)
                d += qd
            st.append(Stream(f"D{TT}", d, base, base + 4 * G - 1))
            if t == 0: st.append(Stream(f"NB{T}", next_block_calc(True), base, base + 3 * G))
            if t in cfg.qr_tiles: st.append(Stream(f"QR{T}", QREAD(1, 2 * cfg.qr_tiles.index(t), inbody=True), base + G, base + 3 * G - 2))
            if t == 15:
                st.append(Stream("QC0", QCOPY(0), base - G + 8, base + 3 * G - 3))
                st.append(Stream("QC1", QCOPY(1), base + 8, base + 4 * G - 1))
                st.append(Stream("QR2", QREAD(0, 8, inbody=True) + QREAD(0, 10, inbody=True), base + G + 8, base + 2 * G + 7))
                st.append(Stream("QR3", QREAD(0, 12, inbody=True) + QREAD(0, 14, inbody=True), base + 2 * G + 8, base + 3 * G + 1, prio=30))
        if T == 15 and g == 1:
            e0 = EPI(0, S_QCUR); e1 = EPI(1, S_QCUR)
            st.append(Stream("E_v0", e0[0], base + G + 5, base + 2 * G + 1))
            st.append(Stream("E_m0", e0[1], base + 2 * G + 2, base + 3 * G - 1, prio=30))
            st.append(Stream("E_v1", e1[0], base + 2 * G + 5, base + 3 * G - 1))
        if n == 0:
            e0 = EPI(0, S_QCUR); e1 = EPI(1, S_QCUR); e2 = EPI(2, S_QPREV); e3 = EPI(3, S_QPREV, site=0)
            st.append(Stream("E_v2", e2[0], base + 4, base + G + 8))
            st.append(Stream("E_v3", e3[0], base + G + 9, base + 2 * G + 14))
            e1[1][-1].maxpos = base + G + 8; e2[1][-1].maxpos = base + 3 * G + 5
            if cfg.burst8:
                e1[2][1].glue = True; e3[2][1].glue = True
                c1 = [e1[2][0]] + e0[2][1:] + e1[2][1:]
                c2 = [e3[2][0]] + e2[2][1:] + e3[2][1:]
                chain = e1[1] + c1 + setmin(e2[1], base + G + 9) + setmin(e3[1], base + 2 * G + 15)
                chain[-1].maxpos = base + 4 * G + 5
                c2[1].maxpos = base + 4 * G + 14
                chain += c2
            else:
                chain = e1[1] + e0[2] + setmin(e2[1], base + G + 9) + e1[2] + setmin(e3[1], base + 2 * G + 15)
                chain[-1].maxpos = base + 4 * G + 5
                sg = max(cfg.st_gap, 2)
                for k, x in enumerate(e2[2][:5] + e3[2][:5]): x.maxpos = base + 4 * G + 12 + sg * k
                chain += e2[2] + e3[2]
            st.append(Stream("E_m", chain, base, base + 4 * G + 14 + max(cfg.st_gap, 2) * 10, prio=10))
    def tfn(i):
        n = i // G; T = (n // 4) % 16
        if T == 15 and i % (4 * G) >= 2 * G + 4: return cfg.seam_t
        if T == 0: return cfg.seam_t
        return 8
    return schedule(bb, st, pre, tfn)

def build_drain():
    bb = PV(15, 3, False)
    pre = {0: rotate()}
    e0 = EPI(0, S_QCUR, pol=cfg.o_pol_last); e1 = EPI(1, S_QCUR, pol=cfg.o_pol_last); e2 = EPI(2, S_QPREV, pol=cfg.o_pol_last); e3 = EPI(3, S_QPREV, site=1, pol=cfg.o_pol_last)
    seq = e0[2] + e1[1] + setmin(e2[0], 3) + e1[2] + e2[1] + setmin(e3[0], 8) + e2[2] + e3[1] + e3[2]
    for x in seq: x.delay = 0
    st = [Stream("E", seq, 0, 8)]
    out, stats = schedule(bb, st, pre, lambda i: 24)
    return out

def build_init():
    o = []
    def s(t, rd=(), wr=()): o.append(salu(t, rd, wr))
    def v(t, rd=(), wr=()): o.append(valu(t, rd, wr))
    if cfg.stamps: s("s_memrealtime s[94:95]")
    s("s_cmp_ge_u32 s2, 256\n  s_cbranch_scc1 L_end")
    s("s_load_dwordx8 s[4:11], s[0:1], 0", [], list(range(4, 12)))
    s("s_load_dwordx4 s[12:15], s[0:1], 32", [], list(range(12, 16)))
    v("v_lshrrev_b32 v1, 6, v0", V(0), V(1))
    v("v_and_b32 v0, 63, v0", V(0), V(0))
    v(f"v_readfirstlane_b32 s{S_WAVE}, v1", V(1), Sg(S_WAVE))
    v("v_and_b32 v36, 15, v0", V(0), V(36)); v("v_lshrrev_b32 v37, 4, v0", V(0), V(37)); v("v_lshrrev_b32 v38, 2, v0", V(0), V(38))
    s(f"s_lshr_b32 s{S_T0}, s{S_WAVE}, 1", [S_WAVE], [S_T0])
    s(f"s_and_b32 s{S_T1}, s{S_WAVE}, 1", [S_WAVE], [S_T1])
    s(f"s_lshl_b32 s{S_WPART}, s{S_T1}, 12", [S_T1], [S_WPART])
    s(f"s_lshl_b32 s{S_LDSB}, s{S_T0}, 16", [S_T0], [S_LDSB])
    s(f"s_add_u32 s{S_LDSB}, s{S_LDSB}, s{S_WPART}", [S_LDSB, S_WPART], [S_LDSB])
    s(f"s_lshr_b32 s{S_TQ}, 15, s{S_T0}", [S_T0], [S_TQ])
    for p in range(4):
        v(f"v_add_u32 v39, {4*p}, v37", V(37), V(39)); v(f"v_and_b32 v39, s{S_TQ}, v39", V(39) + Sg(S_TQ), V(39))
        v(f"v_lshlrev_b32 v39, s{S_T0}, v39", V(39) + Sg(S_T0), V(39)); v("v_xor_b32 v39, v39, v36", V(39) + V(36), V(39))
        v("v_lshlrev_b32 v39, 4, v39", V(39), V(39)); v(f"v_lshl_add_u32 v{V_DMA+p}, v37, 8, v39", V(37) + V(39), V(V_DMA + p))
    v("v_lshrrev_b32 v39, 3, v0", V(0), V(39)); v("v_and_b32 v40, 6, v39", V(39), V(40)); v("v_and_b32 v41, 7, v0", V(0), V(41))
    v("v_xor_b32 v40, v40, v41", V(40) + V(41), V(40)); v("v_lshlrev_b32 v40, 4, v40", V(40), V(40))
    v(f"v_lshl_add_u32 v{V_QDMA}, v39, 8, v40", V(39) + V(40), V(V_QDMA)); v(f"v_add_u32 v{V_QDMA+1}, 1024, v{V_QDMA}", V(V_QDMA), V(V_QDMA + 1))
    s(f"s_lshl_b32 s{S_WQ}, s{S_WAVE}, 14", [S_WAVE], [S_WQ])
    s(f"s_lshl_b32 s{S_STG}, s{S_WAVE}, 13", [S_WAVE], [S_STG]); s(f"s_add_u32 s{S_STG}, s{S_STG}, {STG}", [S_STG], [S_STG])
    s(f"s_lshl_b32 s{S_STG2}, s{S_T0}, 16", [S_T0], [S_STG2]); s(f"s_lshl_b32 s{S_T1}, s{S_WPART}, 1", [S_WPART], [S_T1])
    s(f"s_add_u32 s{S_STG2}, s{S_STG2}, s{S_T1}", [S_STG2, S_T1], [S_STG2]); s(f"s_add_u32 s{S_STG2}, s{S_STG2}, {6*8192}", [S_STG2], [S_STG2])
    s(f"s_and_b32 s{S_XCD}, s2, 7", [], [S_XCD]); s(f"s_lshr_b32 s{S_INEXT}, s2, 3", [], [S_INEXT])
    early = o; o = late = []
    for kk in range(4):
        v(f"v_or_b32 v39, {4*kk}, v37", V(37), V(39)); v("v_xor_b32 v39, v39, v36", V(39) + V(36), V(39))
        v("v_lshlrev_b32 v39, 4, v39", V(39), V(39)); v(f"v_lshl_add_u32 v{V_KA+kk}, v36, 8, v39", V(36) + V(39), V(V_KA + kk))
    v("v_and_b32 v40, 7, v38", V(38), V(40)); v("v_and_b32 v41, 3, v0", V(0), V(41)); v("v_lshlrev_b32 v41, 3, v41", V(41), V(41))
    v("v_lshl_add_u32 v41, v38, 8, v41", V(38) + V(41), V(41)); v("v_add_u32 v41, 0x10000, v41", V(41), V(41))
    for dt in range(8):
        v(f"v_xor_b32 v39, {dt}, v40", V(40), V(39)); v(f"v_lshl_add_u32 v{V_VA+dt}, v39, 5, v41", V(39) + V(41), V(V_VA + dt))
    v("v_and_b32 v40, 6, v36", V(36), V(40)); v("v_and_b32 v41, 7, v36", V(36), V(41)); v("v_lshrrev_b32 v42, 3, v36", V(36), V(42))
    v("v_lshlrev_b32 v41, 7, v41", V(41), V(41)); v("v_lshl_add_u32 v41, v42, 10, v41", V(42) + V(41), V(41))
    for k2 in range(2):
        v(f"v_or_b32 v39, {4*k2}, v37", V(37), V(39)); v("v_xor_b32 v39, v39, v40", V(39) + V(40), V(39))
        v("v_lshl_add_u32 v39, v39, 4, v41", V(39) + V(41), V(39))
        v(f"v_add_u32 v{V_QA+k2}, s{S_STG}, v39", V(39) + Sg(S_STG), V(V_QA + k2))
        v(f"v_add_u32 v{V_QA2+k2}, s{S_STG2}, v39", V(39) + Sg(S_STG2), V(V_QA2 + k2))
    v(f"v_lshlrev_b32 v39, 4, v0", V(0), V(39)); v(f"v_add_u32 v{V_OOFF}, s{S_WQ}, v39", V(39) + Sg(S_WQ), V(V_OOFF))
    v("v_mul_u32_u24 v39, 272, v36", V(36), V(39)); v("v_lshl_add_u32 v39, v37, 3, v39", V(37) + V(39), V(39))
    v(f"v_add_u32 v{V_OW}, s{S_STG}, v39", V(39) + Sg(S_STG), V(V_OW))
    if cfg.direct_o:
        v("v_and_b32 v39, 1, v37", V(37), V(39)); v("v_lshlrev_b32 v39, 5, v39", V(39), V(39)); v("v_lshrrev_b32 v40, 1, v37", V(37), V(40))
        v("v_lshl_add_u32 v39, v40, 4, v39", V(40) + V(39), V(39)); v("v_lshl_add_u32 v39, v36, 8, v39", V(36) + V(39), V(39))
        v(f"v_add_u32 v{V_OW}, s{S_WQ}, v39", V(39) + Sg(S_WQ), V(V_OW))
    v("v_mul_u32_u24 v39, 272, v37", V(37), V(39)); v("v_lshl_add_u32 v39, v36, 4, v39", V(36) + V(39), V(39))
    v(f"v_add_u32 v{V_OR}, s{S_STG}, v39", V(39) + Sg(S_STG), V(V_OR))
    v("v_and_b32 v39, 3, v0", V(0), V(39)); v("v_cmp_eq_u32 vcc, 0, v39", V(39), [("vcc", 0)]); v("v_mov_b32 v40, 0x3f803f80", [], V(40))
    v("v_mov_b32 v39, 0", [], V(39))
    for e in range(4): v(f"v_cndmask_b32 v{V_ONES+e}, v39, v40, vcc", V(39) + V(40) + [("vcc", 0)], V(V_ONES + e))
    for r in list(range(V_L, V_L + 16)) + list(range(V_P, V_P + 8)): v(f"v_mov_b32 v{r}, 0", [], V(r))
    s(f"s_mov_b32 s{S_C}, 0x{CSCALE:08x}", [], [S_C]); s(f"s_mov_b32 s{S_NC}, 0x{CSCALE | 0x80000000:08x}", [], [S_NC])
    s(f"s_mov_b32 s{S_THR}, 0x{f32(2.0 ** cfg.thr_log2):08x}", [], [S_THR])
    for r in range(S_BAD, S_BAD + 8): s(f"s_mov_b32 s{r}, 0", [], [r])
    for r in range(S_TO, S_TO + 4): s(f"s_mov_b32 s{r}, {OOB}", [], [r])
    s(f"s_mov_b32 s{S_QCUR}, {OOB}", [], [S_QCUR]); s(f"s_mov_b32 s{S_KVCUR}, {OOB}", [], [S_KVCUR])
    s(f"s_mov_b32 s{S_LOOP}, 5", [], [S_LOOP])
    if cfg.stamps:
        s("s_mov_b32 s74, 1\n  s_memtime s[72:73]\n  s_memrealtime s[76:77]\n v_mov_b32 v44, 0\n v_mov_b32 v45, 0\n v_mov_b32 v50, 0")
    o = early
    o += next_block_calc(False)
    s("s_waitcnt lgkmcnt(0)")
    if cfg.stamps: s("s_memrealtime s[96:97]")
    for srd, ptr, size in ((S_Q, 4, 0x6000000), (S_O, 10, 0x6000000), (S_K, 6, 0x4000000), (S_V, 8, 0x4000000), (S_W, 14, 402653184)):
        o = early if srd == S_Q else late
        s(f"s_mov_b32 s{srd}, s{ptr}", [ptr], [srd]); s(f"s_mov_b32 s{srd+1}, s{ptr+1}", [ptr + 1], [srd + 1])
        s(f"s_mov_b32 s{srd+2}, {size}", [], [srd + 2]); s(f"s_mov_b32 s{srd+3}, 0x00020000", [], [srd + 3])
    o = early
    s(f"s_cmp_ge_u32 s{S_WAVE}, 2\n  s_cselect_b32 s{S_X}, s8, s6\n  s_cselect_b32 s{S_X+1}, s9, s7", [S_WAVE, 6, 7, 8, 9], [S_X, S_X + 1])
    s(f"s_mov_b32 s{S_X+2}, 0x4000000", [], [S_X + 2]); s(f"s_mov_b32 s{S_X+3}, 0x00020000", [], [S_X + 3])
    def dma(TT, how):
        d = DMA(TT, how, TT); return d[:2] + [salu("s_nop 0")] + d[2:]
    def qdma(g_):
        r = []
        for n in (4 * g_, 4 * g_ + 2):
            d = QDMA(n, S_STG if g_ < 2 else S_STG2); r += d[:-2] + [salu("s_nop 0")] + d[-2:]
        return r
    def qread(g_): return QREAD(0, 4 * g_, V_QA if g_ < 2 else V_QA2) + QREAD(0, 4 * g_ + 2, V_QA if g_ < 2 else V_QA2)
    o += dma(0, "first") + qdma(0) + qdma(1) + qdma(2)
    if cfg.codepf:
        s("s_getpc_b64 s[84:85]\nL_pf:", [], [84, 85]); s("s_and_b32 s84, s84, 0xffffffc0", [84], [84]); s("s_mov_b32 s86, L_end-L_pf", [], [86]); s("s_mov_b32 s87, 0x00020000", [], [87])
        s(f"s_lshl_b32 s83, s{S_WAVE}, 13", [S_WAVE], [83]); v("v_lshlrev_b32 v51, 6, v0", V(0), V(51)); s("s_add_u32 s69, s83, 4096", [83], [69])
        o.append(Ins("buffer_load_dword v54, v51, s[84:87], s83 offen", "vmem", V(51) + Sg(84, 4) + Sg(83), V(54), tag="PF"))
        o.append(Ins("buffer_load_dword v55, v51, s[84:87], s69 offen", "vmem", V(51) + Sg(84, 4) + Sg(69), V(55), tag="PF"))
    o += late
    if cfg.stamps: s("s_memrealtime s[98:99]")
    o += [wait(("vm", ["D0"])), barrier()]
    if cfg.stamps: s("s_memrealtime s[100:101]\n  s_waitcnt lgkmcnt(0)\n  v_writelane_b32 v50, s94, 50\n  v_writelane_b32 v50, s96, 51\n  v_writelane_b32 v50, s98, 52\n  v_writelane_b32 v50, s100, 53")
    o += KREADS(0, 0) + dma(1, "inc") + qread0(0) + VREADS(0, 0) + qdma(3)
    o += [wait(("lgkm", ["K0", "Q00"]))]
    qk = QK(0, 0, 0)
    o += qk[:4] + qread0(1) + qk[4:] + dma(2, "inc")
    return o

def slow_stub():
    t = []
    for site in range(2):
        t.append(f"L_slow{site}:\n  s_branch L_ret{site}")
    return "\n".join(t)

def dataflow(trace):
    errs = []; stt = {}; cnt = {}
    inS = lambda r: r[0] == "v" and V_S <= r[1] < V_S + NS
    inP = lambda r: r[0] == "v" and V_P <= r[1] < V_P + 8
    inO = lambda r: r[0] == "v" and (V_O <= r[1] < V_O + 128 or V_L <= r[1] < V_L + 16)
    for x in trace:
        t = x.text
        if x.kind == "mfma":
            for r in x.wr:
                if inS(r):
                    if cnt.get(r, 4) == 4:
                        if stt.get(r, "c") != "c": errs.append(f"S overwritten before consumed {r} [{t}]")
                        cnt[r] = 1
                    else: cnt[r] += 1
                    stt[r] = "m"
                if inO(r):
                    if not x.srcc:
                        if stt.get(r, "done") != "done": errs.append(f"O overwritten before stored {r} [{t}]")
                        cnt[r] = 1
                    else: cnt[r] = cnt.get(r, 15) + 1
                    stt[r] = "acc"
            for r in x.ab:
                if inP(r):
                    if stt.get(r, "new") != "new": errs.append(f"P read when not new {r} [{t}]")
                    cnt[r] = cnt.get(r, 0) + 1
                    if cnt[r] == 9: stt[r] = "used"; cnt[r] = 0
        else:
            for r in x.rd:
                if inS(r) and cnt.get(r, 4) != 4: errs.append(f"S read while partial {r} [{t}]")
                if inS(r) and t.startswith("v_cvt"): stt[r] = "c"
                if inO(r) and stt.get(r) == "acc" and cnt.get(r) != 16: errs.append(f"O read early {r} cnt {cnt.get(r)} [{t}]")
            if x.kind == "store" and "offset:192" in t:
                for k in range(32): stt[("v", x.rd[0][1] - 12 + k)] = "done"
            if t.startswith("ds_write") and EPI_LAST_W in t:
                a0 = x.rd[1][1] - 14
                for k in range(32): stt[("v", a0 + k)] = "done"
            if t.startswith("v_cmp_ngt"):
                for k in range(4): stt[("v", x.rd[0][1] + k)] = "done"
            for r in x.wr:
                if inP(r) and t.startswith("v_cvt"):
                    if stt.get(r, "used") != "used": errs.append(f"P overwritten before used {r} [{t}]")
                    stt[r] = "new"; cnt[r] = 0
    return errs
def ldsflow(trace):
    import re
    errs = []
    vm = []; lg = []
    vis = {}
    rdst = {}
    m0 = None
    def region_of_read(x):
        t = x.text; off = int(re.search(r"offset:(\d+)", t).group(1)); a = x.rd[0][1]
        if V_KA <= a < V_KA + 4: return [("ring", off // 8192)]
        if V_VA <= a < V_VA + 8: return [("ring", off // 8192)]
        if a in (V_QA, V_QA + 1): return [("stg", off // 1024), ("stg", off // 1024 + 1)]
        if a in (V_QA2, V_QA2 + 1): return [("ring", 6), ("ring", 7), ("stg2", off // 1024), ("stg2", off // 1024 + 1)]
        return None
    for x in trace:
        t = x.text
        if x.kind == "salu" and " m0," in t:
            m = re.search(r"m0, s(\d+), (-?\d+)", t); m0 = (int(m.group(1)), int(m.group(2)))
        if x.kind == "dma":
            off = int(re.search(r"offset:(\d+)", t).group(1))
            if m0[0] == S_LDSB: reg = ("ring", m0[1] // 8192); shared = True
            elif m0[0] == S_STG: reg = ("stg", (m0[1] + off) // 1024); shared = False
            else: reg = ("stg2", (m0[1] + off) // 1024); shared = False
            st_ = rdst.get(reg, "free")
            if st_ == "pending" or (shared and st_ != "free"): errs.append(f"LDS WAR: DMA into {reg} while reads {st_} [{t}]")
            vis[reg] = "flight"; vm.append(reg)
        elif x.kind in ("vmem", "store"): vm.append(None)
        elif x.kind == "ds":
            regs = region_of_read(x) if t.startswith("ds_read") else None
            if regs:
                for reg in regs:
                    if reg[0] == "ring" and len(regs) > 1: rdst[reg] = "pending"; continue
                    need = "visible" if reg[0] == "ring" else "landed"
                    if vis.get(reg) != need and not (need == "landed" and vis.get(reg) == "visible"): errs.append(f"LDS RAW: read of {reg} state {vis.get(reg)} [{t}]")
                    rdst[reg] = "pending"
            if t.startswith("ds_write"):
                for k in range(5):
                    if vis.get(("stg", k)) == "flight": errs.append(f"O staging write while Q DMA in flight [{t}]")
            if t.startswith("ds_read_b128 v"): regs = [("stg", k) for k in range(5)]; [rdst.__setitem__(r, "pending") for r in regs]
            lg.append(regs or [])
        elif x.kind == "wait":
            m = re.search(r"vmcnt\((\d+)\)", t)
            if m:
                N = int(m.group(1)); done = vm[:max(0, len(vm) - N)]; vm = vm[len(done):]
                for reg in done:
                    if reg is not None and reg not in vm: vis[reg] = "landed"
            m = re.search(r"lgkmcnt\((\d+)\)", t)
            if m:
                N = int(m.group(1)); done = lg[:max(0, len(lg) - N)]; lg = lg[len(done):]
                still = {r for l in lg for r in l}
                for l in done:
                    for reg in l:
                        if reg not in still: rdst[reg] = "retired"
        elif x.kind == "barrier":
            for reg, v_ in vis.items():
                if v_ == "landed": vis[reg] = "visible"
            for reg, v_ in rdst.items():
                if v_ == "retired": rdst[reg] = "free"
    return errs
EPI_LAST_W = "offset:224"
NS = 16
def main():
    tail = [salu(f"s_sub_u32 s{S_LOOP}, s{S_LOOP}, 1\n  s_cbranch_scc0 L_loop", [S_LOOP], [S_LOOP], cost=8)]
    for it in range(3):
        init = build_init()
        body, stats = build_body()
        drain = build_drain()
        init += build_prologue()
        ent = lambda bd: [k for k, x in enumerate(bd) if x.text == "L_entry:"][0]
        trace = init + body[ent(body):] + tail + (body + tail) * 5 + drain
        best = resolve_waits(trace)
        for l in (init, body, drain): apply_waits(l, best)
        dead = lambda x: (x.kind == "wait" and x.need is not None and x.text == "s_nop 0") or x.kind == "comment"
        nd = {x.tag for x in body if x.kind == "wait" and dead(x) and x.tag}
        if nd <= DEAD: break
        DEAD.update(nd)
    init = [x for x in init if not dead(x)]; body = [x for x in body if not dead(x)]; drain = [x for x in drain if not dead(x)]
    if cfg.abl:
        def drop(x):
            t = x.text
            return (('exp' in cfg.abl and t.startswith('v_exp')) or ('fma' in cfg.abl and t.startswith('v_fma')) or
                    ('ds' in cfg.abl and t.startswith('ds_read') and ' a[' in t) or ('dma' in cfg.abl and x.kind == 'dma') or
                    ('bar' in cfg.abl and x.kind == 'barrier') or ('cvt' in cfg.abl.split(',') and t.startswith('v_cvt') and int(t.split()[1][1:-1]) < 128) or
                    ('st' in cfg.abl.split(',') and x.kind == 'store') or ('dw' in cfg.abl and t.startswith('ds_write')) or ('rd' in cfg.abl and t.startswith('ds_read_b128 v')) or ('pk' in cfg.abl and t.startswith('v_pk_mul')) or ('perm' in cfg.abl and 'permlane' in t) or ('qc' in cfg.abl and 'accvgpr_mov' in t) or ('ecvt' in cfg.abl and t.startswith('v_cvt') and int(t.split()[1][1:-1]) >= 128) or ('wt' in cfg.abl and x.kind == 'wait' and x.need and x.need[0][1] in (['OR0'], ['OR1'], ['OR2'], ['OR3'])) or ('ones' in cfg.abl and x.kind == 'mfma' and 'v[32:35]' in t) or
                    ('epi' in cfg.abl and (t.startswith('v_mul_f32 v1') or t.startswith('v_mul_f32 v2') or t.startswith('ds_write') or t.startswith('ds_read_b128 v') or (t.startswith('v_cvt') and int(t.split()[1][1:-1]) >= 128))))
        body = [x for x in body if not drop(x)]
    init, n1 = fix_hazards(init); body, n2 = fix_hazards(body); drain, n3 = fix_hazards(drain)
    print("nops inserted", n1, n2, n3, file=sys.stderr)
    trace = init + body[ent(body):] + tail + (body + tail) * 5 + drain
    errs = check(trace)
    errs += dataflow(trace) + ldsflow(trace)
    written = {("s", 0), ("s", 1), ("s", 2), ("v", 0)}
    for x in trace:
        for r in x.rd:
            if r[0] in ("s", "m0") and r not in written: errs.append(f"uninitialised {r} read by [{x.text}]")
            if r[0] == "v" and r not in written and x.kind in ("dma", "vmem", "ds") : errs.append(f"uninitialised {r} read by [{x.text}]") if not x.text.startswith("ds_write") else None
        written.update(x.wr)
    seen = set()
    for e in errs:
        if e not in seen: print("ERR", e, file=sys.stderr); seen.add(e)
    tot = sum(x.cost for x in body)
    under = sum(1 for f in stats[1:] if f < 8)
    est = sum(8 + max(8, f) for f in stats[1:])
    seg = [sum(8 + max(8, f) for f in stats[1 + 136 * k:1 + 136 * (k + 1)]) for k in range(8)]
    print("est per 2 tiles", seg, file=sys.stderr)
    print(f"body instrs {len(body)} issue-cycles {tot} est cycles {est} underfilled gaps {under}", file=sys.stderr)
    hdr = open("header.txt").read()
    lines = [hdr, '.amdgcn_target "amdgcn-amd-amdhsa--gfx950"', ".text", f".globl {NAME}", ".p2align 8", f".type {NAME},@function", f"{NAME}:"]
    lines += ["  " + x.text for x in init]
    lines += [".p2align 6"] + ["  s_nop 0"] * cfg.pad + ["L_loop:"] + ["  " + x.text for x in body + tail]
    lines += ["  " + x.text for x in drain]
    if cfg.stamps:
        lines += ["""  s_waitcnt vmcnt(0) lgkmcnt(0)
  s_memtime s[70:71]
  s_memrealtime s[78:79]
  s_waitcnt lgkmcnt(0)
  v_writelane_b32 v44, s70, 49
  v_writelane_b32 v45, s72, 49
  v_writelane_b32 v50, s78, 54
  s_sub_u32 s78, s78, s76
  v_writelane_b32 v44, s78, 0
  v_writelane_b32 v45, s76, 0
  s_lshl_b32 s75, s2, 2
  s_add_u32 s75, s75, s%d
  s_lshl_b32 s75, s75, 9
  v_lshlrev_b32 v46, 3, v0
  buffer_store_dwordx2 v[44:45], v46, s[%d:%d], s75 offen
  s_add_u32 s94, s75, 0x100000
  v_lshlrev_b32 v46, 2, v0
  buffer_store_dword v50, v46, s[36:39], s94 offen
  s_cmp_lg_u32 s75, 0
  s_cbranch_scc1 L_end
  s_mov_b32 s84, s12
  s_mov_b32 s85, s13
  s_mov_b32 s86, 256
  s_mov_b32 s87, 0x00020000
  v_readlane_b32 s75, v45, 1
  v_add_u32 v46, 2, v0
  v_mul_u32_u24 v47, 43691, v46
  v_lshrrev_b32 v47, 17, v47
  v_mul_u32_u24 v48, 3, v47
  v_sub_u32 v48, v46, v48
  v_subrev_u32 v47, 1, v47
  v_subrev_u32 v49, s75, v44
  v_cmp_eq_u32 vcc, 0, v48
  v_mov_b32 v50, 1000
  v_cndmask_b32 v47, v50, v47, vcc
  v_cmp_lt_u32 vcc, 40, v0
  s_nop 1
  v_cndmask_b32 v47, v47, v50, vcc
  v_writelane_b32 v47, 14, 0
  v_writelane_b32 v47, 15, 49
  v_readlane_b32 s75, v44, 0
  s_nop 3
  v_writelane_b32 v49, s75, 0
  v_lshlrev_b32 v47, 2, v47
  buffer_store_dword v49, v47, s[84:87], 0 offen""" % (S_WAVE, S_W, S_W + 3)]
    lines += ["L_end:", "  s_endpgm"]
    if cfg.slow:
        import slow
        lines.append(slow.emit(globals()))
    else: lines.append(slow_stub())
    lines += ['.section .rodata,"a"', ".p2align 6", f".amdhsa_kernel {NAME}", "  .amdhsa_next_free_vgpr 512", "  .amdhsa_next_free_sgpr 102",
              "  .amdhsa_accum_offset 256", "  .amdhsa_group_segment_fixed_size 0", "  .amdhsa_kernarg_size 48", "  .amdhsa_user_sgpr_count 2",
              "  .amdhsa_user_sgpr_kernarg_segment_ptr 1", "  .amdhsa_system_sgpr_workgroup_id_x 1", ".end_amdhsa_kernel"]
    open(sys.argv[1], "w").write("\n".join(lines) + "\n")
    if errs and not cfg.abl: sys.exit(1)
main()
```

```python
import sys, math, struct
from asmlib import *

class Cfg:
    nt_q = False; nt_kv = False; nt_o = False
    thr_log2 = 24
    slow = True
    stamps = False
    seam_t = 36
    abl = ''
    pk = True
    burst8 = False
    o_pol = ''
    o_pol_last = ' sc0 sc1'
    cond_wt = 0
    codepf = False
    dw_glue = 0
    rd_glue = True
    pad = 0
    e64 = False
    dma_seam = True
    direct_o = False
    kv_pol = ''
    q_pol = ' nt'
    qd_tiles = [2, 3, 5, 6, 8, 9, 11, 12]
    qr_tiles = [6, 7, 9, 10]
    dw_gap = 1
    st_gap = 0
cfg = Cfg()
for a in sys.argv[2:]:
    k, v = a.split("="); setattr(cfg, k, eval(v))

NAME = "standalone__mha_softmax__near_ridge_kernel"
def f32(x): return struct.unpack("<I", struct.pack("<f", x))[0]
CSCALE = f32(128 ** -0.5 * math.log2(math.e))

V_KA = 2
V_VA = 6
V_DMA = 14
V_QOFF = 18; V_OOFF = 19
V_NEGM = 20
V_RINV = 24
V_T = 60
V_OT = (80, 84, 88, 92, 120, 124, 36, 40)
V_ONES = 32
V_QDMA = 48
V_QA = 52
V_OW = 56; V_OR = 57
V_QA2 = 58
V_L = 64
V_S = 96
V_P = 112
V_O = 128
A_Q = 0; A_QB = 64; A_K = 128; A_V = 192
S_Q, S_X, S_O, S_K, S_V, S_W = 16, 20, 24, 28, 32, 36
S_C, S_NC, S_THR, S_WAVE, S_LDSB, S_DOFF, S_INEXT, S_XCD = 40, 41, 42, 43, 44, 45, 46, 47
S_QNEXT, S_KVNEXT, S_QCUR, S_KVCUR, S_QPREV, S_KVPREV = 48, 49, 50, 51, 52, 53
S_BAD = 54
S_LOOP, S_RET, S_WPART, S_T0, S_T1, S_TQ, S_TO = 62, 63, 64, 65, 66, 67, 88
S_STG, S_WQ, S_STG2 = 80, 81, 82
STG = 131072
OOB = 0x40000000

def salu(t, rd=(), wr=(), **k): return Ins(t, "salu", [("s", x) if isinstance(x, int) else x for x in rd], [("s", x) if isinstance(x, int) else x for x in wr], **k)
def valu(t, rd=(), wr=(), kind="valu", **k): return Ins(t, kind, rd, wr, **k)
def V(n, c=1): return R("v", n, c)
def A(n, c=1): return R("a", n, c)
def Sg(n, c=1): return R("s", n, c)

def mfma(d, a, b, c):
    ct = "0" if c is None else rs("v", c, 4)
    t = f"v_mfma_f32_16x16x32_bf16 {rs('v', d, 4)}, {rs(a[0], a[1], 4)}, {rs(b[0], b[1], 4)}, {ct}"
    ab = R(a[0], a[1], 4) + R(b[0], b[1], 4)
    cc = [] if c is None else V(c, 4)
    return Ins(t, "mfma", ab + cc, V(d, 4), srcc=cc, ab=ab)

def QK(qb, T, g):
    out = []
    for kk in range(4):
        for t in range(2):
            d = V_S + 8 * (g % 2) + 4 * t
            out.append(mfma(d, ("a", A_K + 32 * (T % 2) + 16 * t + 4 * kk), ("a", A_Q + 64 * qb + 16 * g + 4 * kk), None if kk == 0 else d))
    return out
def PV(T, g, first):
    out = []
    p = ("v", V_P + 4 * (g % 2))
    for dt in range(8):
        d = V_O + 32 * g + 4 * dt
        out.append(mfma(d, ("a", A_V + 32 * (T % 2) + 4 * dt), p, None if first else d))
    d = V_L + 4 * g
    out.append(mfma(d, ("v", V_ONES), p, None if first else d))
    return out

def SM(g, first, cvt_min):
    s = V_S + 8 * (g % 2); p = V_P + 4 * (g % 2); nm = V_NEGM + g
    o = []
    if first:
        t0, t1 = V_T + 2 * (g % 2), V_T + 2 * (g % 2) + 1
        o.append(valu(f"v_max3_f32 v{t0}, v{s}, v{s+1}, v{s+2}", V(s, 3), V(t0)))
        o.append(valu(f"v_max3_f32 v{t1}, v{s+3}, v{s+4}, v{s+5}", V(s + 3, 3), V(t1)))
        o.append(valu(f"v_max3_f32 v{t0}, v{s+6}, v{s+7}, v{t0}", V(s + 6, 2) + V(t0), V(t0)))
        o.append(valu(f"v_max_f32 v{t0}, v{t0}, v{t1}", V(t0) + V(t1), V(t0)))
        o.append(valu(f"v_mov_b32 v{t1}, v{t0}", V(t0), V(t1)))
        o.append(valu(f"v_permlane32_swap_b32 v{t1}, v{t0}", V(t0) + V(t1), V(t0) + V(t1), kind="perm", cost=8, nogap=True)); o[-1].last = True
        o.append(valu(f"v_max_f32 v{t0}, v{t0}, v{t1}", V(t0) + V(t1), V(t0)))
        o.append(valu(f"v_mov_b32 v{t1}, v{t0}", V(t0), V(t1)))
        o.append(valu(f"v_permlane16_swap_b32 v{t1}, v{t0}", V(t0) + V(t1), V(t0) + V(t1), kind="perm", cost=8, nogap=True)); o[-1].last = True
        o.append(valu(f"v_max_f32 v{t0}, v{t0}, v{t1}", V(t0) + V(t1), V(t0)))
        o.append(valu(f"v_mul_f32 v{nm}, s{S_NC}, v{t0}", V(t0) + Sg(S_NC), V(nm)))
    def fma(r): return valu(f"v_fma_f32 v{s+r}, v{s+r}, s{S_C}, v{nm}", V(s + r) + V(nm) + Sg(S_C), V(s + r))
    def ex(r): return valu(f"v_exp_f32{'_e64' if cfg.e64 else ''} v{s+r}, v{s+r}", V(s + r), V(s + r), kind="trans")
    def cvt(h): return valu(f"v_cvt_pk_bf16_f32 v{p+h}, v{s+2*h}, v{s+2*h+1}", V(s + 2 * h, 2), V(p + h), minpos=cvt_min, nogap=True)
    o += [fma(0), fma(1), ex(0), ex(1), fma(2), fma(3), ex(2), ex(3), cvt(0), fma(4), ex(4), cvt(1), fma(5), ex(5),
          fma(6), fma(7), ex(6), ex(7), cvt(2), cvt(3)]
    o[-1].nogap = False
    return o

def KREADS(T, tagp):
    o = []
    for kk in range(4):
        for t in range(2):
            d = A_K + 32 * (T % 2) + 16 * t + 4 * kk
            o.append(Ins(f"ds_read_b128 {rs('a', d, 4)}, v{V_KA+kk} offset:{(T % 8) * 8192 + t * 4096}", "ds", V(V_KA + kk), A(d, 4), tag=f"K{tagp}"))
    return o
def VREADS(T, tagp):
    o = []
    for dt in range(8):
        for h in range(2):
            d = A_V + 32 * (T % 2) + 4 * dt + 2 * h
            o.append(Ins(f"ds_read_b64_tr_b16 {rs('a', d, 2)}, v{V_VA+dt} offset:{(T % 8) * 8192 + h * 4096}", "ds", V(V_VA + dt), A(d, 2), tag=f"V{tagp}"))
    return o
def DMA(TT, how, tagp):
    o = []
    if how == "inc": o.append(salu(f"s_add_u32 s{S_DOFF}, s{S_DOFF}, 8192", [S_DOFF], [S_DOFF]))
    else: o.append(salu(f"s_add_u32 s{S_DOFF}, s{S_KVNEXT}, s{S_WPART}", [S_KVNEXT, S_WPART], [S_DOFF]))
    o.append(salu(f"s_add_u32 m0, s{S_LDSB}, {(TT % 8) * 8192}", [S_LDSB], [("m0", 0)]))
    nt = cfg.kv_pol
    for p in range(4):
        o.append(Ins(f"buffer_load_dwordx4 v{V_DMA+p}, {rs('s', S_X, 4)}, s{S_DOFF} offen offset:{1024*p}{nt} lds", "dma",
                     V(V_DMA + p) + Sg(S_X, 4) + Sg(S_DOFF) + [("m0", 0)], [], tag=f"D{tagp}", nogap=(p == 0), cost=(14 if p == 0 else 9)))
    return o
def QDMA(n, stg=S_STG):
    g_, c2 = n // 4, (n // 2) % 2
    o = []
    if n == 0: o.append(salu(f"s_add_u32 s{S_TQ}, s{S_QNEXT}, s{S_WQ}", [S_QNEXT, S_WQ], [S_TQ]))
    elif c2 == 0: o.append(salu(f"s_add_u32 s{S_TQ}, s{S_TQ}, 4096", [S_TQ], [S_TQ]))
    o.append(salu(f"s_add_u32 m0, s{stg}, {1024*(n%8) - 128*c2}", [stg], [("m0", 0)]))
    nt = cfg.q_pol
    for h in range(2):
        o.append(Ins(f"buffer_load_dwordx4 v{V_QDMA+h}, {rs('s', S_Q, 4)}, s{S_TQ} offen offset:{1024*h+128*c2}{nt} lds", "dma",
                     V(V_QDMA + h) + Sg(S_Q, 4) + Sg(S_TQ) + [("m0", 0)], [], tag=f"QD{n//2}", nogap=(h == 0), cost=(14 if h == 0 else 9)))
    return o
def QREAD(qb, n, va=V_QA, inbody=False):
    g_, c2 = n // 4, (n // 2) % 2
    o = [wait(("vm", [f"QD{n//2}"]), key=(f"wQD{qb}_{n}" if inbody else None))]
    for k2 in range(2):
        d = A_Q + 64 * qb + 16 * g_ + 4 * (2 * c2 + k2)
        o.append(Ins(f"ds_read_b128 {rs('a', d, 4)}, v{va+k2} offset:{1024*(n%8)}", "ds", V(va + k2), A(d, 4), tag=f"Q{qb}{g_}"))
    return o
def EPI(g, sq, site=None, pol=None):
    l = V_L + 4 * g; r = V_RINV + 2 * g; to = S_TO + g
    o = [valu(f"v_rcp_f32 v{r}, v{l}", V(l), V(r), kind="trans"),
         valu(f"v_cmp_ngt_f32 {rs('s', S_BAD+2*g, 2)}, s{S_THR}, v{l}", V(l) + Sg(S_THR), Sg(S_BAD + 2 * g, 2)),
         salu(f"s_add_u32 s{to}, s{sq}, {4096*g}", [sq], [to])]
    nt = cfg.o_pol if pol is None else pol
    a0 = V_O + 32 * g
    if cfg.pk:
        M = [valu(f"v_pk_mul_f32 v[{a0+e}:{a0+e+1}], v[{a0+e}:{a0+e+1}], v[{r}:{r+1}] op_sel_hi:[1,0]", V(a0 + e, 2) + V(r), V(a0 + e, 2)) for e in range(0, 32, 2)]
        M[0].cost = 16; M[0].late = True
        for x in M[1:]: x.glue = True; x.late = True
    else:
        M = [valu(f"v_mul_f32 v{a0+e}, v{a0+e}, v{r}", V(a0 + e) + V(r), V(a0 + e)) for e in range(32)]
    C = [valu(f"v_cvt_pk_bf16_f32 v{a0+h}, v{a0+2*h}, v{a0+2*h+1}", V(a0 + 2 * h, 2), V(a0 + h)) for h in range(16)]
    W = [Ins(f"ds_write_b64 v{V_OW}, {rs('v', a0 + 2 * h, 2)} offset:{32*h}", "ds", V(V_OW) + V(a0 + 2 * h, 2), [], tag="OW", cost=12) for h in range(8)]
    for k_, x in enumerate(W):
        x.delay = cfg.dw_gap
        if cfg.dw_glue and k_ % cfg.dw_glue: x.glue = True
    ot = V_OT[4 * (g % 2):4 * (g % 2) + 4]
    RD = [Ins(f"ds_read_b128 {rs('v', ot[p], 4)}, v{V_OR} offset:{1088*p}", "ds", V(V_OR), V(ot[p], 4), tag=f"OR{g}") for p in range(4)]
    if cfg.rd_glue:
        for x in RD[1:]: x.glue = True
    ST = [Ins(f"buffer_store_dwordx4 {rs('v', ot[p], 4)}, v{V_OOFF}, {rs('s', S_O, 4)}, s{to} offen offset:{1024*p}{nt}", "store",
              V(ot[p], 4) + V(V_OOFF) + Sg(S_O, 4) + Sg(to), [], tag="ST", cost=16) for p in range(4)]
    if cfg.cond_wt and pol is None:
        lab = f"L_wt{g}"
        alt = "\n  ".join(x.text + cfg.o_pol_last for x in ST)
        ST[0].text = f"s_cmp_lt_u32 s{S_LOOP}, {cfg.cond_wt}\n  s_cbranch_scc0 {lab}a\n  {alt}\n  s_branch {lab}b\n{lab}a:\n  " + ST[0].text
        ST[3].text = ST[3].text + f"\n{lab}b:"
        ST[0].cost += 8; ST[0].rd += Sg(S_LOOP)
    for x in ST[1:]:
        if cfg.st_gap: x.delay = cfg.st_gap
        else: x.glue = True
    wt = wait(("lgkm", [f"OR{g}"])); wt.delay = 6
    ev = o + M + C; em = W + RD; es = [wt] + ST
    if cfg.direct_o:
        SW = []
        for p in range(4):
            a = a0 + 4 * p
            SW += [valu(f"v_permlane16_swap_b32 v{a}, v{a+2}", V(a) + V(a + 2), V(a) + V(a + 2), kind="perm", cost=8),
                   valu(f"v_permlane16_swap_b32 v{a+1}, v{a+3}", V(a + 1) + V(a + 3), V(a + 1) + V(a + 3), kind="perm", cost=8)]
        ST = [Ins(f"buffer_store_dwordx4 {rs('v', a0 + 4 * p, 4)}, v{V_OW}, {rs('s', S_O, 4)}, s{to} offen offset:{64*p}{nt}", "store",
                  V(a0 + 4 * p, 4) + V(V_OW) + Sg(S_O, 4) + Sg(to), [], tag="ST", cost=24) for p in range(4)]
        for x in ST[1:]: x.glue = True
        ST[0].nogap = True
        ev = o + M + C + SW; em = ST; es = [Ins("", "comment", cost=0)] * 5
    o = es = list(es)
    if site is not None:
        b = S_BAD
        o.append(salu(f"s_or_b64 s[{b}:{b+1}], s[{b}:{b+1}], s[{b+2}:{b+3}]", Sg(b, 4), Sg(b, 2)))
        o.append(salu(f"s_or_b64 s[{b+4}:{b+5}], s[{b+4}:{b+5}], s[{b+6}:{b+7}]", Sg(b + 4, 4), Sg(b + 4, 2)))
        o.append(salu(f"s_or_b64 s[{b}:{b+1}], s[{b}:{b+1}], s[{b+4}:{b+5}]\n  s_cbranch_scc1 L_slow{site}\nL_ret{site}:", Sg(b, 2) + Sg(b + 4, 2), Sg(b, 2), cost=8))
    return ev, em, es

def next_block_calc(pre_inc):
    o = []
    if pre_inc: o.append(salu(f"s_add_u32 s{S_INEXT}, s{S_INEXT}, 32", [S_INEXT], [S_INEXT]))
    o += [salu(f"s_mul_i32 s{S_T0}, s{S_INEXT}, 43691", [S_INEXT], [S_T0]),
          salu(f"s_lshr_b32 s{S_T0}, s{S_T0}, 17", [S_T0], [S_T0]),
          salu(f"s_lshl_b32 s{S_T1}, s{S_XCD}, 6", [S_XCD], [S_T1]),
          salu(f"s_add_u32 s{S_T0}, s{S_T0}, s{S_T1}", [S_T0, S_T1], [S_T0]),
          salu(f"s_lshl_b32 s{S_KVNEXT}, s{S_T0}, 17", [S_T0], [S_KVNEXT]),
          salu(f"s_mul_i32 s{S_T1}, s{S_XCD}, 192", [S_XCD], [S_T1]),
          salu(f"s_add_u32 s{S_T1}, s{S_T1}, s{S_INEXT}", [S_T1, S_INEXT], [S_T1]),
          salu(f"s_lshl_b32 s{S_QNEXT}, s{S_T1}, 16", [S_T1], [S_QNEXT]),
          salu(f"s_cmp_lt_u32 s{S_INEXT}, 192\n  s_cselect_b32 s{S_KVNEXT}, s{S_KVNEXT}, {OOB}\n  s_cselect_b32 s{S_QNEXT}, s{S_QNEXT}, {OOB}",
               [S_INEXT, S_KVNEXT, S_QNEXT], [S_KVNEXT, S_QNEXT], cost=12)]
    return o
def rotate():
    return [salu(f"s_mov_b32 s{S_QPREV}, s{S_QCUR}", [S_QCUR], [S_QPREV]), salu(f"s_mov_b32 s{S_KVPREV}, s{S_KVCUR}", [S_KVCUR], [S_KVPREV]),
            salu(f"s_mov_b32 s{S_QCUR}, s{S_QNEXT}", [S_QNEXT], [S_QCUR]), salu(f"s_mov_b32 s{S_KVCUR}, s{S_KVNEXT}", [S_KVNEXT], [S_KVCUR])]

DEAD = set()
def wait(*need, key=None):
    w = Ins("s_waitcnt ?", "wait", need=list(need)); w.tag = key
    if key is not None and key in DEAD: w.cost = 0; w.kind = "comment"; w.text = ""; w.need = None
    return w
def barrier(): return Ins("s_barrier", "barrier", cost=4)

G = 17
NVE = 51
def setmin(ops, m):
    for o in ops: o.minpos = max(o.minpos, m)
    return ops
def QCOPY(g_):
    return [valu(f"v_accvgpr_mov_b32 a{A_Q+16*g_+r}, a{A_QB+16*g_+r}", A(A_QB + 16 * g_ + r), A(A_Q + 16 * g_ + r)) for r in range(16)]
def sbar(*need, stamp=True):
    p = []
    if cfg.stamps and stamp: p.append(salu("s_memtime s[70:71]\n  s_memrealtime s[92:93]\n  v_mov_b32 v47, s72"))
    p += [wait(*need), barrier()]
    if cfg.stamps and stamp:
        p.append(valu("s_memtime s[72:73]\n  v_mov_b32 v46, s70\n  v_cmp_eq_u32 vcc, s74, v0\n  s_add_u32 s74, s74, 1\n  s_nop 0\n  v_cndmask_b32 v44, v44, v46, vcc\n  v_cndmask_b32 v45, v45, v47, vcc\n  v_mov_b32 v46, s92\n  v_cndmask_b32 v50, v50, v46, vcc", [], V(44, 2)))
    return p
def qread0(g_): return QREAD(0, 4 * g_, V_QA if g_ < 2 else V_QA2) + QREAD(0, 4 * g_ + 2, V_QA if g_ < 2 else V_QA2)
def build_prologue():
    bb = []; pre = {}; st = []; B = []
    for n in range(8):
        T, g = divmod(n, 4); T1, g1 = divmod(n + 1, 4); T0, g0 = divmod(n - 1, 4)
        base = len(bb); B.append(base)
        p = pre.setdefault(base, [])
        if n == 1: p += sbar(("vm", ["D1"]), ("lgkm", "all"))
        if n == 4: p += sbar(("vm", ["D2"]), ("lgkm", "all"), stamp=False)
        if g1 == 0: p.append(wait(("lgkm", [f"K{T1}"])))
        if T1 == 0: p.append(wait(("lgkm", [f"Q0{g1}"])))
        bb += QK(0, T1, g1)
        if n > 0:
            if g0 == 0: pre.setdefault(base + 8, []).append(wait(("lgkm", [f"V{T0}"])))
            bb += PV(T0, g0, T0 == 0)
    B.append(len(bb))
    for n in range(8):
        T, g = divmod(n, 4)
        st.append(Stream(f"SM{n}", SM(g, T == 0, B[n] - 1), (B[n - 1] + 12 if n else 0), B[n + 1] - 1))
    st.append(Stream("QR2", qread0(2), 4, B[1] - 1))
    st.append(Stream("QR3", qread0(3), B[1] + 8, B[2] - 3))
    for k, op in enumerate(KREADS(1, 1)): st.append(Stream(f"K1_{k}", [op], B[1] + 3 * k, B[1] + 3 * k + 4))
    for k, op in enumerate(VREADS(1, 1)): st.append(Stream(f"V1_{k}", [op], B[1] + (5 * k) // 2, B[1] + (5 * k) // 2 + 6))
    for k, op in enumerate(KREADS(2, 2)): st.append(Stream(f"K2_{k}", [op], B[4] + 5 * k, B[4] + 5 * k + 7))
    for k, op in enumerate(VREADS(2, 2)): st.append(Stream(f"V2_{k}", [op], B[5] - 1 + (5 * k) // 2, B[5] - 1 + (5 * k) // 2 + 6))
    d = []
    for TT, gi in ((3, 1), (4, 2), (5, 3), (6, 4), (7, 5), (8, 6)):
        x = DMA(TT, "inc", TT)
        for y in x[3:]: y.glue = True
        setmin(x, B[gi]); x[2].minpos = B[gi] + 3; x[2].maxpos = B[gi] + 10
        d += x
    st.append(Stream("D", d, B[1], B[8] - 1))
    st.append(Stream("NB", rotate() + next_block_calc(True), 0, B[4]))
    out, stats = schedule(bb, st, pre, lambda i: 12 if i < B[4] else 8)
    sb = sbar(("vm", ["D3", "D4"]), ("lgkm", "all"))
    k = [i_ for i_, x in enumerate(sb) if x.kind == "barrier"][0]
    return out + sb[:k] + [salu("s_branch L_entry")]

def build_body():
    bb = []; pre = {}; st = []
    NG = 64
    for n in range(NG):
        T, g = divmod(n, 4)
        n1 = (n + 1) % NG; T1, g1 = divmod(n1, 4)
        n0 = (n - 1) % NG; T0, g0 = divmod(n0, 4)
        base = G * n
        p = pre.setdefault(base, [])
        if n == 0: p += rotate()
        if g == 0 and T % 2 == 0:
            sb = sbar(("vm", [f"D{(T+1)%16}", f"D{(T+2)%16}"]), ("lgkm", "all"))
            if T == 2:
                for x in sb:
                    if x.kind == "wait": x.late = True
                k = [i_ for i_, x in enumerate(sb) if x.kind == "barrier"][0]
                sb.insert(k, Ins("L_entry:", "label", cost=0))
            p += sb
        if g1 == 0: p.append(wait(("lgkm", [f"K{T1}"]), key=f"wK{T1}"))
        if T1 == 0 and g1 >= 2: p.append(wait(("lgkm", [f"Q0{g1}"]), key=f"wQ{T1}{g1}"))
        bb += QK(0, T1, g1)
        if g0 == 0: pre.setdefault(base + 8, []).append(wait(("lgkm", [f"V{T0}"]), key=f"wV{T0}"))
        bb += PV(T0, g0, T0 == 0)
        rel = max(0, base - G + 12) if n != 8 else base
        st.append(Stream(f"SM{n}", SM(g, T == 0, base - 1), rel, base + G - 1))
        if g == 0:
            Tn = (T + 1) % 16; t = T
            for k, op in enumerate(KREADS(Tn, Tn)): st.append(Stream(f"K{Tn}_{k}", [op], base + 5 * k, base + 5 * k + 7))
            for k, op in enumerate(VREADS(Tn, Tn)): st.append(Stream(f"V{Tn}_{k}", [op], base + G - 1 + (5 * k) // 2, base + G - 1 + (5 * k) // 2 + 6))
            TT = (T + 7) % 16
            d = DMA(TT, "next" if t == 9 else "inc", TT)
            for x in d[3:]: x.glue = True
            d[2].minpos = base + 3; d[2].maxpos = base + G
            if cfg.dma_seam:
                if t == 0: d[2].minpos = base + 1; d[2].maxpos = base + 2
                if t == 1: setmin(d, base + 3 * G); d[2].minpos = base + 3 * G + 2; d[2].maxpos = base + 4 * G - 2
            elif t == 0: d[2].maxpos = base + 3 * G
            if t in cfg.qd_tiles:
                qd = QDMA(2 * cfg.qd_tiles.index(t)); qd[-1].glue = True
                setmin(qd[-2:], base + 3 * G + 1)
                d += qd
            st.append(Stream(f"D{TT}", d, base, base + 4 * G - 1))
            if t == 0: st.append(Stream(f"NB{T}", next_block_calc(True), base, base + 3 * G))
            if t in cfg.qr_tiles: st.append(Stream(f"QR{T}", QREAD(1, 2 * cfg.qr_tiles.index(t), inbody=True), base + G, base + 3 * G - 2))
            if t == 15:
                st.append(Stream("QC0", QCOPY(0), base - G + 8, base + 3 * G - 3))
                st.append(Stream("QC1", QCOPY(1), base + 8, base + 4 * G - 1))
                st.append(Stream("QR2", QREAD(0, 8, inbody=True) + QREAD(0, 10, inbody=True), base + G + 8, base + 2 * G + 7))
                st.append(Stream("QR3", QREAD(0, 12, inbody=True) + QREAD(0, 14, inbody=True), base + 2 * G + 8, base + 3 * G + 1, prio=30))
        if T == 15 and g == 1:
            e0 = EPI(0, S_QCUR); e1 = EPI(1, S_QCUR)
            st.append(Stream("E_v0", e0[0], base + G + 5, base + 2 * G + 1))
            st.append(Stream("E_m0", e0[1], base + 2 * G + 2, base + 3 * G - 1, prio=30))
            st.append(Stream("E_v1", e1[0], base + 2 * G + 5, base + 3 * G - 1))
        if n == 0:
            e0 = EPI(0, S_QCUR); e1 = EPI(1, S_QCUR); e2 = EPI(2, S_QPREV); e3 = EPI(3, S_QPREV, site=0)
            st.append(Stream("E_v2", e2[0], base + 4, base + G + 8))
            st.append(Stream("E_v3", e3[0], base + G + 9, base + 2 * G + 14))
            e1[1][-1].maxpos = base + G + 8; e2[1][-1].maxpos = base + 3 * G + 5
            if cfg.burst8:
                e1[2][1].glue = True; e3[2][1].glue = True
                c1 = [e1[2][0]] + e0[2][1:] + e1[2][1:]
                c2 = [e3[2][0]] + e2[2][1:] + e3[2][1:]
                chain = e1[1] + c1 + setmin(e2[1], base + G + 9) + setmin(e3[1], base + 2 * G + 15)
                chain[-1].maxpos = base + 4 * G + 5
                c2[1].maxpos = base + 4 * G + 14
                chain += c2
            else:
                chain = e1[1] + e0[2] + setmin(e2[1], base + G + 9) + e1[2] + setmin(e3[1], base + 2 * G + 15)
                chain[-1].maxpos = base + 4 * G + 5
                sg = max(cfg.st_gap, 2)
                for k, x in enumerate(e2[2][:5] + e3[2][:5]): x.maxpos = base + 4 * G + 12 + sg * k
                chain += e2[2] + e3[2]
            st.append(Stream("E_m", chain, base, base + 4 * G + 14 + max(cfg.st_gap, 2) * 10, prio=10))
    def tfn(i):
        n = i // G; T = (n // 4) % 16
        if T == 15 and i % (4 * G) >= 2 * G + 4: return cfg.seam_t
        if T == 0: return cfg.seam_t
        return 8
    return schedule(bb, st, pre, tfn)

def build_drain():
    bb = PV(15, 3, False)
    pre = {0: rotate()}
    e0 = EPI(0, S_QCUR, pol=cfg.o_pol_last); e1 = EPI(1, S_QCUR, pol=cfg.o_pol_last); e2 = EPI(2, S_QPREV, pol=cfg.o_pol_last); e3 = EPI(3, S_QPREV, site=1, pol=cfg.o_pol_last)
    seq = e0[2] + e1[1] + setmin(e2[0], 3) + e1[2] + e2[1] + setmin(e3[0], 8) + e2[2] + e3[1] + e3[2]
    for x in seq: x.delay = 0
    st = [Stream("E", seq, 0, 8)]
    out, stats = schedule(bb, st, pre, lambda i: 24)
    return out

def build_init():
    o = []
    def s(t, rd=(), wr=()): o.append(salu(t, rd, wr))
    def v(t, rd=(), wr=()): o.append(valu(t, rd, wr))
    if cfg.stamps: s("s_memrealtime s[94:95]")
    s("s_cmp_ge_u32 s2, 256\n  s_cbranch_scc1 L_end")
    s("s_load_dwordx8 s[4:11], s[0:1], 0", [], list(range(4, 12)))
    s("s_load_dwordx4 s[12:15], s[0:1], 32", [], list(range(12, 16)))
    v("v_lshrrev_b32 v1, 6, v0", V(0), V(1))
    v("v_and_b32 v0, 63, v0", V(0), V(0))
    v(f"v_readfirstlane_b32 s{S_WAVE}, v1", V(1), Sg(S_WAVE))
    v("v_and_b32 v36, 15, v0", V(0), V(36)); v("v_lshrrev_b32 v37, 4, v0", V(0), V(37)); v("v_lshrrev_b32 v38, 2, v0", V(0), V(38))
    s(f"s_lshr_b32 s{S_T0}, s{S_WAVE}, 1", [S_WAVE], [S_T0])
    s(f"s_and_b32 s{S_T1}, s{S_WAVE}, 1", [S_WAVE], [S_T1])
    s(f"s_lshl_b32 s{S_WPART}, s{S_T1}, 12", [S_T1], [S_WPART])
    s(f"s_lshl_b32 s{S_LDSB}, s{S_T0}, 16", [S_T0], [S_LDSB])
    s(f"s_add_u32 s{S_LDSB}, s{S_LDSB}, s{S_WPART}", [S_LDSB, S_WPART], [S_LDSB])
    s(f"s_lshr_b32 s{S_TQ}, 15, s{S_T0}", [S_T0], [S_TQ])
    for p in range(4):
        v(f"v_add_u32 v39, {4*p}, v37", V(37), V(39)); v(f"v_and_b32 v39, s{S_TQ}, v39", V(39) + Sg(S_TQ), V(39))
        v(f"v_lshlrev_b32 v39, s{S_T0}, v39", V(39) + Sg(S_T0), V(39)); v("v_xor_b32 v39, v39, v36", V(39) + V(36), V(39))
        v("v_lshlrev_b32 v39, 4, v39", V(39), V(39)); v(f"v_lshl_add_u32 v{V_DMA+p}, v37, 8, v39", V(37) + V(39), V(V_DMA + p))
    v("v_lshrrev_b32 v39, 3, v0", V(0), V(39)); v("v_and_b32 v40, 6, v39", V(39), V(40)); v("v_and_b32 v41, 7, v0", V(0), V(41))
    v("v_xor_b32 v40, v40, v41", V(40) + V(41), V(40)); v("v_lshlrev_b32 v40, 4, v40", V(40), V(40))
    v(f"v_lshl_add_u32 v{V_QDMA}, v39, 8, v40", V(39) + V(40), V(V_QDMA)); v(f"v_add_u32 v{V_QDMA+1}, 1024, v{V_QDMA}", V(V_QDMA), V(V_QDMA + 1))
    s(f"s_lshl_b32 s{S_WQ}, s{S_WAVE}, 14", [S_WAVE], [S_WQ])
    s(f"s_lshl_b32 s{S_STG}, s{S_WAVE}, 13", [S_WAVE], [S_STG]); s(f"s_add_u32 s{S_STG}, s{S_STG}, {STG}", [S_STG], [S_STG])
    s(f"s_lshl_b32 s{S_STG2}, s{S_T0}, 16", [S_T0], [S_STG2]); s(f"s_lshl_b32 s{S_T1}, s{S_WPART}, 1", [S_WPART], [S_T1])
    s(f"s_add_u32 s{S_STG2}, s{S_STG2}, s{S_T1}", [S_STG2, S_T1], [S_STG2]); s(f"s_add_u32 s{S_STG2}, s{S_STG2}, {6*8192}", [S_STG2], [S_STG2])
    s(f"s_and_b32 s{S_XCD}, s2, 7", [], [S_XCD]); s(f"s_lshr_b32 s{S_INEXT}, s2, 3", [], [S_INEXT])
    early = o; o = late = []
    for kk in range(4):
        v(f"v_or_b32 v39, {4*kk}, v37", V(37), V(39)); v("v_xor_b32 v39, v39, v36", V(39) + V(36), V(39))
        v("v_lshlrev_b32 v39, 4, v39", V(39), V(39)); v(f"v_lshl_add_u32 v{V_KA+kk}, v36, 8, v39", V(36) + V(39), V(V_KA + kk))
    v("v_and_b32 v40, 7, v38", V(38), V(40)); v("v_and_b32 v41, 3, v0", V(0), V(41)); v("v_lshlrev_b32 v41, 3, v41", V(41), V(41))
    v("v_lshl_add_u32 v41, v38, 8, v41", V(38) + V(41), V(41)); v("v_add_u32 v41, 0x10000, v41", V(41), V(41))
    for dt in range(8):
        v(f"v_xor_b32 v39, {dt}, v40", V(40), V(39)); v(f"v_lshl_add_u32 v{V_VA+dt}, v39, 5, v41", V(39) + V(41), V(V_VA + dt))
    v("v_and_b32 v40, 6, v36", V(36), V(40)); v("v_and_b32 v41, 7, v36", V(36), V(41)); v("v_lshrrev_b32 v42, 3, v36", V(36), V(42))
    v("v_lshlrev_b32 v41, 7, v41", V(41), V(41)); v("v_lshl_add_u32 v41, v42, 10, v41", V(42) + V(41), V(41))
    for k2 in range(2):
        v(f"v_or_b32 v39, {4*k2}, v37", V(37), V(39)); v("v_xor_b32 v39, v39, v40", V(39) + V(40), V(39))
        v("v_lshl_add_u32 v39, v39, 4, v41", V(39) + V(41), V(39))
        v(f"v_add_u32 v{V_QA+k2}, s{S_STG}, v39", V(39) + Sg(S_STG), V(V_QA + k2))
        v(f"v_add_u32 v{V_QA2+k2}, s{S_STG2}, v39", V(39) + Sg(S_STG2), V(V_QA2 + k2))
    v(f"v_lshlrev_b32 v39, 4, v0", V(0), V(39)); v(f"v_add_u32 v{V_OOFF}, s{S_WQ}, v39", V(39) + Sg(S_WQ), V(V_OOFF))
    v("v_mul_u32_u24 v39, 272, v36", V(36), V(39)); v("v_lshl_add_u32 v39, v37, 3, v39", V(37) + V(39), V(39))
    v(f"v_add_u32 v{V_OW}, s{S_STG}, v39", V(39) + Sg(S_STG), V(V_OW))
    if cfg.direct_o:
        v("v_and_b32 v39, 1, v37", V(37), V(39)); v("v_lshlrev_b32 v39, 5, v39", V(39), V(39)); v("v_lshrrev_b32 v40, 1, v37", V(37), V(40))
        v("v_lshl_add_u32 v39, v40, 4, v39", V(40) + V(39), V(39)); v("v_lshl_add_u32 v39, v36, 8, v39", V(36) + V(39), V(39))
        v(f"v_add_u32 v{V_OW}, s{S_WQ}, v39", V(39) + Sg(S_WQ), V(V_OW))
    v("v_mul_u32_u24 v39, 272, v37", V(37), V(39)); v("v_lshl_add_u32 v39, v36, 4, v39", V(36) + V(39), V(39))
    v(f"v_add_u32 v{V_OR}, s{S_STG}, v39", V(39) + Sg(S_STG), V(V_OR))
    v("v_and_b32 v39, 3, v0", V(0), V(39)); v("v_cmp_eq_u32 vcc, 0, v39", V(39), [("vcc", 0)]); v("v_mov_b32 v40, 0x3f803f80", [], V(40))
    v("v_mov_b32 v39, 0", [], V(39))
    for e in range(4): v(f"v_cndmask_b32 v{V_ONES+e}, v39, v40, vcc", V(39) + V(40) + [("vcc", 0)], V(V_ONES + e))
    for r in list(range(V_L, V_L + 16)) + list(range(V_P, V_P + 8)): v(f"v_mov_b32 v{r}, 0", [], V(r))
    s(f"s_mov_b32 s{S_C}, 0x{CSCALE:08x}", [], [S_C]); s(f"s_mov_b32 s{S_NC}, 0x{CSCALE | 0x80000000:08x}", [], [S_NC])
    s(f"s_mov_b32 s{S_THR}, 0x{f32(2.0 ** cfg.thr_log2):08x}", [], [S_THR])
    for r in range(S_BAD, S_BAD + 8): s(f"s_mov_b32 s{r}, 0", [], [r])
    for r in range(S_TO, S_TO + 4): s(f"s_mov_b32 s{r}, {OOB}", [], [r])
    s(f"s_mov_b32 s{S_QCUR}, {OOB}", [], [S_QCUR]); s(f"s_mov_b32 s{S_KVCUR}, {OOB}", [], [S_KVCUR])
    s(f"s_mov_b32 s{S_LOOP}, 5", [], [S_LOOP])
    if cfg.stamps:
        s("s_mov_b32 s74, 1\n  s_memtime s[72:73]\n  s_memrealtime s[76:77]\n v_mov_b32 v44, 0\n v_mov_b32 v45, 0\n v_mov_b32 v50, 0")
    o = early
    o += next_block_calc(False)
    s("s_waitcnt lgkmcnt(0)")
    if cfg.stamps: s("s_memrealtime s[96:97]")
    for srd, ptr, size in ((S_Q, 4, 0x6000000), (S_O, 10, 0x6000000), (S_K, 6, 0x4000000), (S_V, 8, 0x4000000), (S_W, 14, 402653184)):
        o = early if srd == S_Q else late
        s(f"s_mov_b32 s{srd}, s{ptr}", [ptr], [srd]); s(f"s_mov_b32 s{srd+1}, s{ptr+1}", [ptr + 1], [srd + 1])
        s(f"s_mov_b32 s{srd+2}, {size}", [], [srd + 2]); s(f"s_mov_b32 s{srd+3}, 0x00020000", [], [srd + 3])
    o = early
    s(f"s_cmp_ge_u32 s{S_WAVE}, 2\n  s_cselect_b32 s{S_X}, s8, s6\n  s_cselect_b32 s{S_X+1}, s9, s7", [S_WAVE, 6, 7, 8, 9], [S_X, S_X + 1])
    s(f"s_mov_b32 s{S_X+2}, 0x4000000", [], [S_X + 2]); s(f"s_mov_b32 s{S_X+3}, 0x00020000", [], [S_X + 3])
    def dma(TT, how):
        d = DMA(TT, how, TT); return d[:2] + [salu("s_nop 0")] + d[2:]
    def qdma(g_):
        r = []
        for n in (4 * g_, 4 * g_ + 2):
            d = QDMA(n, S_STG if g_ < 2 else S_STG2); r += d[:-2] + [salu("s_nop 0")] + d[-2:]
        return r
    def qread(g_): return QREAD(0, 4 * g_, V_QA if g_ < 2 else V_QA2) + QREAD(0, 4 * g_ + 2, V_QA if g_ < 2 else V_QA2)
    o += dma(0, "first") + qdma(0) + qdma(1) + qdma(2)
    if cfg.codepf:
        s("s_getpc_b64 s[84:85]\nL_pf:", [], [84, 85]); s("s_and_b32 s84, s84, 0xffffffc0", [84], [84]); s("s_mov_b32 s86, L_end-L_pf", [], [86]); s("s_mov_b32 s87, 0x00020000", [], [87])
        s(f"s_lshl_b32 s83, s{S_WAVE}, 13", [S_WAVE], [83]); v("v_lshlrev_b32 v51, 6, v0", V(0), V(51)); s("s_add_u32 s69, s83, 4096", [83], [69])
        o.append(Ins("buffer_load_dword v54, v51, s[84:87], s83 offen", "vmem", V(51) + Sg(84, 4) + Sg(83), V(54), tag="PF"))
        o.append(Ins("buffer_load_dword v55, v51, s[84:87], s69 offen", "vmem", V(51) + Sg(84, 4) + Sg(69), V(55), tag="PF"))
    o += late
    if cfg.stamps: s("s_memrealtime s[98:99]")
    o += [wait(("vm", ["D0"])), barrier()]
    if cfg.stamps: s("s_memrealtime s[100:101]\n  s_waitcnt lgkmcnt(0)\n  v_writelane_b32 v50, s94, 50\n  v_writelane_b32 v50, s96, 51\n  v_writelane_b32 v50, s98, 52\n  v_writelane_b32 v50, s100, 53")
    o += KREADS(0, 0) + dma(1, "inc") + qread0(0) + VREADS(0, 0) + qdma(3)
    o += [wait(("lgkm", ["K0", "Q00"]))]
    qk = QK(0, 0, 0)
    o += qk[:4] + qread0(1) + qk[4:] + dma(2, "inc")
    return o

def slow_stub():
    t = []
    for site in range(2):
        t.append(f"L_slow{site}:\n  s_branch L_ret{site}")
    return "\n".join(t)

def dataflow(trace):
    errs = []; stt = {}; cnt = {}
    inS = lambda r: r[0] == "v" and V_S <= r[1] < V_S + NS
    inP = lambda r: r[0] == "v" and V_P <= r[1] < V_P + 8
    inO = lambda r: r[0] == "v" and (V_O <= r[1] < V_O + 128 or V_L <= r[1] < V_L + 16)
    for x in trace:
        t = x.text
        if x.kind == "mfma":
            for r in x.wr:
                if inS(r):
                    if cnt.get(r, 4) == 4:
                        if stt.get(r, "c") != "c": errs.append(f"S overwritten before consumed {r} [{t}]")
                        cnt[r] = 1
                    else: cnt[r] += 1
                    stt[r] = "m"
                if inO(r):
                    if not x.srcc:
                        if stt.get(r, "done") != "done": errs.append(f"O overwritten before stored {r} [{t}]")
                        cnt[r] = 1
                    else: cnt[r] = cnt.get(r, 15) + 1
                    stt[r] = "acc"
            for r in x.ab:
                if inP(r):
                    if stt.get(r, "new") != "new": errs.append(f"P read when not new {r} [{t}]")
                    cnt[r] = cnt.get(r, 0) + 1
                    if cnt[r] == 9: stt[r] = "used"; cnt[r] = 0
        else:
            for r in x.rd:
                if inS(r) and cnt.get(r, 4) != 4: errs.append(f"S read while partial {r} [{t}]")
                if inS(r) and t.startswith("v_cvt"): stt[r] = "c"
                if inO(r) and stt.get(r) == "acc" and cnt.get(r) != 16: errs.append(f"O read early {r} cnt {cnt.get(r)} [{t}]")
            if x.kind == "store" and "offset:192" in t:
                for k in range(32): stt[("v", x.rd[0][1] - 12 + k)] = "done"
            if t.startswith("ds_write") and EPI_LAST_W in t:
                a0 = x.rd[1][1] - 14
                for k in range(32): stt[("v", a0 + k)] = "done"
            if t.startswith("v_cmp_ngt"):
                for k in range(4): stt[("v", x.rd[0][1] + k)] = "done"
            for r in x.wr:
                if inP(r) and t.startswith("v_cvt"):
                    if stt.get(r, "used") != "used": errs.append(f"P overwritten before used {r} [{t}]")
                    stt[r] = "new"; cnt[r] = 0
    return errs
def ldsflow(trace):
    import re
    errs = []
    vm = []; lg = []
    vis = {}
    rdst = {}
    m0 = None
    def region_of_read(x):
        t = x.text; off = int(re.search(r"offset:(\d+)", t).group(1)); a = x.rd[0][1]
        if V_KA <= a < V_KA + 4: return [("ring", off // 8192)]
        if V_VA <= a < V_VA + 8: return [("ring", off // 8192)]
        if a in (V_QA, V_QA + 1): return [("stg", off // 1024), ("stg", off // 1024 + 1)]
        if a in (V_QA2, V_QA2 + 1): return [("ring", 6), ("ring", 7), ("stg2", off // 1024), ("stg2", off // 1024 + 1)]
        return None
    for x in trace:
        t = x.text
        if x.kind == "salu" and " m0," in t:
            m = re.search(r"m0, s(\d+), (-?\d+)", t); m0 = (int(m.group(1)), int(m.group(2)))
        if x.kind == "dma":
            off = int(re.search(r"offset:(\d+)", t).group(1))
            if m0[0] == S_LDSB: reg = ("ring", m0[1] // 8192); shared = True
            elif m0[0] == S_STG: reg = ("stg", (m0[1] + off) // 1024); shared = False
            else: reg = ("stg2", (m0[1] + off) // 1024); shared = False
            st_ = rdst.get(reg, "free")
            if st_ == "pending" or (shared and st_ != "free"): errs.append(f"LDS WAR: DMA into {reg} while reads {st_} [{t}]")
            vis[reg] = "flight"; vm.append(reg)
        elif x.kind in ("vmem", "store"): vm.append(None)
        elif x.kind == "ds":
            regs = region_of_read(x) if t.startswith("ds_read") else None
            if regs:
                for reg in regs:
                    if reg[0] == "ring" and len(regs) > 1: rdst[reg] = "pending"; continue
                    need = "visible" if reg[0] == "ring" else "landed"
                    if vis.get(reg) != need and not (need == "landed" and vis.get(reg) == "visible"): errs.append(f"LDS RAW: read of {reg} state {vis.get(reg)} [{t}]")
                    rdst[reg] = "pending"
            if t.startswith("ds_write"):
                for k in range(5):
                    if vis.get(("stg", k)) == "flight": errs.append(f"O staging write while Q DMA in flight [{t}]")
            if t.startswith("ds_read_b128 v"): regs = [("stg", k) for k in range(5)]; [rdst.__setitem__(r, "pending") for r in regs]
            lg.append(regs or [])
        elif x.kind == "wait":
            m = re.search(r"vmcnt\((\d+)\)", t)
            if m:
                N = int(m.group(1)); done = vm[:max(0, len(vm) - N)]; vm = vm[len(done):]
                for reg in done:
                    if reg is not None and reg not in vm: vis[reg] = "landed"
            m = re.search(r"lgkmcnt\((\d+)\)", t)
            if m:
                N = int(m.group(1)); done = lg[:max(0, len(lg) - N)]; lg = lg[len(done):]
                still = {r for l in lg for r in l}
                for l in done:
                    for reg in l:
                        if reg not in still: rdst[reg] = "retired"
        elif x.kind == "barrier":
            for reg, v_ in vis.items():
                if v_ == "landed": vis[reg] = "visible"
            for reg, v_ in rdst.items():
                if v_ == "retired": rdst[reg] = "free"
    return errs
EPI_LAST_W = "offset:224"
NS = 16
def main():
    tail = [salu(f"s_sub_u32 s{S_LOOP}, s{S_LOOP}, 1\n  s_cbranch_scc0 L_loop", [S_LOOP], [S_LOOP], cost=8)]
    for it in range(3):
        init = build_init()
        body, stats = build_body()
        drain = build_drain()
        init += build_prologue()
        ent = lambda bd: [k for k, x in enumerate(bd) if x.text == "L_entry:"][0]
        trace = init + body[ent(body):] + tail + (body + tail) * 5 + drain
        best = resolve_waits(trace)
        for l in (init, body, drain): apply_waits(l, best)
        dead = lambda x: (x.kind == "wait" and x.need is not None and x.text == "s_nop 0") or x.kind == "comment"
        nd = {x.tag for x in body if x.kind == "wait" and dead(x) and x.tag}
        if nd <= DEAD: break
        DEAD.update(nd)
    init = [x for x in init if not dead(x)]; body = [x for x in body if not dead(x)]; drain = [x for x in drain if not dead(x)]
    if cfg.abl:
        def drop(x):
            t = x.text
            return (('exp' in cfg.abl and t.startswith('v_exp')) or ('fma' in cfg.abl and t.startswith('v_fma')) or
                    ('ds' in cfg.abl and t.startswith('ds_read') and ' a[' in t) or ('dma' in cfg.abl and x.kind == 'dma') or
                    ('bar' in cfg.abl and x.kind == 'barrier') or ('cvt' in cfg.abl.split(',') and t.startswith('v_cvt') and int(t.split()[1][1:-1]) < 128) or
                    ('st' in cfg.abl.split(',') and x.kind == 'store') or ('dw' in cfg.abl and t.startswith('ds_write')) or ('rd' in cfg.abl and t.startswith('ds_read_b128 v')) or ('pk' in cfg.abl and t.startswith('v_pk_mul')) or ('perm' in cfg.abl and 'permlane' in t) or ('qc' in cfg.abl and 'accvgpr_mov' in t) or ('ecvt' in cfg.abl and t.startswith('v_cvt') and int(t.split()[1][1:-1]) >= 128) or ('wt' in cfg.abl and x.kind == 'wait' and x.need and x.need[0][1] in (['OR0'], ['OR1'], ['OR2'], ['OR3'])) or ('ones' in cfg.abl and x.kind == 'mfma' and 'v[32:35]' in t) or
                    ('epi' in cfg.abl and (t.startswith('v_mul_f32 v1') or t.startswith('v_mul_f32 v2') or t.startswith('ds_write') or t.startswith('ds_read_b128 v') or (t.startswith('v_cvt') and int(t.split()[1][1:-1]) >= 128))))
        body = [x for x in body if not drop(x)]
    init, n1 = fix_hazards(init); body, n2 = fix_hazards(body); drain, n3 = fix_hazards(drain)
    print("nops inserted", n1, n2, n3, file=sys.stderr)
    trace = init + body[ent(body):] + tail + (body + tail) * 5 + drain
    errs = check(trace)
    errs += dataflow(trace) + ldsflow(trace)
    written = {("s", 0), ("s", 1), ("s", 2), ("v", 0)}
    for x in trace:
        for r in x.rd:
            if r[0] in ("s", "m0") and r not in written: errs.append(f"uninitialised {r} read by [{x.text}]")
            if r[0] == "v" and r not in written and x.kind in ("dma", "vmem", "ds") : errs.append(f"uninitialised {r} read by [{x.text}]") if not x.text.startswith("ds_write") else None
        written.update(x.wr)
    seen = set()
    for e in errs:
        if e not in seen: print("ERR", e, file=sys.stderr); seen.add(e)
    tot = sum(x.cost for x in body)
    under = sum(1 for f in stats[1:] if f < 8)
    est = sum(8 + max(8, f) for f in stats[1:])
    seg = [sum(8 + max(8, f) for f in stats[1 + 136 * k:1 + 136 * (k + 1)]) for k in range(8)]
    print("est per 2 tiles", seg, file=sys.stderr)
    print(f"body instrs {len(body)} issue-cycles {tot} est cycles {est} underfilled gaps {under}", file=sys.stderr)
    hdr = open("header.txt").read()
    lines = [hdr, '.amdgcn_target "amdgcn-amd-amdhsa--gfx950"', ".text", f".globl {NAME}", ".p2align 8", f".type {NAME},@function", f"{NAME}:"]
    lines += ["  " + x.text for x in init]
    lines += [".p2align 6"] + ["  s_nop 0"] * cfg.pad + ["L_loop:"] + ["  " + x.text for x in body + tail]
    lines += ["  " + x.text for x in drain]
    if cfg.stamps:
        lines += ["""  s_waitcnt vmcnt(0) lgkmcnt(0)
  s_memtime s[70:71]
  s_memrealtime s[78:79]
  s_waitcnt lgkmcnt(0)
  v_writelane_b32 v44, s70, 49
  v_writelane_b32 v45, s72, 49
  v_writelane_b32 v50, s78, 54
  s_sub_u32 s78, s78, s76
  v_writelane_b32 v44, s78, 0
  v_writelane_b32 v45, s76, 0
  s_lshl_b32 s75, s2, 2
  s_add_u32 s75, s75, s%d
  s_lshl_b32 s75, s75, 9
  v_lshlrev_b32 v46, 3, v0
  buffer_store_dwordx2 v[44:45], v46, s[%d:%d], s75 offen
  s_add_u32 s94, s75, 0x100000
  v_lshlrev_b32 v46, 2, v0
  buffer_store_dword v50, v46, s[36:39], s94 offen
  s_cmp_lg_u32 s75, 0
  s_cbranch_scc1 L_end
  s_mov_b32 s84, s12
  s_mov_b32 s85, s13
  s_mov_b32 s86, 256
  s_mov_b32 s87, 0x00020000
  v_readlane_b32 s75, v45, 1
  v_add_u32 v46, 2, v0
  v_mul_u32_u24 v47, 43691, v46
  v_lshrrev_b32 v47, 17, v47
  v_mul_u32_u24 v48, 3, v47
  v_sub_u32 v48, v46, v48
  v_subrev_u32 v47, 1, v47
  v_subrev_u32 v49, s75, v44
  v_cmp_eq_u32 vcc, 0, v48
  v_mov_b32 v50, 1000
  v_cndmask_b32 v47, v50, v47, vcc
  v_cmp_lt_u32 vcc, 40, v0
  s_nop 1
  v_cndmask_b32 v47, v47, v50, vcc
  v_writelane_b32 v47, 14, 0
  v_writelane_b32 v47, 15, 49
  v_readlane_b32 s75, v44, 0
  s_nop 3
  v_writelane_b32 v49, s75, 0
  v_lshlrev_b32 v47, 2, v47
  buffer_store_dword v49, v47, s[84:87], 0 offen""" % (S_WAVE, S_W, S_W + 3)]
    lines += ["L_end:", "  s_endpgm"]
    if cfg.slow:
        import slow
        lines.append(slow.emit(globals()))
    else: lines.append(slow_stub())
    lines += ['.section .rodata,"a"', ".p2align 6", f".amdhsa_kernel {NAME}", "  .amdhsa_next_free_vgpr 512", "  .amdhsa_next_free_sgpr 102",
              "  .amdhsa_accum_offset 256", "  .amdhsa_group_segment_fixed_size 0", "  .amdhsa_kernarg_size 48", "  .amdhsa_user_sgpr_count 2",
              "  .amdhsa_user_sgpr_kernarg_segment_ptr 1", "  .amdhsa_system_sgpr_workgroup_id_x 1", ".end_amdhsa_kernel"]
    open(sys.argv[1], "w").write("\n".join(lines) + "\n")
    if errs and not cfg.abl: sys.exit(1)
main()
```

```python
import sys, math, struct
from asmlib import *

class Cfg:
    nt_q = False; nt_kv = False; nt_o = False
    thr_log2 = 24
    slow = True
    stamps = False
    seam_t = 36
    abl = ''
    pk = True
    burst8 = False
    o_pol = ''
    o_pol_last = ' sc0 sc1'
    cond_wt = 0
    codepf = False
    st_tiles = None
    st_grp = 2
    qk_order = 'chain2'
    halfbar = False
    dw_glue = 0
    rd_glue = True
    pad = 0
    e64 = False
    dma_seam = True
    direct_o = False
    kv_pol = ''
    q_pol = ' nt'
    qd_tiles = [2, 3, 5, 6, 8, 9, 11, 12]
    qr_tiles = [6, 7, 9, 10]
    dw_gap = 1
    st_gap = 0
cfg = Cfg()
for a in sys.argv[2:]:
    k, v = a.split("="); setattr(cfg, k, eval(v))

NAME = "standalone__mha_softmax__near_ridge_kernel"
def f32(x): return struct.unpack("<I", struct.pack("<f", x))[0]
CSCALE = f32(128 ** -0.5 * math.log2(math.e))

V_KA = 2
V_VA = 6
V_DMA = 14
V_QOFF = 18; V_OOFF = 19
V_NEGM = 20
V_RINV = 24
V_T = 60
V_OT = (80, 84, 88, 92, 120, 124, 36, 40)
V_ONES = 32
V_QDMA = 48
V_QA = 52
V_OW = 56; V_OR = 57
V_QA2 = 58
V_L = 64
V_S = 96
V_P = 112
V_O = 128
A_Q = 0; A_QB = 64; A_K = 128; A_V = 192
S_Q, S_X, S_O, S_K, S_V, S_W = 16, 20, 24, 28, 32, 36
S_C, S_NC, S_THR, S_WAVE, S_LDSB, S_DOFF, S_INEXT, S_XCD = 40, 41, 42, 43, 44, 45, 46, 47
S_QNEXT, S_KVNEXT, S_QCUR, S_KVCUR, S_QPREV, S_KVPREV = 48, 49, 50, 51, 52, 53
S_BAD = 54
S_LOOP, S_RET, S_WPART, S_T0, S_T1, S_TQ, S_TO = 62, 63, 64, 65, 66, 67, 88
S_STG, S_WQ, S_STG2 = 80, 81, 82
STG = 131072
OOB = 0x40000000

def salu(t, rd=(), wr=(), **k): return Ins(t, "salu", [("s", x) if isinstance(x, int) else x for x in rd], [("s", x) if isinstance(x, int) else x for x in wr], **k)
def valu(t, rd=(), wr=(), kind="valu", **k): return Ins(t, kind, rd, wr, **k)
def V(n, c=1): return R("v", n, c)
def A(n, c=1): return R("a", n, c)
def Sg(n, c=1): return R("s", n, c)

def mfma(d, a, b, c):
    ct = "0" if c is None else rs("v", c, 4)
    t = f"v_mfma_f32_16x16x32_bf16 {rs('v', d, 4)}, {rs(a[0], a[1], 4)}, {rs(b[0], b[1], 4)}, {ct}"
    ab = R(a[0], a[1], 4) + R(b[0], b[1], 4)
    cc = [] if c is None else V(c, 4)
    return Ins(t, "mfma", ab + cc, V(d, 4), srcc=cc, ab=ab)

def QK(qb, T, g):
    out = []
    order = {"alt": [(t, kk) for kk in range(4) for t in range(2)], "chain": [(t, kk) for t in range(2) for kk in range(4)],
             "chain2": [(0, 0), (0, 1), (0, 2), (0, 3), (1, 3), (1, 2), (1, 1), (1, 0)],
             "snake": [(0, 0), (1, 0), (1, 1), (0, 1), (0, 2), (1, 2), (1, 3), (0, 3)]}[cfg.qk_order]
    seen = set()
    for t, kk in order:
        if True:
            d = V_S + 8 * (g % 2) + 4 * t; firstc = t not in seen; seen.add(t)
            out.append(mfma(d, ("a", A_K + 32 * (T % 2) + 16 * t + 4 * kk), ("a", A_Q + 64 * qb + 16 * g + 4 * kk), None if firstc else d))
    return out
def PV(T, g, first):
    out = []
    p = ("v", V_P + 4 * (g % 2))
    for dt in range(8):
        d = V_O + 32 * g + 4 * dt
        out.append(mfma(d, ("a", A_V + 32 * (T % 2) + 4 * dt), p, None if first else d))
    d = V_L + 4 * g
    out.append(mfma(d, ("v", V_ONES), p, None if first else d))
    return out

def SM(g, first, cvt_min):
    s = V_S + 8 * (g % 2); p = V_P + 4 * (g % 2); nm = V_NEGM + g
    o = []
    if first:
        t0, t1 = V_T + 2 * (g % 2), V_T + 2 * (g % 2) + 1
        o.append(valu(f"v_max3_f32 v{t0}, v{s}, v{s+1}, v{s+2}", V(s, 3), V(t0)))
        o.append(valu(f"v_max3_f32 v{t1}, v{s+3}, v{s+4}, v{s+5}", V(s + 3, 3), V(t1)))
        o.append(valu(f"v_max3_f32 v{t0}, v{s+6}, v{s+7}, v{t0}", V(s + 6, 2) + V(t0), V(t0)))
        o.append(valu(f"v_max_f32 v{t0}, v{t0}, v{t1}", V(t0) + V(t1), V(t0)))
        o.append(valu(f"v_mov_b32 v{t1}, v{t0}", V(t0), V(t1)))
        o.append(valu(f"v_permlane32_swap_b32 v{t1}, v{t0}", V(t0) + V(t1), V(t0) + V(t1), kind="perm", cost=8, nogap=True)); o[-1].last = True
        o.append(valu(f"v_max_f32 v{t0}, v{t0}, v{t1}", V(t0) + V(t1), V(t0)))
        o.append(valu(f"v_mov_b32 v{t1}, v{t0}", V(t0), V(t1)))
        o.append(valu(f"v_permlane16_swap_b32 v{t1}, v{t0}", V(t0) + V(t1), V(t0) + V(t1), kind="perm", cost=8, nogap=True)); o[-1].last = True
        o.append(valu(f"v_max_f32 v{t0}, v{t0}, v{t1}", V(t0) + V(t1), V(t0)))
        o.append(valu(f"v_mul_f32 v{nm}, s{S_NC}, v{t0}", V(t0) + Sg(S_NC), V(nm)))
    def fma(r): return valu(f"v_fma_f32 v{s+r}, v{s+r}, s{S_C}, v{nm}", V(s + r) + V(nm) + Sg(S_C), V(s + r))
    def ex(r): return valu(f"v_exp_f32{'_e64' if cfg.e64 else ''} v{s+r}, v{s+r}", V(s + r), V(s + r), kind="trans")
    def cvt(h): return valu(f"v_cvt_pk_bf16_f32 v{p+h}, v{s+2*h}, v{s+2*h+1}", V(s + 2 * h, 2), V(p + h), minpos=cvt_min, nogap=True)
    o += [fma(0), fma(1), ex(0), ex(1), fma(2), fma(3), ex(2), ex(3), cvt(0), fma(4), ex(4), cvt(1), fma(5), ex(5),
          fma(6), fma(7), ex(6), ex(7), cvt(2), cvt(3)]
    o[-1].nogap = False
    return o

def KREADS(T, tagp):
    o = []
    for kk in range(4):
        for t in range(2):
            d = A_K + 32 * (T % 2) + 16 * t + 4 * kk
            o.append(Ins(f"ds_read_b128 {rs('a', d, 4)}, v{V_KA+kk} offset:{(T % 8) * 8192 + t * 4096}", "ds", V(V_KA + kk), A(d, 4), tag=f"K{tagp}"))
    return o
def VREADS(T, tagp):
    o = []
    for dt in range(8):
        for h in range(2):
            d = A_V + 32 * (T % 2) + 4 * dt + 2 * h
            o.append(Ins(f"ds_read_b64_tr_b16 {rs('a', d, 2)}, v{V_VA+dt} offset:{(T % 8) * 8192 + h * 4096}", "ds", V(V_VA + dt), A(d, 2), tag=f"V{tagp}"))
    return o
def DMA(TT, how, tagp):
    o = []
    if how == "inc": o.append(salu(f"s_add_u32 s{S_DOFF}, s{S_DOFF}, 8192", [S_DOFF], [S_DOFF]))
    else: o.append(salu(f"s_add_u32 s{S_DOFF}, s{S_KVNEXT}, s{S_WPART}", [S_KVNEXT, S_WPART], [S_DOFF]))
    o.append(salu(f"s_add_u32 m0, s{S_LDSB}, {(TT % 8) * 8192}", [S_LDSB], [("m0", 0)]))
    nt = cfg.kv_pol
    for p in range(4):
        o.append(Ins(f"buffer_load_dwordx4 v{V_DMA+p}, {rs('s', S_X, 4)}, s{S_DOFF} offen offset:{1024*p}{nt} lds", "dma",
                     V(V_DMA + p) + Sg(S_X, 4) + Sg(S_DOFF) + [("m0", 0)], [], tag=f"D{tagp}", nogap=(p == 0), cost=(14 if p == 0 else 9)))
    return o
def QDMA(n, stg=S_STG):
    g_, c2 = n // 4, (n // 2) % 2
    o = []
    if n == 0: o.append(salu(f"s_add_u32 s{S_TQ}, s{S_QNEXT}, s{S_WQ}", [S_QNEXT, S_WQ], [S_TQ]))
    elif c2 == 0: o.append(salu(f"s_add_u32 s{S_TQ}, s{S_TQ}, 4096", [S_TQ], [S_TQ]))
    o.append(salu(f"s_add_u32 m0, s{stg}, {1024*(n%8) - 128*c2}", [stg], [("m0", 0)]))
    nt = cfg.q_pol
    for h in range(2):
        o.append(Ins(f"buffer_load_dwordx4 v{V_QDMA+h}, {rs('s', S_Q, 4)}, s{S_TQ} offen offset:{1024*h+128*c2}{nt} lds", "dma",
                     V(V_QDMA + h) + Sg(S_Q, 4) + Sg(S_TQ) + [("m0", 0)], [], tag=f"QD{n//2}", nogap=(h == 0), cost=(14 if h == 0 else 9)))
    return o
def QREAD(qb, n, va=V_QA, inbody=False):
    g_, c2 = n // 4, (n // 2) % 2
    o = [wait(("vm", [f"QD{n//2}"]), key=(f"wQD{qb}_{n}" if inbody else None))]
    for k2 in range(2):
        d = A_Q + 64 * qb + 16 * g_ + 4 * (2 * c2 + k2)
        o.append(Ins(f"ds_read_b128 {rs('a', d, 4)}, v{va+k2} offset:{1024*(n%8)}", "ds", V(va + k2), A(d, 4), tag=f"Q{qb}{g_}"))
    return o
def EPI(g, sq, site=None, pol=None):
    l = V_L + 4 * g; r = V_RINV + 2 * g; to = S_TO + g
    o = [valu(f"v_rcp_f32 v{r}, v{l}", V(l), V(r), kind="trans"),
         valu(f"v_cmp_ngt_f32 {rs('s', S_BAD+2*g, 2)}, s{S_THR}, v{l}", V(l) + Sg(S_THR), Sg(S_BAD + 2 * g, 2)),
         salu(f"s_add_u32 s{to}, s{sq}, {4096*g}", [sq], [to])]
    nt = cfg.o_pol if pol is None else pol
    a0 = V_O + 32 * g
    if cfg.pk:
        M = [valu(f"v_pk_mul_f32 v[{a0+e}:{a0+e+1}], v[{a0+e}:{a0+e+1}], v[{r}:{r+1}] op_sel_hi:[1,0]", V(a0 + e, 2) + V(r), V(a0 + e, 2)) for e in range(0, 32, 2)]
        M[0].cost = 16; M[0].late = True
        for x in M[1:]: x.glue = True; x.late = True
    else:
        M = [valu(f"v_mul_f32 v{a0+e}, v{a0+e}, v{r}", V(a0 + e) + V(r), V(a0 + e)) for e in range(32)]
    C = [valu(f"v_cvt_pk_bf16_f32 v{a0+h}, v{a0+2*h}, v{a0+2*h+1}", V(a0 + 2 * h, 2), V(a0 + h)) for h in range(16)]
    W = [Ins(f"ds_write_b64 v{V_OW}, {rs('v', a0 + 2 * h, 2)} offset:{32*h}", "ds", V(V_OW) + V(a0 + 2 * h, 2), [], tag="OW", cost=12) for h in range(8)]
    for k_, x in enumerate(W):
        x.delay = cfg.dw_gap
        if cfg.dw_glue and k_ % cfg.dw_glue: x.glue = True
    ot = V_OT[4 * (g % 2):4 * (g % 2) + 4]; ok = "v"
    if cfg.st_tiles and g >= 2: ok = "a"; ot = [96 + 16 * (g - 2) + 4 * p for p in range(4)]
    RD = [Ins(f"ds_read_b128 {rs(ok, ot[p], 4)}, v{V_OR} offset:{1088*p}", "ds", V(V_OR), R(ok, ot[p], 4), tag=f"OR{g}") for p in range(4)]
    if cfg.rd_glue:
        for x in RD[1:]: x.glue = True
    ST = [Ins(f"buffer_store_dwordx4 {rs(ok, ot[p], 4)}, v{V_OOFF}, {rs('s', S_O, 4)}, s{to} offen offset:{1024*p}{nt}", "store",
              R(ok, ot[p], 4) + V(V_OOFF) + Sg(S_O, 4) + Sg(to), [], tag="ST", cost=16) for p in range(4)]
    if cfg.cond_wt and pol is None:
        lab = f"L_wt{g}"
        alt = "\n  ".join(x.text + cfg.o_pol_last for x in ST)
        ST[0].text = f"s_cmp_lt_u32 s{S_LOOP}, {cfg.cond_wt}\n  s_cbranch_scc0 {lab}a\n  {alt}\n  s_branch {lab}b\n{lab}a:\n  " + ST[0].text
        ST[3].text = ST[3].text + f"\n{lab}b:"
        ST[0].cost += 8; ST[0].rd += Sg(S_LOOP)
    for x in ST[1:]:
        if cfg.st_gap: x.delay = cfg.st_gap
        else: x.glue = True
    wt = wait(("lgkm", [f"OR{g}"])); wt.delay = 6
    ev = o + M + C; em = W + RD; es = [wt] + ST
    if cfg.direct_o:
        SW = []
        for p in range(4):
            a = a0 + 4 * p
            SW += [valu(f"v_permlane16_swap_b32 v{a}, v{a+2}", V(a) + V(a + 2), V(a) + V(a + 2), kind="perm", cost=8),
                   valu(f"v_permlane16_swap_b32 v{a+1}, v{a+3}", V(a + 1) + V(a + 3), V(a + 1) + V(a + 3), kind="perm", cost=8)]
        ST = [Ins(f"buffer_store_dwordx4 {rs('v', a0 + 4 * p, 4)}, v{V_OW}, {rs('s', S_O, 4)}, s{to} offen offset:{64*p}{nt}", "store",
                  V(a0 + 4 * p, 4) + V(V_OW) + Sg(S_O, 4) + Sg(to), [], tag="ST", cost=24) for p in range(4)]
        for x in ST[1:]: x.glue = True
        ST[0].nogap = True
        ev = o + M + C + SW; em = ST; es = [Ins("", "comment", cost=0)] * 5
    o = es = list(es)
    if site is not None:
        b = S_BAD
        o.append(salu(f"s_or_b64 s[{b}:{b+1}], s[{b}:{b+1}], s[{b+2}:{b+3}]", Sg(b, 4), Sg(b, 2)))
        o.append(salu(f"s_or_b64 s[{b+4}:{b+5}], s[{b+4}:{b+5}], s[{b+6}:{b+7}]", Sg(b + 4, 4), Sg(b + 4, 2)))
        o.append(salu(f"s_or_b64 s[{b}:{b+1}], s[{b}:{b+1}], s[{b+4}:{b+5}]\n  s_cbranch_scc1 L_slow{site}\nL_ret{site}:", Sg(b, 2) + Sg(b + 4, 2), Sg(b, 2), cost=8))
    return ev, em, es

def next_block_calc(pre_inc):
    o = []
    if pre_inc: o.append(salu(f"s_add_u32 s{S_INEXT}, s{S_INEXT}, 32", [S_INEXT], [S_INEXT]))
    o += [salu(f"s_mul_i32 s{S_T0}, s{S_INEXT}, 43691", [S_INEXT], [S_T0]),
          salu(f"s_lshr_b32 s{S_T0}, s{S_T0}, 17", [S_T0], [S_T0]),
          salu(f"s_lshl_b32 s{S_T1}, s{S_XCD}, 6", [S_XCD], [S_T1]),
          salu(f"s_add_u32 s{S_T0}, s{S_T0}, s{S_T1}", [S_T0, S_T1], [S_T0]),
          salu(f"s_lshl_b32 s{S_KVNEXT}, s{S_T0}, 17", [S_T0], [S_KVNEXT]),
          salu(f"s_mul_i32 s{S_T1}, s{S_XCD}, 192", [S_XCD], [S_T1]),
          salu(f"s_add_u32 s{S_T1}, s{S_T1}, s{S_INEXT}", [S_T1, S_INEXT], [S_T1]),
          salu(f"s_lshl_b32 s{S_QNEXT}, s{S_T1}, 16", [S_T1], [S_QNEXT]),
          salu(f"s_cmp_lt_u32 s{S_INEXT}, 192\n  s_cselect_b32 s{S_KVNEXT}, s{S_KVNEXT}, {OOB}\n  s_cselect_b32 s{S_QNEXT}, s{S_QNEXT}, {OOB}",
               [S_INEXT, S_KVNEXT, S_QNEXT], [S_KVNEXT, S_QNEXT], cost=12)]
    return o
def rotate():
    return [salu(f"s_mov_b32 s{S_QPREV}, s{S_QCUR}", [S_QCUR], [S_QPREV]), salu(f"s_mov_b32 s{S_KVPREV}, s{S_KVCUR}", [S_KVCUR], [S_KVPREV]),
            salu(f"s_mov_b32 s{S_QCUR}, s{S_QNEXT}", [S_QNEXT], [S_QCUR]), salu(f"s_mov_b32 s{S_KVCUR}, s{S_KVNEXT}", [S_KVNEXT], [S_KVCUR])]

DEAD = set()
def wait(*need, key=None):
    w = Ins("s_waitcnt ?", "wait", need=list(need)); w.tag = key
    if cfg.st_tiles: w.cntst = True
    if key is not None and key in DEAD: w.cost = 0; w.kind = "comment"; w.text = ""; w.need = None
    return w
def barrier(): return Ins("s_barrier", "barrier", cost=4)

G = 17
NVE = 51
def setmin(ops, m):
    for o in ops: o.minpos = max(o.minpos, m)
    return ops
def QCOPY(g_):
    return [valu(f"v_accvgpr_mov_b32 a{A_Q+16*g_+r}, a{A_QB+16*g_+r}", A(A_QB + 16 * g_ + r), A(A_Q + 16 * g_ + r)) for r in range(16)]
def sbar(*need, stamp=True):
    p = []
    if cfg.stamps and stamp: p.append(salu("s_memtime s[70:71]\n  s_memrealtime s[92:93]\n  v_mov_b32 v47, s72"))
    p += [wait(*need), barrier()]
    if cfg.stamps and stamp:
        p.append(valu("s_memtime s[72:73]\n  v_mov_b32 v46, s70\n  v_cmp_eq_u32 vcc, s74, v0\n  s_add_u32 s74, s74, 1\n  s_nop 0\n  v_cndmask_b32 v44, v44, v46, vcc\n  v_cndmask_b32 v45, v45, v47, vcc\n  v_mov_b32 v46, s92\n  v_cndmask_b32 v50, v50, v46, vcc", [], V(44, 2)))
    return p
def qread0(g_): return QREAD(0, 4 * g_, V_QA if g_ < 2 else V_QA2) + QREAD(0, 4 * g_ + 2, V_QA if g_ < 2 else V_QA2)
def build_prologue():
    bb = []; pre = {}; st = []; B = []
    for n in range(8):
        T, g = divmod(n, 4); T1, g1 = divmod(n + 1, 4); T0, g0 = divmod(n - 1, 4)
        base = len(bb); B.append(base)
        p = pre.setdefault(base, [])
        if n == 1: p += sbar(("vm", ["D1"]), ("lgkm", "all"))
        if n == 4: p += sbar(("vm", ["D2"]), ("lgkm", "all"), stamp=False)
        if g1 == 0: p.append(wait(("lgkm", [f"K{T1}"])))
        if T1 == 0: p.append(wait(("lgkm", [f"Q0{g1}"])))
        bb += QK(0, T1, g1)
        if n > 0:
            if g0 == 0: pre.setdefault(base + 8, []).append(wait(("lgkm", [f"V{T0}"])))
            bb += PV(T0, g0, T0 == 0)
    B.append(len(bb))
    for n in range(8):
        T, g = divmod(n, 4)
        st.append(Stream(f"SM{n}", SM(g, T == 0, B[n] - 1), (B[n - 1] + 12 if n else 0), B[n + 1] - 1))
    st.append(Stream("QR2", qread0(2), 4, B[1] - 1))
    st.append(Stream("QR3", qread0(3), B[1] + 8, B[2] - 3))
    for k, op in enumerate(KREADS(1, 1)): st.append(Stream(f"K1_{k}", [op], B[1] + 3 * k, B[1] + 3 * k + 4))
    for k, op in enumerate(VREADS(1, 1)): st.append(Stream(f"V1_{k}", [op], B[1] + (5 * k) // 2, B[1] + (5 * k) // 2 + 6))
    for k, op in enumerate(KREADS(2, 2)): st.append(Stream(f"K2_{k}", [op], B[4] + 5 * k, B[4] + 5 * k + 7))
    for k, op in enumerate(VREADS(2, 2)): st.append(Stream(f"V2_{k}", [op], B[5] - 1 + (5 * k) // 2, B[5] - 1 + (5 * k) // 2 + 6))
    d = []
    for TT, gi in ((3, 1), (4, 2), (5, 3), (6, 4), (7, 5), (8, 6)):
        x = DMA(TT, "inc", TT)
        for y in x[3:]: y.glue = True
        setmin(x, B[gi]); x[2].minpos = B[gi] + 3; x[2].maxpos = B[gi] + 10
        d += x
    st.append(Stream("D", d, B[1], B[8] - 1))
    st.append(Stream("NB", rotate() + next_block_calc(True), 0, B[4]))
    out, stats = schedule(bb, st, pre, lambda i: 12 if i < B[4] else 8)
    sb = sbar(("vm", ["D3", "D4"]), ("lgkm", "all"))
    k = [i_ for i_, x in enumerate(sb) if x.kind == "barrier"][0]
    return out + sb[:k] + [salu("s_branch L_entry")]

def build_body():
    bb = []; pre = {}; st = []
    NG = 64
    for n in range(NG):
        T, g = divmod(n, 4)
        n1 = (n + 1) % NG; T1, g1 = divmod(n1, 4)
        n0 = (n - 1) % NG; T0, g0 = divmod(n0, 4)
        base = G * n
        p = pre.setdefault(base, [])
        if n == 0: p += rotate()
        if g == 0 and T % 2 == 0:
            sb = sbar(("vm", [f"D{(T+1)%16}", f"D{(T+2)%16}"]), ("lgkm", "all"))
            if cfg.halfbar and T % 4 == 2:
                for x in sb:
                    if x.kind == "barrier": x.text = "s_nop 0"
            if T == 2:
                for x in sb:
                    if x.kind == "wait": x.cntst = True
                k = [i_ for i_, x in enumerate(sb) if x.kind == "barrier"][0]
                sb.insert(k, Ins("L_entry:", "label", cost=0))
            p += sb
        if g1 == 0: p.append(wait(("lgkm", [f"K{T1}"]), key=f"wK{T1}"))
        if T1 == 0 and g1 >= 2: p.append(wait(("lgkm", [f"Q0{g1}"]), key=f"wQ{T1}{g1}"))
        bb += QK(0, T1, g1)
        if g0 == 0: pre.setdefault(base + 8, []).append(wait(("lgkm", [f"V{T0}"]), key=f"wV{T0}"))
        bb += PV(T0, g0, T0 == 0)
        rel = max(0, base - G + 12) if n != 8 else base
        st.append(Stream(f"SM{n}", SM(g, T == 0, base - 1), rel, base + G - 1))
        if g == 0:
            Tn = (T + 1) % 16; t = T
            for k, op in enumerate(KREADS(Tn, Tn)): st.append(Stream(f"K{Tn}_{k}", [op], base + 5 * k, base + 5 * k + 7))
            for k, op in enumerate(VREADS(Tn, Tn)): st.append(Stream(f"V{Tn}_{k}", [op], base + G - 1 + (5 * k) // 2, base + G - 1 + (5 * k) // 2 + 6))
            TT = (T + 7) % 16
            d = DMA(TT, "next" if t == 9 else "inc", TT)
            for x in d[3:]: x.glue = True
            d[2].minpos = base + 3; d[2].maxpos = base + G
            if cfg.dma_seam:
                if t == 0: d[2].minpos = base + 1; d[2].maxpos = base + 2
                if t == 1: setmin(d, base + 3 * G); d[2].minpos = base + 3 * G + 2; d[2].maxpos = base + 4 * G - 2
            elif t == 0: d[2].maxpos = base + 3 * G
            if t in cfg.qd_tiles:
                qd = QDMA(2 * cfg.qd_tiles.index(t)); qd[-1].glue = True
                setmin(qd[-2:], base + 3 * G + 1)
                d += qd
            st.append(Stream(f"D{TT}", d, base, base + 4 * G - 1))
            if t == 0: st.append(Stream(f"NB{T}", next_block_calc(True), base, base + 3 * G))
            if t in cfg.qr_tiles: st.append(Stream(f"QR{T}", QREAD(1, 2 * cfg.qr_tiles.index(t), inbody=True), base + G, base + 3 * G - 2))
            if t == 15:
                st.append(Stream("QC0", QCOPY(0), base - G + 8, base + 3 * G - 3))
                st.append(Stream("QC1", QCOPY(1), base + 8, base + 4 * G - 1))
                st.append(Stream("QR2", QREAD(0, 8, inbody=True) + QREAD(0, 10, inbody=True), base + G + 8, base + 2 * G + 7))
                st.append(Stream("QR3", QREAD(0, 12, inbody=True) + QREAD(0, 14, inbody=True), base + 2 * G + 8, base + 3 * G + 1, prio=30))
        if T == 15 and g == 1:
            e0 = EPI(0, S_QCUR); e1 = EPI(1, S_QCUR)
            st.append(Stream("E_v0", e0[0], base + G + 5, base + 2 * G + 1))
            st.append(Stream("E_m0", e0[1], base + 2 * G + 2, base + 3 * G - 1, prio=30))
            st.append(Stream("E_v1", e1[0], base + 2 * G + 5, base + 3 * G - 1))
        if n == 0:
            e0 = EPI(0, S_QCUR); e1 = EPI(1, S_QCUR); e2 = EPI(2, S_QPREV); e3 = EPI(3, S_QPREV, site=0)
            st.append(Stream("E_v2", e2[0], base + 4, base + G + 8))
            st.append(Stream("E_v3", e3[0], base + G + 9, base + 2 * G + 14))
            e1[1][-1].maxpos = base + G + 8; e2[1][-1].maxpos = base + 3 * G + 5
            if cfg.st_tiles:
                chain = e1[1] + setmin(e2[1], base + G + 9) + setmin(e3[1], base + 2 * G + 15)
                chain[-1].maxpos = base + 4 * G + 5
                chain += e3[2][5:]
                st.append(Stream("E_m", chain, base, base + 5 * G, prio=10))
                for k, tt in enumerate(cfg.st_tiles):
                    e = (e0, e1, e2, e3)[k // 2][2]
                    pr = e[1 + 2 * (k % 2):3 + 2 * (k % 2)]; pr[0].glue = False; pr[1].glue = True
                    if k % 2 == 0: e[0].delay = 0; e[0].tag = f"wOR{k}"; pr = [wait(("lgkm", [f"OR{k//2}"]), key=f"wOR{k}")] + pr
                    pos = G * (4 * tt + cfg.st_grp)
                    pr[-2].maxpos = pos + 6
                    st.append(Stream(f"S{k}", pr, pos, pos + 8))
            else:
                chain = e1[1] + e0[2] + setmin(e2[1], base + G + 9) + e1[2] + setmin(e3[1], base + 2 * G + 15)
                chain[-1].maxpos = base + 4 * G + 5
                sg = max(cfg.st_gap, 2)
                for k, x in enumerate(e2[2][:5] + e3[2][:5]): x.maxpos = base + 4 * G + 12 + sg * k
                chain += e2[2] + e3[2]
                st.append(Stream("E_m", chain, base, base + 4 * G + 14 + max(cfg.st_gap, 2) * 10, prio=10))
    def tfn(i):
        n = i // G; T = (n // 4) % 16
        if T == 15 and i % (4 * G) >= 2 * G + 4: return cfg.seam_t
        if T == 0: return cfg.seam_t
        return 8
    return schedule(bb, st, pre, tfn)

def build_drain():
    bb = PV(15, 3, False)
    pre = {0: rotate()}
    e0 = EPI(0, S_QCUR, pol=cfg.o_pol_last); e1 = EPI(1, S_QCUR, pol=cfg.o_pol_last); e2 = EPI(2, S_QPREV, pol=cfg.o_pol_last); e3 = EPI(3, S_QPREV, site=1, pol=cfg.o_pol_last)
    seq = e0[2] + e1[1] + setmin(e2[0], 3) + e1[2] + e2[1] + setmin(e3[0], 8) + e2[2] + e3[1] + e3[2]
    for x in seq: x.delay = 0
    st = [Stream("E", seq, 0, 8)]
    out, stats = schedule(bb, st, pre, lambda i: 24)
    return out

def build_init():
    o = []
    def s(t, rd=(), wr=()): o.append(salu(t, rd, wr))
    def v(t, rd=(), wr=()): o.append(valu(t, rd, wr))
    if cfg.stamps: s("s_memrealtime s[94:95]")
    s("s_cmp_ge_u32 s2, 256\n  s_cbranch_scc1 L_end")
    s("s_load_dwordx8 s[4:11], s[0:1], 0", [], list(range(4, 12)))
    s("s_load_dwordx4 s[12:15], s[0:1], 32", [], list(range(12, 16)))
    v("v_lshrrev_b32 v1, 6, v0", V(0), V(1))
    v("v_and_b32 v0, 63, v0", V(0), V(0))
    v(f"v_readfirstlane_b32 s{S_WAVE}, v1", V(1), Sg(S_WAVE))
    v("v_and_b32 v36, 15, v0", V(0), V(36)); v("v_lshrrev_b32 v37, 4, v0", V(0), V(37)); v("v_lshrrev_b32 v38, 2, v0", V(0), V(38))
    s(f"s_lshr_b32 s{S_T0}, s{S_WAVE}, 1", [S_WAVE], [S_T0])
    s(f"s_and_b32 s{S_T1}, s{S_WAVE}, 1", [S_WAVE], [S_T1])
    s(f"s_lshl_b32 s{S_WPART}, s{S_T1}, 12", [S_T1], [S_WPART])
    s(f"s_lshl_b32 s{S_LDSB}, s{S_T0}, 16", [S_T0], [S_LDSB])
    s(f"s_add_u32 s{S_LDSB}, s{S_LDSB}, s{S_WPART}", [S_LDSB, S_WPART], [S_LDSB])
    s(f"s_lshr_b32 s{S_TQ}, 15, s{S_T0}", [S_T0], [S_TQ])
    for p in range(4):
        v(f"v_add_u32 v39, {4*p}, v37", V(37), V(39)); v(f"v_and_b32 v39, s{S_TQ}, v39", V(39) + Sg(S_TQ), V(39))
        v(f"v_lshlrev_b32 v39, s{S_T0}, v39", V(39) + Sg(S_T0), V(39)); v("v_xor_b32 v39, v39, v36", V(39) + V(36), V(39))
        v("v_lshlrev_b32 v39, 4, v39", V(39), V(39)); v(f"v_lshl_add_u32 v{V_DMA+p}, v37, 8, v39", V(37) + V(39), V(V_DMA + p))
    v("v_lshrrev_b32 v39, 3, v0", V(0), V(39)); v("v_and_b32 v40, 6, v39", V(39), V(40)); v("v_and_b32 v41, 7, v0", V(0), V(41))
    v("v_xor_b32 v40, v40, v41", V(40) + V(41), V(40)); v("v_lshlrev_b32 v40, 4, v40", V(40), V(40))
    v(f"v_lshl_add_u32 v{V_QDMA}, v39, 8, v40", V(39) + V(40), V(V_QDMA)); v(f"v_add_u32 v{V_QDMA+1}, 1024, v{V_QDMA}", V(V_QDMA), V(V_QDMA + 1))
    s(f"s_lshl_b32 s{S_WQ}, s{S_WAVE}, 14", [S_WAVE], [S_WQ])
    s(f"s_lshl_b32 s{S_STG}, s{S_WAVE}, 13", [S_WAVE], [S_STG]); s(f"s_add_u32 s{S_STG}, s{S_STG}, {STG}", [S_STG], [S_STG])
    s(f"s_lshl_b32 s{S_STG2}, s{S_T0}, 16", [S_T0], [S_STG2]); s(f"s_lshl_b32 s{S_T1}, s{S_WPART}, 1", [S_WPART], [S_T1])
    s(f"s_add_u32 s{S_STG2}, s{S_STG2}, s{S_T1}", [S_STG2, S_T1], [S_STG2]); s(f"s_add_u32 s{S_STG2}, s{S_STG2}, {6*8192}", [S_STG2], [S_STG2])
    s(f"s_and_b32 s{S_XCD}, s2, 7", [], [S_XCD]); s(f"s_lshr_b32 s{S_INEXT}, s2, 3", [], [S_INEXT])
    early = o; o = late = []
    for kk in range(4):
        v(f"v_or_b32 v39, {4*kk}, v37", V(37), V(39)); v("v_xor_b32 v39, v39, v36", V(39) + V(36), V(39))
        v("v_lshlrev_b32 v39, 4, v39", V(39), V(39)); v(f"v_lshl_add_u32 v{V_KA+kk}, v36, 8, v39", V(36) + V(39), V(V_KA + kk))
    v("v_and_b32 v40, 7, v38", V(38), V(40)); v("v_and_b32 v41, 3, v0", V(0), V(41)); v("v_lshlrev_b32 v41, 3, v41", V(41), V(41))
    v("v_lshl_add_u32 v41, v38, 8, v41", V(38) + V(41), V(41)); v("v_add_u32 v41, 0x10000, v41", V(41), V(41))
    for dt in range(8):
        v(f"v_xor_b32 v39, {dt}, v40", V(40), V(39)); v(f"v_lshl_add_u32 v{V_VA+dt}, v39, 5, v41", V(39) + V(41), V(V_VA + dt))
    v("v_and_b32 v40, 6, v36", V(36), V(40)); v("v_and_b32 v41, 7, v36", V(36), V(41)); v("v_lshrrev_b32 v42, 3, v36", V(36), V(42))
    v("v_lshlrev_b32 v41, 7, v41", V(41), V(41)); v("v_lshl_add_u32 v41, v42, 10, v41", V(42) + V(41), V(41))
    for k2 in range(2):
        v(f"v_or_b32 v39, {4*k2}, v37", V(37), V(39)); v("v_xor_b32 v39, v39, v40", V(39) + V(40), V(39))
        v("v_lshl_add_u32 v39, v39, 4, v41", V(39) + V(41), V(39))
        v(f"v_add_u32 v{V_QA+k2}, s{S_STG}, v39", V(39) + Sg(S_STG), V(V_QA + k2))
        v(f"v_add_u32 v{V_QA2+k2}, s{S_STG2}, v39", V(39) + Sg(S_STG2), V(V_QA2 + k2))
    v(f"v_lshlrev_b32 v39, 4, v0", V(0), V(39)); v(f"v_add_u32 v{V_OOFF}, s{S_WQ}, v39", V(39) + Sg(S_WQ), V(V_OOFF))
    v("v_mul_u32_u24 v39, 272, v36", V(36), V(39)); v("v_lshl_add_u32 v39, v37, 3, v39", V(37) + V(39), V(39))
    v(f"v_add_u32 v{V_OW}, s{S_STG}, v39", V(39) + Sg(S_STG), V(V_OW))
    if cfg.direct_o:
        v("v_and_b32 v39, 1, v37", V(37), V(39)); v("v_lshlrev_b32 v39, 5, v39", V(39), V(39)); v("v_lshrrev_b32 v40, 1, v37", V(37), V(40))
        v("v_lshl_add_u32 v39, v40, 4, v39", V(40) + V(39), V(39)); v("v_lshl_add_u32 v39, v36, 8, v39", V(36) + V(39), V(39))
        v(f"v_add_u32 v{V_OW}, s{S_WQ}, v39", V(39) + Sg(S_WQ), V(V_OW))
    v("v_mul_u32_u24 v39, 272, v37", V(37), V(39)); v("v_lshl_add_u32 v39, v36, 4, v39", V(36) + V(39), V(39))
    v(f"v_add_u32 v{V_OR}, s{S_STG}, v39", V(39) + Sg(S_STG), V(V_OR))
    v("v_and_b32 v39, 3, v0", V(0), V(39)); v("v_cmp_eq_u32 vcc, 0, v39", V(39), [("vcc", 0)]); v("v_mov_b32 v40, 0x3f803f80", [], V(40))
    v("v_mov_b32 v39, 0", [], V(39))
    for e in range(4): v(f"v_cndmask_b32 v{V_ONES+e}, v39, v40, vcc", V(39) + V(40) + [("vcc", 0)], V(V_ONES + e))
    for r in list(range(V_L, V_L + 16)) + list(range(V_P, V_P + 8)): v(f"v_mov_b32 v{r}, 0", [], V(r))
    s(f"s_mov_b32 s{S_C}, 0x{CSCALE:08x}", [], [S_C]); s(f"s_mov_b32 s{S_NC}, 0x{CSCALE | 0x80000000:08x}", [], [S_NC])
    s(f"s_mov_b32 s{S_THR}, 0x{f32(2.0 ** cfg.thr_log2):08x}", [], [S_THR])
    for r in range(S_BAD, S_BAD + 8): s(f"s_mov_b32 s{r}, 0", [], [r])
    for r in range(S_TO, S_TO + 4): s(f"s_mov_b32 s{r}, {OOB}", [], [r])
    s(f"s_mov_b32 s{S_QCUR}, {OOB}", [], [S_QCUR]); s(f"s_mov_b32 s{S_KVCUR}, {OOB}", [], [S_KVCUR])
    s(f"s_mov_b32 s{S_LOOP}, 5", [], [S_LOOP])
    if cfg.stamps:
        s("s_mov_b32 s74, 1\n  s_memtime s[72:73]\n  s_memrealtime s[76:77]\n v_mov_b32 v44, 0\n v_mov_b32 v45, 0\n v_mov_b32 v50, 0")
    o = early
    o += next_block_calc(False)
    s("s_waitcnt lgkmcnt(0)")
    if cfg.stamps: s("s_memrealtime s[96:97]")
    for srd, ptr, size in ((S_Q, 4, 0x6000000), (S_O, 10, 0x6000000), (S_K, 6, 0x4000000), (S_V, 8, 0x4000000), (S_W, 14, 402653184)):
        o = early if srd == S_Q else late
        s(f"s_mov_b32 s{srd}, s{ptr}", [ptr], [srd]); s(f"s_mov_b32 s{srd+1}, s{ptr+1}", [ptr + 1], [srd + 1])
        s(f"s_mov_b32 s{srd+2}, {size}", [], [srd + 2]); s(f"s_mov_b32 s{srd+3}, 0x00020000", [], [srd + 3])
    o = early
    s(f"s_cmp_ge_u32 s{S_WAVE}, 2\n  s_cselect_b32 s{S_X}, s8, s6\n  s_cselect_b32 s{S_X+1}, s9, s7", [S_WAVE, 6, 7, 8, 9], [S_X, S_X + 1])
    s(f"s_mov_b32 s{S_X+2}, 0x4000000", [], [S_X + 2]); s(f"s_mov_b32 s{S_X+3}, 0x00020000", [], [S_X + 3])
    def dma(TT, how):
        d = DMA(TT, how, TT); return d[:2] + [salu("s_nop 0")] + d[2:]
    def qdma(g_):
        r = []
        for n in (4 * g_, 4 * g_ + 2):
            d = QDMA(n, S_STG if g_ < 2 else S_STG2); r += d[:-2] + [salu("s_nop 0")] + d[-2:]
        return r
    def qread(g_): return QREAD(0, 4 * g_, V_QA if g_ < 2 else V_QA2) + QREAD(0, 4 * g_ + 2, V_QA if g_ < 2 else V_QA2)
    o += dma(0, "first") + qdma(0) + qdma(1) + qdma(2)
    if cfg.codepf:
        s("s_getpc_b64 s[84:85]\nL_pf:", [], [84, 85]); s("s_and_b32 s84, s84, 0xffffffc0", [84], [84]); s("s_mov_b32 s86, L_end-L_pf", [], [86]); s("s_mov_b32 s87, 0x00020000", [], [87])
        s(f"s_lshl_b32 s83, s{S_WAVE}, 13", [S_WAVE], [83]); v("v_lshlrev_b32 v51, 6, v0", V(0), V(51)); s("s_add_u32 s69, s83, 4096", [83], [69])
        o.append(Ins("buffer_load_dword v54, v51, s[84:87], s83 offen", "vmem", V(51) + Sg(84, 4) + Sg(83), V(54), tag="PF"))
        o.append(Ins("buffer_load_dword v55, v51, s[84:87], s69 offen", "vmem", V(51) + Sg(84, 4) + Sg(69), V(55), tag="PF"))
    o += late
    if cfg.stamps: s("s_memrealtime s[98:99]")
    o += [wait(("vm", ["D0"])), barrier()]
    if cfg.stamps: s("s_memrealtime s[100:101]\n  s_waitcnt lgkmcnt(0)\n  v_writelane_b32 v50, s94, 50\n  v_writelane_b32 v50, s96, 51\n  v_writelane_b32 v50, s98, 52\n  v_writelane_b32 v50, s100, 53")
    o += KREADS(0, 0) + dma(1, "inc") + qread0(0) + VREADS(0, 0) + qdma(3)
    o += [wait(("lgkm", ["K0", "Q00"]))]
    qk = QK(0, 0, 0)
    o += qk[:4] + qread0(1) + qk[4:] + dma(2, "inc")
    return o

def slow_stub():
    t = []
    for site in range(2):
        t.append(f"L_slow{site}:\n  s_branch L_ret{site}")
    return "\n".join(t)

def dataflow(trace):
    errs = []; stt = {}; cnt = {}
    inS = lambda r: r[0] == "v" and V_S <= r[1] < V_S + NS
    inP = lambda r: r[0] == "v" and V_P <= r[1] < V_P + 8
    inO = lambda r: r[0] == "v" and (V_O <= r[1] < V_O + 128 or V_L <= r[1] < V_L + 16)
    for x in trace:
        t = x.text
        if x.kind == "mfma":
            for r in x.wr:
                if inS(r):
                    if cnt.get(r, 4) == 4:
                        if stt.get(r, "c") != "c": errs.append(f"S overwritten before consumed {r} [{t}]")
                        cnt[r] = 1
                    else: cnt[r] += 1
                    stt[r] = "m"
                if inO(r):
                    if not x.srcc:
                        if stt.get(r, "done") != "done": errs.append(f"O overwritten before stored {r} [{t}]")
                        cnt[r] = 1
                    else: cnt[r] = cnt.get(r, 15) + 1
                    stt[r] = "acc"
            for r in x.ab:
                if inP(r):
                    if stt.get(r, "new") != "new": errs.append(f"P read when not new {r} [{t}]")
                    cnt[r] = cnt.get(r, 0) + 1
                    if cnt[r] == 9: stt[r] = "used"; cnt[r] = 0
        else:
            for r in x.rd:
                if inS(r) and cnt.get(r, 4) != 4: errs.append(f"S read while partial {r} [{t}]")
                if inS(r) and t.startswith("v_cvt"): stt[r] = "c"
                if inO(r) and stt.get(r) == "acc" and cnt.get(r) != 16: errs.append(f"O read early {r} cnt {cnt.get(r)} [{t}]")
            if x.kind == "store" and "offset:192" in t:
                for k in range(32): stt[("v", x.rd[0][1] - 12 + k)] = "done"
            if t.startswith("ds_write") and EPI_LAST_W in t:
                a0 = x.rd[1][1] - 14
                for k in range(32): stt[("v", a0 + k)] = "done"
            if t.startswith("v_cmp_ngt"):
                for k in range(4): stt[("v", x.rd[0][1] + k)] = "done"
            for r in x.wr:
                if inP(r) and t.startswith("v_cvt"):
                    if stt.get(r, "used") != "used": errs.append(f"P overwritten before used {r} [{t}]")
                    stt[r] = "new"; cnt[r] = 0
    return errs
def ldsflow(trace):
    import re
    errs = []
    vm = []; lg = []
    vis = {}
    rdst = {}
    m0 = None
    def region_of_read(x):
        t = x.text; off = int(re.search(r"offset:(\d+)", t).group(1)); a = x.rd[0][1]
        if V_KA <= a < V_KA + 4: return [("ring", off // 8192)]
        if V_VA <= a < V_VA + 8: return [("ring", off // 8192)]
        if a in (V_QA, V_QA + 1): return [("stg", off // 1024), ("stg", off // 1024 + 1)]
        if a in (V_QA2, V_QA2 + 1): return [("ring", 6), ("ring", 7), ("stg2", off // 1024), ("stg2", off // 1024 + 1)]
        return None
    for x in trace:
        t = x.text
        if x.kind == "salu" and " m0," in t:
            m = re.search(r"m0, s(\d+), (-?\d+)", t); m0 = (int(m.group(1)), int(m.group(2)))
        if x.kind == "dma":
            off = int(re.search(r"offset:(\d+)", t).group(1))
            if m0[0] == S_LDSB: reg = ("ring", m0[1] // 8192); shared = True
            elif m0[0] == S_STG: reg = ("stg", (m0[1] + off) // 1024); shared = False
            else: reg = ("stg2", (m0[1] + off) // 1024); shared = False
            st_ = rdst.get(reg, "free")
            if st_ == "pending" or (shared and st_ != "free"): errs.append(f"LDS WAR: DMA into {reg} while reads {st_} [{t}]")
            vis[reg] = "flight"; vm.append(reg)
        elif x.kind in ("vmem", "store"): vm.append(None)
        elif x.kind == "ds":
            regs = region_of_read(x) if t.startswith("ds_read") else None
            if regs:
                for reg in regs:
                    if reg[0] == "ring" and len(regs) > 1: rdst[reg] = "pending"; continue
                    need = "visible" if reg[0] == "ring" else "landed"
                    if vis.get(reg) != need and not (need == "landed" and vis.get(reg) == "visible"): errs.append(f"LDS RAW: read of {reg} state {vis.get(reg)} [{t}]")
                    rdst[reg] = "pending"
            if t.startswith("ds_write"):
                for k in range(5):
                    if vis.get(("stg", k)) == "flight": errs.append(f"O staging write while Q DMA in flight [{t}]")
            if t.startswith("ds_read_b128") and x.rd[0][1] == V_OR: regs = [("stg", k) for k in range(5)]; [rdst.__setitem__(r, "pending") for r in regs]
            lg.append(regs or [])
        elif x.kind == "wait":
            m = re.search(r"vmcnt\((\d+)\)", t)
            if m:
                N = int(m.group(1)); done = vm[:max(0, len(vm) - N)]; vm = vm[len(done):]
                for reg in done:
                    if reg is not None and reg not in vm: vis[reg] = "landed"
            m = re.search(r"lgkmcnt\((\d+)\)", t)
            if m:
                N = int(m.group(1)); done = lg[:max(0, len(lg) - N)]; lg = lg[len(done):]
                still = {r for l in lg for r in l}
                for l in done:
                    for reg in l:
                        if reg not in still: rdst[reg] = "retired"
        elif x.kind == "barrier":
            for reg, v_ in vis.items():
                if v_ == "landed": vis[reg] = "visible"
            for reg, v_ in rdst.items():
                if v_ == "retired": rdst[reg] = "free"
    return errs
EPI_LAST_W = "offset:224"
NS = 16
def main():
    tail = [salu(f"s_sub_u32 s{S_LOOP}, s{S_LOOP}, 1\n  s_cbranch_scc0 L_loop", [S_LOOP], [S_LOOP], cost=8)]
    for it in range(3):
        init = build_init()
        body, stats = build_body()
        drain = build_drain()
        init += build_prologue()
        ent = lambda bd: [k for k, x in enumerate(bd) if x.text == "L_entry:"][0]
        trace = init + body[ent(body):] + tail + (body + tail) * 5 + drain
        best = resolve_waits(trace)
        for l in (init, body, drain): apply_waits(l, best)
        dead = lambda x: (x.kind == "wait" and x.need is not None and x.text == "s_nop 0") or x.kind == "comment"
        nd = {x.tag for x in body if x.kind == "wait" and dead(x) and x.tag}
        if nd <= DEAD: break
        DEAD.update(nd)
    init = [x for x in init if not dead(x)]; body = [x for x in body if not dead(x)]; drain = [x for x in drain if not dead(x)]
    if cfg.abl:
        def drop(x):
            t = x.text
            return (('exp' in cfg.abl and t.startswith('v_exp')) or ('fma' in cfg.abl and t.startswith('v_fma')) or
                    ('ds' in cfg.abl and t.startswith('ds_read') and ' a[' in t) or ('dma' in cfg.abl and x.kind == 'dma') or
                    ('bar' in cfg.abl and x.kind == 'barrier') or ('cvt' in cfg.abl.split(',') and t.startswith('v_cvt') and int(t.split()[1][1:-1]) < 128) or
                    ('st' in cfg.abl.split(',') and x.kind == 'store') or ('dw' in cfg.abl and t.startswith('ds_write')) or ('rd' in cfg.abl and t.startswith('ds_read_b128 v')) or ('pk' in cfg.abl and t.startswith('v_pk_mul')) or ('perm' in cfg.abl and 'permlane' in t) or ('qc' in cfg.abl and 'accvgpr_mov' in t) or ('ecvt' in cfg.abl and t.startswith('v_cvt') and int(t.split()[1][1:-1]) >= 128) or ('wt' in cfg.abl and x.kind == 'wait' and x.need and x.need[0][1] in (['OR0'], ['OR1'], ['OR2'], ['OR3'])) or ('ones' in cfg.abl and x.kind == 'mfma' and 'v[32:35]' in t) or
                    ('epi' in cfg.abl and (t.startswith('v_mul_f32 v1') or t.startswith('v_mul_f32 v2') or t.startswith('ds_write') or t.startswith('ds_read_b128 v') or (t.startswith('v_cvt') and int(t.split()[1][1:-1]) >= 128))))
        body = [x for x in body if not drop(x)]
    init, n1 = fix_hazards(init); body, n2 = fix_hazards(body); drain, n3 = fix_hazards(drain)
    print("nops inserted", n1, n2, n3, file=sys.stderr)
    trace = init + body[ent(body):] + tail + (body + tail) * 5 + drain
    errs = check(trace)
    errs += dataflow(trace) + ldsflow(trace)
    written = {("s", 0), ("s", 1), ("s", 2), ("v", 0)}
    for x in trace:
        for r in x.rd:
            if r[0] in ("s", "m0") and r not in written: errs.append(f"uninitialised {r} read by [{x.text}]")
            if r[0] == "v" and r not in written and x.kind in ("dma", "vmem", "ds") : errs.append(f"uninitialised {r} read by [{x.text}]") if not x.text.startswith("ds_write") else None
        written.update(x.wr)
    seen = set()
    for e in errs:
        if e not in seen: print("ERR", e, file=sys.stderr); seen.add(e)
    tot = sum(x.cost for x in body)
    under = sum(1 for f in stats[1:] if f < 8)
    est = sum(8 + max(8, f) for f in stats[1:])
    seg = [sum(8 + max(8, f) for f in stats[1 + 136 * k:1 + 136 * (k + 1)]) for k in range(8)]
    print("est per 2 tiles", seg, file=sys.stderr)
    print(f"body instrs {len(body)} issue-cycles {tot} est cycles {est} underfilled gaps {under}", file=sys.stderr)
    hdr = open("header.txt").read()
    lines = [hdr, '.amdgcn_target "amdgcn-amd-amdhsa--gfx950"', ".text", f".globl {NAME}", ".p2align 8", f".type {NAME},@function", f"{NAME}:"]
    lines += ["  " + x.text for x in init]
    lines += [".p2align 6"] + ["  s_nop 0"] * cfg.pad + ["L_loop:"] + ["  " + x.text for x in body + tail]
    lines += ["  " + x.text for x in drain]
    if cfg.stamps:
        lines += ["""  s_waitcnt vmcnt(0) lgkmcnt(0)
  s_memtime s[70:71]
  s_memrealtime s[78:79]
  s_waitcnt lgkmcnt(0)
  v_writelane_b32 v44, s70, 49
  v_writelane_b32 v45, s72, 49
  v_writelane_b32 v50, s78, 54
  s_sub_u32 s78, s78, s76
  v_writelane_b32 v44, s78, 0
  v_writelane_b32 v45, s76, 0
  s_lshl_b32 s75, s2, 2
  s_add_u32 s75, s75, s%d
  s_lshl_b32 s75, s75, 9
  v_lshlrev_b32 v46, 3, v0
  buffer_store_dwordx2 v[44:45], v46, s[%d:%d], s75 offen
  s_add_u32 s94, s75, 0x100000
  v_lshlrev_b32 v46, 2, v0
  buffer_store_dword v50, v46, s[36:39], s94 offen
  s_cmp_lg_u32 s75, 0
  s_cbranch_scc1 L_end
  s_mov_b32 s84, s12
  s_mov_b32 s85, s13
  s_mov_b32 s86, 256
  s_mov_b32 s87, 0x00020000
  v_readlane_b32 s75, v45, 1
  v_add_u32 v46, 2, v0
  v_mul_u32_u24 v47, 43691, v46
  v_lshrrev_b32 v47, 17, v47
  v_mul_u32_u24 v48, 3, v47
  v_sub_u32 v48, v46, v48
  v_subrev_u32 v47, 1, v47
  v_subrev_u32 v49, s75, v44
  v_cmp_eq_u32 vcc, 0, v48
  v_mov_b32 v50, 1000
  v_cndmask_b32 v47, v50, v47, vcc
  v_cmp_lt_u32 vcc, 40, v0
  s_nop 1
  v_cndmask_b32 v47, v47, v50, vcc
  v_writelane_b32 v47, 14, 0
  v_writelane_b32 v47, 15, 49
  v_readlane_b32 s75, v44, 0
  s_nop 3
  v_writelane_b32 v49, s75, 0
  v_lshlrev_b32 v47, 2, v47
  buffer_store_dword v49, v47, s[84:87], 0 offen""" % (S_WAVE, S_W, S_W + 3)]
    lines += ["L_end:", "  s_endpgm"]
    if cfg.slow:
        import slow
        lines.append(slow.emit(globals()))
    else: lines.append(slow_stub())
    lines += ['.section .rodata,"a"', ".p2align 6", f".amdhsa_kernel {NAME}", "  .amdhsa_next_free_vgpr 512", "  .amdhsa_next_free_sgpr 102",
              "  .amdhsa_accum_offset 256", "  .amdhsa_group_segment_fixed_size 0", "  .amdhsa_kernarg_size 48", "  .amdhsa_user_sgpr_count 2",
              "  .amdhsa_user_sgpr_kernarg_segment_ptr 1", "  .amdhsa_system_sgpr_workgroup_id_x 1", ".end_amdhsa_kernel"]
    open(sys.argv[1], "w").write("\n".join(lines) + "\n")
    if errs and not cfg.abl: sys.exit(1)
main()
```

```python
import sys, math, struct
from asmlib import *

class Cfg:
    nt_q = False; nt_kv = False; nt_o = False
    thr_log2 = 24
    slow = True
    stamps = False
    seam_t = 36
    abl = ''
    pk = True
    burst8 = False
    o_pol = ' sc0 sc1'
    o_pol_last = ' sc0 sc1'
    cond_wt = 0
    codepf = False
    st_tiles = [0, 1, 2, 3, 4, 13, 14, 15]
    st_grp = 1
    qk_order = 'chain2'
    halfbar = False
    dw_glue = 0
    rd_glue = True
    pad = 0
    e64 = False
    dma_seam = True
    direct_o = False
    kv_pol = ''
    q_pol = ' nt'
    qd_tiles = [5, 6, 7, 8, 9, 10, 11, 12]
    qr_tiles = [8, 9, 10, 11]
    dw_gap = 1
    st_gap = 0
cfg = Cfg()
for a in sys.argv[2:]:
    k, v = a.split("="); setattr(cfg, k, eval(v))

NAME = "standalone__mha_softmax__near_ridge_kernel"
def f32(x): return struct.unpack("<I", struct.pack("<f", x))[0]
CSCALE = f32(128 ** -0.5 * math.log2(math.e))

V_KA = 2
V_VA = 6
V_DMA = 14
V_QOFF = 18; V_OOFF = 19
V_NEGM = 20
V_RINV = 24
V_T = 60
V_OT = (80, 84, 88, 92, 120, 124, 36, 40)
V_ONES = 32
V_QDMA = 48
V_QA = 52
V_OW = 56; V_OR = 57
V_QA2 = 58
V_L = 64
V_S = 96
V_P = 112
V_O = 128
A_Q = 0; A_QB = 64; A_K = 128; A_V = 192
S_Q, S_X, S_O, S_K, S_V, S_W = 16, 20, 24, 28, 32, 36
S_C, S_NC, S_THR, S_WAVE, S_LDSB, S_DOFF, S_INEXT, S_XCD = 40, 41, 42, 43, 44, 45, 46, 47
S_QNEXT, S_KVNEXT, S_QCUR, S_KVCUR, S_QPREV, S_KVPREV = 48, 49, 50, 51, 52, 53
S_BAD = 54
S_LOOP, S_RET, S_WPART, S_T0, S_T1, S_TQ, S_TO = 62, 63, 64, 65, 66, 67, 88
S_STG, S_WQ, S_STG2 = 80, 81, 82
STG = 131072
OOB = 0x40000000

def salu(t, rd=(), wr=(), **k): return Ins(t, "salu", [("s", x) if isinstance(x, int) else x for x in rd], [("s", x) if isinstance(x, int) else x for x in wr], **k)
def valu(t, rd=(), wr=(), kind="valu", **k): return Ins(t, kind, rd, wr, **k)
def V(n, c=1): return R("v", n, c)
def A(n, c=1): return R("a", n, c)
def Sg(n, c=1): return R("s", n, c)

def mfma(d, a, b, c):
    ct = "0" if c is None else rs("v", c, 4)
    t = f"v_mfma_f32_16x16x32_bf16 {rs('v', d, 4)}, {rs(a[0], a[1], 4)}, {rs(b[0], b[1], 4)}, {ct}"
    ab = R(a[0], a[1], 4) + R(b[0], b[1], 4)
    cc = [] if c is None else V(c, 4)
    return Ins(t, "mfma", ab + cc, V(d, 4), srcc=cc, ab=ab)

def QK(qb, T, g):
    out = []
    order = {"alt": [(t, kk) for kk in range(4) for t in range(2)], "chain": [(t, kk) for t in range(2) for kk in range(4)],
             "chain2": [(0, 0), (0, 1), (0, 2), (0, 3), (1, 3), (1, 2), (1, 1), (1, 0)],
             "snake": [(0, 0), (1, 0), (1, 1), (0, 1), (0, 2), (1, 2), (1, 3), (0, 3)]}[cfg.qk_order]
    seen = set()
    for t, kk in order:
        if True:
            d = V_S + 8 * (g % 2) + 4 * t; firstc = t not in seen; seen.add(t)
            out.append(mfma(d, ("a", A_K + 32 * (T % 2) + 16 * t + 4 * kk), ("a", A_Q + 64 * qb + 16 * g + 4 * kk), None if firstc else d))
    return out
def PV(T, g, first):
    out = []
    p = ("v", V_P + 4 * (g % 2))
    for dt in range(8):
        d = V_O + 32 * g + 4 * dt
        out.append(mfma(d, ("a", A_V + 32 * (T % 2) + 4 * dt), p, None if first else d))
    d = V_L + 4 * g
    out.append(mfma(d, ("v", V_ONES), p, None if first else d))
    return out

def SM(g, first, cvt_min):
    s = V_S + 8 * (g % 2); p = V_P + 4 * (g % 2); nm = V_NEGM + g
    o = []
    if first:
        t0, t1 = V_T + 2 * (g % 2), V_T + 2 * (g % 2) + 1
        o.append(valu(f"v_max3_f32 v{t0}, v{s}, v{s+1}, v{s+2}", V(s, 3), V(t0)))
        o.append(valu(f"v_max3_f32 v{t1}, v{s+3}, v{s+4}, v{s+5}", V(s + 3, 3), V(t1)))
        o.append(valu(f"v_max3_f32 v{t0}, v{s+6}, v{s+7}, v{t0}", V(s + 6, 2) + V(t0), V(t0)))
        o.append(valu(f"v_max_f32 v{t0}, v{t0}, v{t1}", V(t0) + V(t1), V(t0)))
        o.append(valu(f"v_mov_b32 v{t1}, v{t0}", V(t0), V(t1)))
        o.append(valu(f"v_permlane32_swap_b32 v{t1}, v{t0}", V(t0) + V(t1), V(t0) + V(t1), kind="perm", cost=8, nogap=True)); o[-1].last = True
        o.append(valu(f"v_max_f32 v{t0}, v{t0}, v{t1}", V(t0) + V(t1), V(t0)))
        o.append(valu(f"v_mov_b32 v{t1}, v{t0}", V(t0), V(t1)))
        o.append(valu(f"v_permlane16_swap_b32 v{t1}, v{t0}", V(t0) + V(t1), V(t0) + V(t1), kind="perm", cost=8, nogap=True)); o[-1].last = True
        o.append(valu(f"v_max_f32 v{t0}, v{t0}, v{t1}", V(t0) + V(t1), V(t0)))
        o.append(valu(f"v_mul_f32 v{nm}, s{S_NC}, v{t0}", V(t0) + Sg(S_NC), V(nm)))
    def fma(r): return valu(f"v_fma_f32 v{s+r}, v{s+r}, s{S_C}, v{nm}", V(s + r) + V(nm) + Sg(S_C), V(s + r))
    def ex(r): return valu(f"v_exp_f32{'_e64' if cfg.e64 else ''} v{s+r}, v{s+r}", V(s + r), V(s + r), kind="trans")
    def cvt(h): return valu(f"v_cvt_pk_bf16_f32 v{p+h}, v{s+2*h}, v{s+2*h+1}", V(s + 2 * h, 2), V(p + h), minpos=cvt_min, nogap=True)
    o += [fma(0), fma(1), ex(0), ex(1), fma(2), fma(3), ex(2), ex(3), cvt(0), fma(4), ex(4), cvt(1), fma(5), ex(5),
          fma(6), fma(7), ex(6), ex(7), cvt(2), cvt(3)]
    o[-1].nogap = False
    return o

def KREADS(T, tagp):
    o = []
    for kk in range(4):
        for t in range(2):
            d = A_K + 32 * (T % 2) + 16 * t + 4 * kk
            o.append(Ins(f"ds_read_b128 {rs('a', d, 4)}, v{V_KA+kk} offset:{(T % 8) * 8192 + t * 4096}", "ds", V(V_KA + kk), A(d, 4), tag=f"K{tagp}"))
    return o
def VREADS(T, tagp):
    o = []
    for dt in range(8):
        for h in range(2):
            d = A_V + 32 * (T % 2) + 4 * dt + 2 * h
            o.append(Ins(f"ds_read_b64_tr_b16 {rs('a', d, 2)}, v{V_VA+dt} offset:{(T % 8) * 8192 + h * 4096}", "ds", V(V_VA + dt), A(d, 2), tag=f"V{tagp}"))
    return o
def DMA(TT, how, tagp):
    o = []
    if how == "inc": o.append(salu(f"s_add_u32 s{S_DOFF}, s{S_DOFF}, 8192", [S_DOFF], [S_DOFF]))
    else: o.append(salu(f"s_add_u32 s{S_DOFF}, s{S_KVNEXT}, s{S_WPART}", [S_KVNEXT, S_WPART], [S_DOFF]))
    o.append(salu(f"s_add_u32 m0, s{S_LDSB}, {(TT % 8) * 8192}", [S_LDSB], [("m0", 0)]))
    nt = cfg.kv_pol
    for p in range(4):
        o.append(Ins(f"buffer_load_dwordx4 v{V_DMA+p}, {rs('s', S_X, 4)}, s{S_DOFF} offen offset:{1024*p}{nt} lds", "dma",
                     V(V_DMA + p) + Sg(S_X, 4) + Sg(S_DOFF) + [("m0", 0)], [], tag=f"D{tagp}", nogap=(p == 0), cost=(14 if p == 0 else 9)))
    return o
def QDMA(n, stg=S_STG):
    g_, c2 = n // 4, (n // 2) % 2
    o = []
    if n == 0: o.append(salu(f"s_add_u32 s{S_TQ}, s{S_QNEXT}, s{S_WQ}", [S_QNEXT, S_WQ], [S_TQ]))
    elif c2 == 0: o.append(salu(f"s_add_u32 s{S_TQ}, s{S_TQ}, 4096", [S_TQ], [S_TQ]))
    o.append(salu(f"s_add_u32 m0, s{stg}, {1024*(n%8) - 128*c2}", [stg], [("m0", 0)]))
    nt = cfg.q_pol
    for h in range(2):
        o.append(Ins(f"buffer_load_dwordx4 v{V_QDMA+h}, {rs('s', S_Q, 4)}, s{S_TQ} offen offset:{1024*h+128*c2}{nt} lds", "dma",
                     V(V_QDMA + h) + Sg(S_Q, 4) + Sg(S_TQ) + [("m0", 0)], [], tag=f"QD{n//2}", nogap=(h == 0), cost=(14 if h == 0 else 9)))
    return o
def QREAD(qb, n, va=V_QA, inbody=False):
    g_, c2 = n // 4, (n // 2) % 2
    o = [wait(("vm", [f"QD{n//2}"]), key=(f"wQD{qb}_{n}" if inbody else None))]
    for k2 in range(2):
        d = A_Q + 64 * qb + 16 * g_ + 4 * (2 * c2 + k2)
        o.append(Ins(f"ds_read_b128 {rs('a', d, 4)}, v{va+k2} offset:{1024*(n%8)}", "ds", V(va + k2), A(d, 4), tag=f"Q{qb}{g_}"))
    return o
def EPI(g, sq, site=None, pol=None):
    l = V_L + 4 * g; r = V_RINV + 2 * g; to = S_TO + g
    o = [valu(f"v_rcp_f32 v{r}, v{l}", V(l), V(r), kind="trans"),
         valu(f"v_cmp_ngt_f32 {rs('s', S_BAD+2*g, 2)}, s{S_THR}, v{l}", V(l) + Sg(S_THR), Sg(S_BAD + 2 * g, 2)),
         salu(f"s_add_u32 s{to}, s{sq}, {4096*g}", [sq], [to])]
    nt = cfg.o_pol if pol is None else pol
    a0 = V_O + 32 * g
    if cfg.pk:
        M = [valu(f"v_pk_mul_f32 v[{a0+e}:{a0+e+1}], v[{a0+e}:{a0+e+1}], v[{r}:{r+1}] op_sel_hi:[1,0]", V(a0 + e, 2) + V(r), V(a0 + e, 2)) for e in range(0, 32, 2)]
        M[0].cost = 16; M[0].late = True
        for x in M[1:]: x.glue = True; x.late = True
    else:
        M = [valu(f"v_mul_f32 v{a0+e}, v{a0+e}, v{r}", V(a0 + e) + V(r), V(a0 + e)) for e in range(32)]
    C = [valu(f"v_cvt_pk_bf16_f32 v{a0+h}, v{a0+2*h}, v{a0+2*h+1}", V(a0 + 2 * h, 2), V(a0 + h)) for h in range(16)]
    W = [Ins(f"ds_write_b64 v{V_OW}, {rs('v', a0 + 2 * h, 2)} offset:{32*h}", "ds", V(V_OW) + V(a0 + 2 * h, 2), [], tag="OW", cost=12) for h in range(8)]
    for k_, x in enumerate(W):
        x.delay = cfg.dw_gap
        if cfg.dw_glue and k_ % cfg.dw_glue: x.glue = True
    ot = V_OT[4 * (g % 2):4 * (g % 2) + 4]; ok = "v"
    if cfg.st_tiles and g >= 2: ok = "a"; ot = [96 + 16 * (g - 2) + 4 * p for p in range(4)]
    RD = [Ins(f"ds_read_b128 {rs(ok, ot[p], 4)}, v{V_OR} offset:{1088*p}", "ds", V(V_OR), R(ok, ot[p], 4), tag=f"OR{g}") for p in range(4)]
    if cfg.rd_glue:
        for x in RD[1:]: x.glue = True
    ST = [Ins(f"buffer_store_dwordx4 {rs(ok, ot[p], 4)}, v{V_OOFF}, {rs('s', S_O, 4)}, s{to} offen offset:{1024*p}{nt}", "store",
              R(ok, ot[p], 4) + V(V_OOFF) + Sg(S_O, 4) + Sg(to), [], tag="ST", cost=16) for p in range(4)]
    if cfg.cond_wt and pol is None:
        lab = f"L_wt{g}"
        alt = "\n  ".join(x.text + cfg.o_pol_last for x in ST)
        ST[0].text = f"s_cmp_lt_u32 s{S_LOOP}, {cfg.cond_wt}\n  s_cbranch_scc0 {lab}a\n  {alt}\n  s_branch {lab}b\n{lab}a:\n  " + ST[0].text
        ST[3].text = ST[3].text + f"\n{lab}b:"
        ST[0].cost += 8; ST[0].rd += Sg(S_LOOP)
    for x in ST[1:]:
        if cfg.st_gap: x.delay = cfg.st_gap
        else: x.glue = True
    wt = wait(("lgkm", [f"OR{g}"])); wt.delay = 6
    ev = o + M + C; em = W + RD; es = [wt] + ST
    if cfg.direct_o:
        SW = []
        for p in range(4):
            a = a0 + 4 * p
            SW += [valu(f"v_permlane16_swap_b32 v{a}, v{a+2}", V(a) + V(a + 2), V(a) + V(a + 2), kind="perm", cost=8),
                   valu(f"v_permlane16_swap_b32 v{a+1}, v{a+3}", V(a + 1) + V(a + 3), V(a + 1) + V(a + 3), kind="perm", cost=8)]
        ST = [Ins(f"buffer_store_dwordx4 {rs('v', a0 + 4 * p, 4)}, v{V_OW}, {rs('s', S_O, 4)}, s{to} offen offset:{64*p}{nt}", "store",
                  V(a0 + 4 * p, 4) + V(V_OW) + Sg(S_O, 4) + Sg(to), [], tag="ST", cost=24) for p in range(4)]
        for x in ST[1:]: x.glue = True
        ST[0].nogap = True
        ev = o + M + C + SW; em = ST; es = [Ins("", "comment", cost=0)] * 5
    o = es = list(es)
    if site is not None:
        b = S_BAD
        o.append(salu(f"s_or_b64 s[{b}:{b+1}], s[{b}:{b+1}], s[{b+2}:{b+3}]", Sg(b, 4), Sg(b, 2)))
        o.append(salu(f"s_or_b64 s[{b+4}:{b+5}], s[{b+4}:{b+5}], s[{b+6}:{b+7}]", Sg(b + 4, 4), Sg(b + 4, 2)))
        o.append(salu(f"s_or_b64 s[{b}:{b+1}], s[{b}:{b+1}], s[{b+4}:{b+5}]\n  s_cbranch_scc1 L_slow{site}\nL_ret{site}:", Sg(b, 2) + Sg(b + 4, 2), Sg(b, 2), cost=8))
    return ev, em, es

def next_block_calc(pre_inc):
    o = []
    if pre_inc: o.append(salu(f"s_add_u32 s{S_INEXT}, s{S_INEXT}, 32", [S_INEXT], [S_INEXT]))
    o += [salu(f"s_mul_i32 s{S_T0}, s{S_INEXT}, 43691", [S_INEXT], [S_T0]),
          salu(f"s_lshr_b32 s{S_T0}, s{S_T0}, 17", [S_T0], [S_T0]),
          salu(f"s_lshl_b32 s{S_T1}, s{S_XCD}, 6", [S_XCD], [S_T1]),
          salu(f"s_add_u32 s{S_T0}, s{S_T0}, s{S_T1}", [S_T0, S_T1], [S_T0]),
          salu(f"s_lshl_b32 s{S_KVNEXT}, s{S_T0}, 17", [S_T0], [S_KVNEXT]),
          salu(f"s_mul_i32 s{S_T1}, s{S_XCD}, 192", [S_XCD], [S_T1]),
          salu(f"s_add_u32 s{S_T1}, s{S_T1}, s{S_INEXT}", [S_T1, S_INEXT], [S_T1]),
          salu(f"s_lshl_b32 s{S_QNEXT}, s{S_T1}, 16", [S_T1], [S_QNEXT]),
          salu(f"s_cmp_lt_u32 s{S_INEXT}, 192\n  s_cselect_b32 s{S_KVNEXT}, s{S_KVNEXT}, {OOB}\n  s_cselect_b32 s{S_QNEXT}, s{S_QNEXT}, {OOB}",
               [S_INEXT, S_KVNEXT, S_QNEXT], [S_KVNEXT, S_QNEXT], cost=12)]
    return o
def rotate():
    return [salu(f"s_mov_b32 s{S_QPREV}, s{S_QCUR}", [S_QCUR], [S_QPREV]), salu(f"s_mov_b32 s{S_KVPREV}, s{S_KVCUR}", [S_KVCUR], [S_KVPREV]),
            salu(f"s_mov_b32 s{S_QCUR}, s{S_QNEXT}", [S_QNEXT], [S_QCUR]), salu(f"s_mov_b32 s{S_KVCUR}, s{S_KVNEXT}", [S_KVNEXT], [S_KVCUR])]

DEAD = set()
def wait(*need, key=None):
    w = Ins("s_waitcnt ?", "wait", need=list(need)); w.tag = key
    if cfg.st_tiles: w.cntst = True
    if key is not None and key in DEAD: w.cost = 0; w.kind = "comment"; w.text = ""; w.need = None
    return w
def barrier(): return Ins("s_barrier", "barrier", cost=4)

G = 17
NVE = 51
def setmin(ops, m):
    for o in ops: o.minpos = max(o.minpos, m)
    return ops
def QCOPY(g_):
    return [valu(f"v_accvgpr_mov_b32 a{A_Q+16*g_+r}, a{A_QB+16*g_+r}", A(A_QB + 16 * g_ + r), A(A_Q + 16 * g_ + r)) for r in range(16)]
def sbar(*need, stamp=True):
    p = []
    if cfg.stamps and stamp: p.append(salu("s_memtime s[70:71]\n  s_memrealtime s[92:93]\n  v_mov_b32 v47, s72"))
    p += [wait(*need), barrier()]
    if cfg.stamps and stamp:
        p.append(valu("s_memtime s[72:73]\n  v_mov_b32 v46, s70\n  v_cmp_eq_u32 vcc, s74, v0\n  s_add_u32 s74, s74, 1\n  s_nop 0\n  v_cndmask_b32 v44, v44, v46, vcc\n  v_cndmask_b32 v45, v45, v47, vcc\n  v_mov_b32 v46, s92\n  v_cndmask_b32 v50, v50, v46, vcc", [], V(44, 2)))
    return p
def qread0(g_): return QREAD(0, 4 * g_, V_QA if g_ < 2 else V_QA2) + QREAD(0, 4 * g_ + 2, V_QA if g_ < 2 else V_QA2)
def build_prologue():
    bb = []; pre = {}; st = []; B = []
    for n in range(8):
        T, g = divmod(n, 4); T1, g1 = divmod(n + 1, 4); T0, g0 = divmod(n - 1, 4)
        base = len(bb); B.append(base)
        p = pre.setdefault(base, [])
        if n == 1: p += sbar(("vm", ["D1"]), ("lgkm", "all"))
        if n == 4: p += sbar(("vm", ["D2"]), ("lgkm", "all"), stamp=False)
        if g1 == 0: p.append(wait(("lgkm", [f"K{T1}"])))
        if T1 == 0: p.append(wait(("lgkm", [f"Q0{g1}"])))
        bb += QK(0, T1, g1)
        if n > 0:
            if g0 == 0: pre.setdefault(base + 8, []).append(wait(("lgkm", [f"V{T0}"])))
            bb += PV(T0, g0, T0 == 0)
    B.append(len(bb))
    for n in range(8):
        T, g = divmod(n, 4)
        st.append(Stream(f"SM{n}", SM(g, T == 0, B[n] - 1), (B[n - 1] + 12 if n else 0), B[n + 1] - 1))
    st.append(Stream("QR2", qread0(2), 4, B[1] - 1))
    st.append(Stream("QR3", qread0(3), B[1] + 8, B[2] - 3))
    for k, op in enumerate(KREADS(1, 1)): st.append(Stream(f"K1_{k}", [op], B[1] + 3 * k, B[1] + 3 * k + 4))
    for k, op in enumerate(VREADS(1, 1)): st.append(Stream(f"V1_{k}", [op], B[1] + (5 * k) // 2, B[1] + (5 * k) // 2 + 6))
    for k, op in enumerate(KREADS(2, 2)): st.append(Stream(f"K2_{k}", [op], B[4] + 5 * k, B[4] + 5 * k + 7))
    for k, op in enumerate(VREADS(2, 2)): st.append(Stream(f"V2_{k}", [op], B[5] - 1 + (5 * k) // 2, B[5] - 1 + (5 * k) // 2 + 6))
    d = []
    for TT, gi in ((3, 1), (4, 2), (5, 3), (6, 4), (7, 5), (8, 6)):
        x = DMA(TT, "inc", TT)
        for y in x[3:]: y.glue = True
        setmin(x, B[gi]); x[2].minpos = B[gi] + 3; x[2].maxpos = B[gi] + 10
        d += x
    st.append(Stream("D", d, B[1], B[8] - 1))
    st.append(Stream("NB", rotate() + next_block_calc(True), 0, B[4]))
    out, stats = schedule(bb, st, pre, lambda i: 12 if i < B[4] else 8)
    sb = sbar(("vm", ["D3", "D4"]), ("lgkm", "all"))
    k = [i_ for i_, x in enumerate(sb) if x.kind == "barrier"][0]
    return out + sb[:k] + [salu("s_branch L_entry")]

def build_body():
    bb = []; pre = {}; st = []
    NG = 64
    for n in range(NG):
        T, g = divmod(n, 4)
        n1 = (n + 1) % NG; T1, g1 = divmod(n1, 4)
        n0 = (n - 1) % NG; T0, g0 = divmod(n0, 4)
        base = G * n
        p = pre.setdefault(base, [])
        if n == 0: p += rotate()
        if g == 0 and T % 2 == 0:
            sb = sbar(("vm", [f"D{(T+1)%16}", f"D{(T+2)%16}"]), ("lgkm", "all"))
            if cfg.halfbar and T % 4 == 2:
                for x in sb:
                    if x.kind == "barrier": x.text = "s_nop 0"
            if T == 2:
                for x in sb:
                    if x.kind == "wait": x.cntst = True
                k = [i_ for i_, x in enumerate(sb) if x.kind == "barrier"][0]
                sb.insert(k, Ins("L_entry:", "label", cost=0))
            p += sb
        if g1 == 0: p.append(wait(("lgkm", [f"K{T1}"]), key=f"wK{T1}"))
        if T1 == 0 and g1 >= 2: p.append(wait(("lgkm", [f"Q0{g1}"]), key=f"wQ{T1}{g1}"))
        bb += QK(0, T1, g1)
        if g0 == 0: pre.setdefault(base + 8, []).append(wait(("lgkm", [f"V{T0}"]), key=f"wV{T0}"))
        bb += PV(T0, g0, T0 == 0)
        rel = max(0, base - G + 12) if n != 8 else base
        st.append(Stream(f"SM{n}", SM(g, T == 0, base - 1), rel, base + G - 1))
        if g == 0:
            Tn = (T + 1) % 16; t = T
            for k, op in enumerate(KREADS(Tn, Tn)): st.append(Stream(f"K{Tn}_{k}", [op], base + 5 * k, base + 5 * k + 7))
            for k, op in enumerate(VREADS(Tn, Tn)): st.append(Stream(f"V{Tn}_{k}", [op], base + G - 1 + (5 * k) // 2, base + G - 1 + (5 * k) // 2 + 6))
            TT = (T + 7) % 16
            d = DMA(TT, "next" if t == 9 else "inc", TT)
            for x in d[3:]: x.glue = True
            d[2].minpos = base + 3; d[2].maxpos = base + G
            if cfg.dma_seam:
                if t == 0: d[2].minpos = base + 1; d[2].maxpos = base + 2
                if t == 1: setmin(d, base + 3 * G); d[2].minpos = base + 3 * G + 2; d[2].maxpos = base + 4 * G - 2
            elif t == 0: d[2].maxpos = base + 3 * G
            if t in cfg.qd_tiles:
                qd = QDMA(2 * cfg.qd_tiles.index(t)); qd[-1].glue = True
                setmin(qd[-2:], base + 3 * G + 1)
                d += qd
            st.append(Stream(f"D{TT}", d, base, base + 4 * G - 1))
            if t == 0: st.append(Stream(f"NB{T}", next_block_calc(True), base, base + 3 * G))
            if t in cfg.qr_tiles: st.append(Stream(f"QR{T}", QREAD(1, 2 * cfg.qr_tiles.index(t), inbody=True), base + G, base + 3 * G - 2))
            if t == 15:
                st.append(Stream("QC0", QCOPY(0), base - G + 8, base + 3 * G - 3))
                st.append(Stream("QC1", QCOPY(1), base + 8, base + 4 * G - 1))
                st.append(Stream("QR2", QREAD(0, 8, inbody=True) + QREAD(0, 10, inbody=True), base + G + 8, base + 2 * G + 7))
                st.append(Stream("QR3", QREAD(0, 12, inbody=True) + QREAD(0, 14, inbody=True), base + 2 * G + 8, base + 3 * G + 1, prio=30))
        if T == 15 and g == 1:
            e0 = EPI(0, S_QCUR); e1 = EPI(1, S_QCUR)
            st.append(Stream("E_v0", e0[0], base + G + 5, base + 2 * G + 1))
            st.append(Stream("E_m0", e0[1], base + 2 * G + 2, base + 3 * G - 1, prio=30))
            st.append(Stream("E_v1", e1[0], base + 2 * G + 5, base + 3 * G - 1))
        if n == 0:
            e0 = EPI(0, S_QCUR); e1 = EPI(1, S_QCUR); e2 = EPI(2, S_QPREV); e3 = EPI(3, S_QPREV, site=0)
            st.append(Stream("E_v2", e2[0], base + 4, base + G + 8))
            st.append(Stream("E_v3", e3[0], base + G + 9, base + 2 * G + 14))
            e1[1][-1].maxpos = base + G + 8; e2[1][-1].maxpos = base + 3 * G + 5
            if cfg.st_tiles:
                chain = e1[1] + setmin(e2[1], base + G + 9) + setmin(e3[1], base + 2 * G + 15)
                chain[-1].maxpos = base + 4 * G + 5
                chain += e3[2][5:]
                st.append(Stream("E_m", chain, base, base + 5 * G, prio=10))
                for k, tt in enumerate(cfg.st_tiles):
                    e = (e0, e1, e2, e3)[k // 2][2]
                    pr = e[1 + 2 * (k % 2):3 + 2 * (k % 2)]; pr[0].glue = False; pr[1].glue = True
                    if k % 2 == 0: e[0].delay = 0; e[0].tag = f"wOR{k}"; pr = [wait(("lgkm", [f"OR{k//2}"]), key=f"wOR{k}")] + pr
                    pos = G * (4 * tt + cfg.st_grp)
                    pr[-2].maxpos = pos + 6
                    st.append(Stream(f"S{k}", pr, pos, pos + 8))
            else:
                chain = e1[1] + e0[2] + setmin(e2[1], base + G + 9) + e1[2] + setmin(e3[1], base + 2 * G + 15)
                chain[-1].maxpos = base + 4 * G + 5
                sg = max(cfg.st_gap, 2)
                for k, x in enumerate(e2[2][:5] + e3[2][:5]): x.maxpos = base + 4 * G + 12 + sg * k
                chain += e2[2] + e3[2]
                st.append(Stream("E_m", chain, base, base + 4 * G + 14 + max(cfg.st_gap, 2) * 10, prio=10))
    def tfn(i):
        n = i // G; T = (n // 4) % 16
        if T == 15 and i % (4 * G) >= 2 * G + 4: return cfg.seam_t
        if T == 0: return cfg.seam_t
        return 8
    return schedule(bb, st, pre, tfn)

def build_drain():
    bb = PV(15, 3, False)
    pre = {0: rotate()}
    e0 = EPI(0, S_QCUR, pol=cfg.o_pol_last); e1 = EPI(1, S_QCUR, pol=cfg.o_pol_last); e2 = EPI(2, S_QPREV, pol=cfg.o_pol_last); e3 = EPI(3, S_QPREV, site=1, pol=cfg.o_pol_last)
    seq = e0[2] + e1[1] + setmin(e2[0], 3) + e1[2] + e2[1] + setmin(e3[0], 8) + e2[2] + e3[1] + e3[2]
    for x in seq: x.delay = 0
    st = [Stream("E", seq, 0, 8)]
    out, stats = schedule(bb, st, pre, lambda i: 24)
    return out

def build_init():
    o = []
    def s(t, rd=(), wr=()): o.append(salu(t, rd, wr))
    def v(t, rd=(), wr=()): o.append(valu(t, rd, wr))
    if cfg.stamps: s("s_memrealtime s[94:95]")
    s("s_cmp_ge_u32 s2, 256\n  s_cbranch_scc1 L_end")
    s("s_load_dwordx8 s[4:11], s[0:1], 0", [], list(range(4, 12)))
    s("s_load_dwordx4 s[12:15], s[0:1], 32", [], list(range(12, 16)))
    v("v_lshrrev_b32 v1, 6, v0", V(0), V(1))
    v("v_and_b32 v0, 63, v0", V(0), V(0))
    v(f"v_readfirstlane_b32 s{S_WAVE}, v1", V(1), Sg(S_WAVE))
    v("v_and_b32 v36, 15, v0", V(0), V(36)); v("v_lshrrev_b32 v37, 4, v0", V(0), V(37)); v("v_lshrrev_b32 v38, 2, v0", V(0), V(38))
    s(f"s_lshr_b32 s{S_T0}, s{S_WAVE}, 1", [S_WAVE], [S_T0])
    s(f"s_and_b32 s{S_T1}, s{S_WAVE}, 1", [S_WAVE], [S_T1])
    s(f"s_lshl_b32 s{S_WPART}, s{S_T1}, 12", [S_T1], [S_WPART])
    s(f"s_lshl_b32 s{S_LDSB}, s{S_T0}, 16", [S_T0], [S_LDSB])
    s(f"s_add_u32 s{S_LDSB}, s{S_LDSB}, s{S_WPART}", [S_LDSB, S_WPART], [S_LDSB])
    s(f"s_lshr_b32 s{S_TQ}, 15, s{S_T0}", [S_T0], [S_TQ])
    for p in range(4):
        v(f"v_add_u32 v39, {4*p}, v37", V(37), V(39)); v(f"v_and_b32 v39, s{S_TQ}, v39", V(39) + Sg(S_TQ), V(39))
        v(f"v_lshlrev_b32 v39, s{S_T0}, v39", V(39) + Sg(S_T0), V(39)); v("v_xor_b32 v39, v39, v36", V(39) + V(36), V(39))
        v("v_lshlrev_b32 v39, 4, v39", V(39), V(39)); v(f"v_lshl_add_u32 v{V_DMA+p}, v37, 8, v39", V(37) + V(39), V(V_DMA + p))
    v("v_lshrrev_b32 v39, 3, v0", V(0), V(39)); v("v_and_b32 v40, 6, v39", V(39), V(40)); v("v_and_b32 v41, 7, v0", V(0), V(41))
    v("v_xor_b32 v40, v40, v41", V(40) + V(41), V(40)); v("v_lshlrev_b32 v40, 4, v40", V(40), V(40))
    v(f"v_lshl_add_u32 v{V_QDMA}, v39, 8, v40", V(39) + V(40), V(V_QDMA)); v(f"v_add_u32 v{V_QDMA+1}, 1024, v{V_QDMA}", V(V_QDMA), V(V_QDMA + 1))
    s(f"s_lshl_b32 s{S_WQ}, s{S_WAVE}, 14", [S_WAVE], [S_WQ])
    s(f"s_lshl_b32 s{S_STG}, s{S_WAVE}, 13", [S_WAVE], [S_STG]); s(f"s_add_u32 s{S_STG}, s{S_STG}, {STG}", [S_STG], [S_STG])
    s(f"s_lshl_b32 s{S_STG2}, s{S_T0}, 16", [S_T0], [S_STG2]); s(f"s_lshl_b32 s{S_T1}, s{S_WPART}, 1", [S_WPART], [S_T1])
    s(f"s_add_u32 s{S_STG2}, s{S_STG2}, s{S_T1}", [S_STG2, S_T1], [S_STG2]); s(f"s_add_u32 s{S_STG2}, s{S_STG2}, {6*8192}", [S_STG2], [S_STG2])
    s(f"s_and_b32 s{S_XCD}, s2, 7", [], [S_XCD]); s(f"s_lshr_b32 s{S_INEXT}, s2, 3", [], [S_INEXT])
    early = o; o = late = []
    for kk in range(4):
        v(f"v_or_b32 v39, {4*kk}, v37", V(37), V(39)); v("v_xor_b32 v39, v39, v36", V(39) + V(36), V(39))
        v("v_lshlrev_b32 v39, 4, v39", V(39), V(39)); v(f"v_lshl_add_u32 v{V_KA+kk}, v36, 8, v39", V(36) + V(39), V(V_KA + kk))
    v("v_and_b32 v40, 7, v38", V(38), V(40)); v("v_and_b32 v41, 3, v0", V(0), V(41)); v("v_lshlrev_b32 v41, 3, v41", V(41), V(41))
    v("v_lshl_add_u32 v41, v38, 8, v41", V(38) + V(41), V(41)); v("v_add_u32 v41, 0x10000, v41", V(41), V(41))
    for dt in range(8):
        v(f"v_xor_b32 v39, {dt}, v40", V(40), V(39)); v(f"v_lshl_add_u32 v{V_VA+dt}, v39, 5, v41", V(39) + V(41), V(V_VA + dt))
    v("v_and_b32 v40, 6, v36", V(36), V(40)); v("v_and_b32 v41, 7, v36", V(36), V(41)); v("v_lshrrev_b32 v42, 3, v36", V(36), V(42))
    v("v_lshlrev_b32 v41, 7, v41", V(41), V(41)); v("v_lshl_add_u32 v41, v42, 10, v41", V(42) + V(41), V(41))
    for k2 in range(2):
        v(f"v_or_b32 v39, {4*k2}, v37", V(37), V(39)); v("v_xor_b32 v39, v39, v40", V(39) + V(40), V(39))
        v("v_lshl_add_u32 v39, v39, 4, v41", V(39) + V(41), V(39))
        v(f"v_add_u32 v{V_QA+k2}, s{S_STG}, v39", V(39) + Sg(S_STG), V(V_QA + k2))
        v(f"v_add_u32 v{V_QA2+k2}, s{S_STG2}, v39", V(39) + Sg(S_STG2), V(V_QA2 + k2))
    v(f"v_lshlrev_b32 v39, 4, v0", V(0), V(39)); v(f"v_add_u32 v{V_OOFF}, s{S_WQ}, v39", V(39) + Sg(S_WQ), V(V_OOFF))
    v("v_mul_u32_u24 v39, 272, v36", V(36), V(39)); v("v_lshl_add_u32 v39, v37, 3, v39", V(37) + V(39), V(39))
    v(f"v_add_u32 v{V_OW}, s{S_STG}, v39", V(39) + Sg(S_STG), V(V_OW))
    if cfg.direct_o:
        v("v_and_b32 v39, 1, v37", V(37), V(39)); v("v_lshlrev_b32 v39, 5, v39", V(39), V(39)); v("v_lshrrev_b32 v40, 1, v37", V(37), V(40))
        v("v_lshl_add_u32 v39, v40, 4, v39", V(40) + V(39), V(39)); v("v_lshl_add_u32 v39, v36, 8, v39", V(36) + V(39), V(39))
        v(f"v_add_u32 v{V_OW}, s{S_WQ}, v39", V(39) + Sg(S_WQ), V(V_OW))
    v("v_mul_u32_u24 v39, 272, v37", V(37), V(39)); v("v_lshl_add_u32 v39, v36, 4, v39", V(36) + V(39), V(39))
    v(f"v_add_u32 v{V_OR}, s{S_STG}, v39", V(39) + Sg(S_STG), V(V_OR))
    v("v_and_b32 v39, 3, v0", V(0), V(39)); v("v_cmp_eq_u32 vcc, 0, v39", V(39), [("vcc", 0)]); v("v_mov_b32 v40, 0x3f803f80", [], V(40))
    v("v_mov_b32 v39, 0", [], V(39))
    for e in range(4): v(f"v_cndmask_b32 v{V_ONES+e}, v39, v40, vcc", V(39) + V(40) + [("vcc", 0)], V(V_ONES + e))
    for r in list(range(V_L, V_L + 16)) + list(range(V_P, V_P + 8)): v(f"v_mov_b32 v{r}, 0", [], V(r))
    s(f"s_mov_b32 s{S_C}, 0x{CSCALE:08x}", [], [S_C]); s(f"s_mov_b32 s{S_NC}, 0x{CSCALE | 0x80000000:08x}", [], [S_NC])
    s(f"s_mov_b32 s{S_THR}, 0x{f32(2.0 ** cfg.thr_log2):08x}", [], [S_THR])
    for r in range(S_BAD, S_BAD + 8): s(f"s_mov_b32 s{r}, 0", [], [r])
    for r in range(S_TO, S_TO + 4): s(f"s_mov_b32 s{r}, {OOB}", [], [r])
    s(f"s_mov_b32 s{S_QCUR}, {OOB}", [], [S_QCUR]); s(f"s_mov_b32 s{S_KVCUR}, {OOB}", [], [S_KVCUR])
    s(f"s_mov_b32 s{S_LOOP}, 5", [], [S_LOOP])
    if cfg.stamps:
        s("s_mov_b32 s74, 1\n  s_memtime s[72:73]\n  s_memrealtime s[76:77]\n v_mov_b32 v44, 0\n v_mov_b32 v45, 0\n v_mov_b32 v50, 0")
    o = early
    o += next_block_calc(False)
    s("s_waitcnt lgkmcnt(0)")
    if cfg.stamps: s("s_memrealtime s[96:97]")
    for srd, ptr, size in ((S_Q, 4, 0x6000000), (S_O, 10, 0x6000000), (S_K, 6, 0x4000000), (S_V, 8, 0x4000000), (S_W, 14, 402653184)):
        o = early if srd == S_Q else late
        s(f"s_mov_b32 s{srd}, s{ptr}", [ptr], [srd]); s(f"s_mov_b32 s{srd+1}, s{ptr+1}", [ptr + 1], [srd + 1])
        s(f"s_mov_b32 s{srd+2}, {size}", [], [srd + 2]); s(f"s_mov_b32 s{srd+3}, 0x00020000", [], [srd + 3])
    o = early
    s(f"s_cmp_ge_u32 s{S_WAVE}, 2\n  s_cselect_b32 s{S_X}, s8, s6\n  s_cselect_b32 s{S_X+1}, s9, s7", [S_WAVE, 6, 7, 8, 9], [S_X, S_X + 1])
    s(f"s_mov_b32 s{S_X+2}, 0x4000000", [], [S_X + 2]); s(f"s_mov_b32 s{S_X+3}, 0x00020000", [], [S_X + 3])
    def dma(TT, how):
        d = DMA(TT, how, TT); return d[:2] + [salu("s_nop 0")] + d[2:]
    def qdma(g_):
        r = []
        for n in (4 * g_, 4 * g_ + 2):
            d = QDMA(n, S_STG if g_ < 2 else S_STG2); r += d[:-2] + [salu("s_nop 0")] + d[-2:]
        return r
    def qread(g_): return QREAD(0, 4 * g_, V_QA if g_ < 2 else V_QA2) + QREAD(0, 4 * g_ + 2, V_QA if g_ < 2 else V_QA2)
    o += dma(0, "first") + qdma(0) + qdma(1) + qdma(2)
    if cfg.codepf:
        s("s_getpc_b64 s[84:85]\nL_pf:", [], [84, 85]); s(f"s_lshl_b32 s83, s{S_WAVE}, 13", [S_WAVE], [83])
        v("v_lshlrev_b32 v51, 6, v0", V(0), V(51)); v("v_add_u32 v51, s83, v51", V(51) + Sg(83), V(51))
        for k in range(2):
            if k: v("v_add_u32 v51, 0x1000, v51", V(51), V(51))
            v("v_min_u32 v18, L_end-L_pf-4, v51", V(51), V(18)); v("v_mov_b32 v55, s85", Sg(85), V(55))
            v("v_add_co_u32 v54, vcc, s84, v18", V(18) + Sg(84), V(54) + [("vcc", 0)])
            v("v_addc_co_u32 v55, vcc, 0, v55, vcc", V(55) + [("vcc", 0)], V(55) + [("vcc", 0)])
            o.append(Ins(f"global_load_dword v1, v[54:55], off", "vmem", V(54, 2), [], tag="PF"))
    o += late
    if cfg.stamps: s("s_memrealtime s[98:99]")
    o += [wait(("vm", ["D0"])), barrier()]
    if cfg.stamps: s("s_memrealtime s[100:101]\n  s_waitcnt lgkmcnt(0)\n  v_writelane_b32 v50, s94, 50\n  v_writelane_b32 v50, s96, 51\n  v_writelane_b32 v50, s98, 52\n  v_writelane_b32 v50, s100, 53")
    o += KREADS(0, 0) + dma(1, "inc") + qread0(0) + VREADS(0, 0) + qdma(3)
    o += [wait(("lgkm", ["K0", "Q00"]))]
    qk = QK(0, 0, 0)
    o += qk[:4] + qread0(1) + qk[4:] + dma(2, "inc")
    return o

def slow_stub():
    t = []
    for site in range(2):
        t.append(f"L_slow{site}:\n  s_branch L_ret{site}")
    return "\n".join(t)

def dataflow(trace):
    errs = []; stt = {}; cnt = {}
    inS = lambda r: r[0] == "v" and V_S <= r[1] < V_S + NS
    inP = lambda r: r[0] == "v" and V_P <= r[1] < V_P + 8
    inO = lambda r: r[0] == "v" and (V_O <= r[1] < V_O + 128 or V_L <= r[1] < V_L + 16)
    for x in trace:
        t = x.text
        if x.kind == "mfma":
            for r in x.wr:
                if inS(r):
                    if cnt.get(r, 4) == 4:
                        if stt.get(r, "c") != "c": errs.append(f"S overwritten before consumed {r} [{t}]")
                        cnt[r] = 1
                    else: cnt[r] += 1
                    stt[r] = "m"
                if inO(r):
                    if not x.srcc:
                        if stt.get(r, "done") != "done": errs.append(f"O overwritten before stored {r} [{t}]")
                        cnt[r] = 1
                    else: cnt[r] = cnt.get(r, 15) + 1
                    stt[r] = "acc"
            for r in x.ab:
                if inP(r):
                    if stt.get(r, "new") != "new": errs.append(f"P read when not new {r} [{t}]")
                    cnt[r] = cnt.get(r, 0) + 1
                    if cnt[r] == 9: stt[r] = "used"; cnt[r] = 0
        else:
            for r in x.rd:
                if inS(r) and cnt.get(r, 4) != 4: errs.append(f"S read while partial {r} [{t}]")
                if inS(r) and t.startswith("v_cvt"): stt[r] = "c"
                if inO(r) and stt.get(r) == "acc" and cnt.get(r) != 16: errs.append(f"O read early {r} cnt {cnt.get(r)} [{t}]")
            if x.kind == "store" and "offset:192" in t:
                for k in range(32): stt[("v", x.rd[0][1] - 12 + k)] = "done"
            if t.startswith("ds_write") and EPI_LAST_W in t:
                a0 = x.rd[1][1] - 14
                for k in range(32): stt[("v", a0 + k)] = "done"
            if t.startswith("v_cmp_ngt"):
                for k in range(4): stt[("v", x.rd[0][1] + k)] = "done"
            for r in x.wr:
                if inP(r) and t.startswith("v_cvt"):
                    if stt.get(r, "used") != "used": errs.append(f"P overwritten before used {r} [{t}]")
                    stt[r] = "new"; cnt[r] = 0
    return errs
def ldsflow(trace):
    import re
    errs = []
    vm = []; lg = []
    vis = {}
    rdst = {}
    m0 = None
    def region_of_read(x):
        t = x.text; off = int(re.search(r"offset:(\d+)", t).group(1)); a = x.rd[0][1]
        if V_KA <= a < V_KA + 4: return [("ring", off // 8192)]
        if V_VA <= a < V_VA + 8: return [("ring", off // 8192)]
        if a in (V_QA, V_QA + 1): return [("stg", off // 1024), ("stg", off // 1024 + 1)]
        if a in (V_QA2, V_QA2 + 1): return [("ring", 6), ("ring", 7), ("stg2", off // 1024), ("stg2", off // 1024 + 1)]
        return None
    for x in trace:
        t = x.text
        if x.kind == "salu" and " m0," in t:
            m = re.search(r"m0, s(\d+), (-?\d+)", t); m0 = (int(m.group(1)), int(m.group(2)))
        if x.kind == "dma":
            off = int(re.search(r"offset:(\d+)", t).group(1))
            if m0[0] == S_LDSB: reg = ("ring", m0[1] // 8192); shared = True
            elif m0[0] == S_STG: reg = ("stg", (m0[1] + off) // 1024); shared = False
            else: reg = ("stg2", (m0[1] + off) // 1024); shared = False
            st_ = rdst.get(reg, "free")
            if st_ == "pending" or (shared and st_ != "free"): errs.append(f"LDS WAR: DMA into {reg} while reads {st_} [{t}]")
            vis[reg] = "flight"; vm.append(reg)
        elif x.kind in ("vmem", "store"): vm.append(None)
        elif x.kind == "ds":
            regs = region_of_read(x) if t.startswith("ds_read") else None
            if regs:
                for reg in regs:
                    if reg[0] == "ring" and len(regs) > 1: rdst[reg] = "pending"; continue
                    need = "visible" if reg[0] == "ring" else "landed"
                    if vis.get(reg) != need and not (need == "landed" and vis.get(reg) == "visible"): errs.append(f"LDS RAW: read of {reg} state {vis.get(reg)} [{t}]")
                    rdst[reg] = "pending"
            if t.startswith("ds_write"):
                for k in range(5):
                    if vis.get(("stg", k)) == "flight": errs.append(f"O staging write while Q DMA in flight [{t}]")
            if t.startswith("ds_read_b128") and x.rd[0][1] == V_OR: regs = [("stg", k) for k in range(5)]; [rdst.__setitem__(r, "pending") for r in regs]
            lg.append(regs or [])
        elif x.kind == "wait":
            m = re.search(r"vmcnt\((\d+)\)", t)
            if m:
                N = int(m.group(1)); done = vm[:max(0, len(vm) - N)]; vm = vm[len(done):]
                for reg in done:
                    if reg is not None and reg not in vm: vis[reg] = "landed"
            m = re.search(r"lgkmcnt\((\d+)\)", t)
            if m:
                N = int(m.group(1)); done = lg[:max(0, len(lg) - N)]; lg = lg[len(done):]
                still = {r for l in lg for r in l}
                for l in done:
                    for reg in l:
                        if reg not in still: rdst[reg] = "retired"
        elif x.kind == "barrier":
            for reg, v_ in vis.items():
                if v_ == "landed": vis[reg] = "visible"
            for reg, v_ in rdst.items():
                if v_ == "retired": rdst[reg] = "free"
    return errs
EPI_LAST_W = "offset:224"
NS = 16
def main():
    tail = [salu(f"s_sub_u32 s{S_LOOP}, s{S_LOOP}, 1\n  s_cbranch_scc0 L_loop", [S_LOOP], [S_LOOP], cost=8)]
    for it in range(3):
        init = build_init()
        body, stats = build_body()
        drain = build_drain()
        init += build_prologue()
        ent = lambda bd: [k for k, x in enumerate(bd) if x.text == "L_entry:"][0]
        trace = init + body[ent(body):] + tail + (body + tail) * 5 + drain
        best = resolve_waits(trace)
        for l in (init, body, drain): apply_waits(l, best)
        dead = lambda x: (x.kind == "wait" and x.need is not None and x.text == "s_nop 0") or x.kind == "comment"
        nd = {x.tag for x in body if x.kind == "wait" and dead(x) and x.tag}
        if nd <= DEAD: break
        DEAD.update(nd)
    init = [x for x in init if not dead(x)]; body = [x for x in body if not dead(x)]; drain = [x for x in drain if not dead(x)]
    if cfg.abl:
        def drop(x):
            t = x.text
            return (('exp' in cfg.abl and t.startswith('v_exp')) or ('fma' in cfg.abl and t.startswith('v_fma')) or
                    ('ds' in cfg.abl and t.startswith('ds_read') and ' a[' in t) or ('dma' in cfg.abl and x.kind == 'dma') or
                    ('bar' in cfg.abl and x.kind == 'barrier') or ('cvt' in cfg.abl.split(',') and t.startswith('v_cvt') and int(t.split()[1][1:-1]) < 128) or
                    ('st' in cfg.abl.split(',') and x.kind == 'store') or ('dw' in cfg.abl and t.startswith('ds_write')) or ('rd' in cfg.abl and t.startswith('ds_read_b128 v')) or ('pk' in cfg.abl and t.startswith('v_pk_mul')) or ('perm' in cfg.abl and 'permlane' in t) or ('qc' in cfg.abl and 'accvgpr_mov' in t) or ('ecvt' in cfg.abl and t.startswith('v_cvt') and int(t.split()[1][1:-1]) >= 128) or ('wt' in cfg.abl and x.kind == 'wait' and x.need and x.need[0][1] in (['OR0'], ['OR1'], ['OR2'], ['OR3'])) or ('ones' in cfg.abl and x.kind == 'mfma' and 'v[32:35]' in t) or
                    ('epi' in cfg.abl and (t.startswith('v_mul_f32 v1') or t.startswith('v_mul_f32 v2') or t.startswith('ds_write') or t.startswith('ds_read_b128 v') or (t.startswith('v_cvt') and int(t.split()[1][1:-1]) >= 128))))
        body = [x for x in body if not drop(x)]
    init, n1 = fix_hazards(init); body, n2 = fix_hazards(body); drain, n3 = fix_hazards(drain)
    print("nops inserted", n1, n2, n3, file=sys.stderr)
    trace = init + body[ent(body):] + tail + (body + tail) * 5 + drain
    errs = check(trace)
    errs += dataflow(trace) + ldsflow(trace)
    written = {("s", 0), ("s", 1), ("s", 2), ("v", 0)}
    for x in trace:
        for r in x.rd:
            if r[0] in ("s", "m0") and r not in written: errs.append(f"uninitialised {r} read by [{x.text}]")
            if r[0] == "v" and r not in written and x.kind in ("dma", "vmem", "ds") : errs.append(f"uninitialised {r} read by [{x.text}]") if not x.text.startswith("ds_write") else None
        written.update(x.wr)
    seen = set()
    for e in errs:
        if e not in seen: print("ERR", e, file=sys.stderr); seen.add(e)
    tot = sum(x.cost for x in body)
    under = sum(1 for f in stats[1:] if f < 8)
    est = sum(8 + max(8, f) for f in stats[1:])
    seg = [sum(8 + max(8, f) for f in stats[1 + 136 * k:1 + 136 * (k + 1)]) for k in range(8)]
    print("est per 2 tiles", seg, file=sys.stderr)
    print(f"body instrs {len(body)} issue-cycles {tot} est cycles {est} underfilled gaps {under}", file=sys.stderr)
    hdr = open("header.txt").read()
    lines = [hdr, '.amdgcn_target "amdgcn-amd-amdhsa--gfx950"', ".text", f".globl {NAME}", ".p2align 8", f".type {NAME},@function", f"{NAME}:"]
    lines += ["  " + x.text for x in init]
    lines += [".p2align 6"] + ["  s_nop 0"] * cfg.pad + ["L_loop:"] + ["  " + x.text for x in body + tail]
    lines += ["  " + x.text for x in drain]
    if cfg.stamps:
        lines += ["""  s_waitcnt vmcnt(0) lgkmcnt(0)
  s_memtime s[70:71]
  s_memrealtime s[78:79]
  s_waitcnt lgkmcnt(0)
  v_writelane_b32 v44, s70, 49
  v_writelane_b32 v45, s72, 49
  v_writelane_b32 v50, s78, 54
  s_sub_u32 s78, s78, s76
  v_writelane_b32 v44, s78, 0
  v_writelane_b32 v45, s76, 0
  s_lshl_b32 s75, s2, 2
  s_add_u32 s75, s75, s%d
  s_lshl_b32 s75, s75, 9
  v_lshlrev_b32 v46, 3, v0
  buffer_store_dwordx2 v[44:45], v46, s[%d:%d], s75 offen
  s_add_u32 s94, s75, 0x100000
  v_lshlrev_b32 v46, 2, v0
  buffer_store_dword v50, v46, s[36:39], s94 offen
  s_cmp_lg_u32 s75, 0
  s_cbranch_scc1 L_end
  s_mov_b32 s84, s12
  s_mov_b32 s85, s13
  s_mov_b32 s86, 256
  s_mov_b32 s87, 0x00020000
  v_readlane_b32 s75, v45, 1
  v_add_u32 v46, 2, v0
  v_mul_u32_u24 v47, 43691, v46
  v_lshrrev_b32 v47, 17, v47
  v_mul_u32_u24 v48, 3, v47
  v_sub_u32 v48, v46, v48
  v_subrev_u32 v47, 1, v47
  v_subrev_u32 v49, s75, v44
  v_cmp_eq_u32 vcc, 0, v48
  v_mov_b32 v50, 1000
  v_cndmask_b32 v47, v50, v47, vcc
  v_cmp_lt_u32 vcc, 40, v0
  s_nop 1
  v_cndmask_b32 v47, v47, v50, vcc
  v_writelane_b32 v47, 14, 0
  v_writelane_b32 v47, 15, 49
  v_readlane_b32 s75, v44, 0
  s_nop 3
  v_writelane_b32 v49, s75, 0
  v_lshlrev_b32 v47, 2, v47
  buffer_store_dword v49, v47, s[84:87], 0 offen""" % (S_WAVE, S_W, S_W + 3)]
    lines += ["L_end:", "  s_endpgm"]
    if cfg.slow:
        import slow
        lines.append(slow.emit(globals()))
    else: lines.append(slow_stub())
    lines += ['.section .rodata,"a"', ".p2align 6", f".amdhsa_kernel {NAME}", "  .amdhsa_next_free_vgpr 512", "  .amdhsa_next_free_sgpr 102",
              "  .amdhsa_accum_offset 256", "  .amdhsa_group_segment_fixed_size 0", "  .amdhsa_kernarg_size 48", "  .amdhsa_user_sgpr_count 2",
              "  .amdhsa_user_sgpr_kernarg_segment_ptr 1", "  .amdhsa_system_sgpr_workgroup_id_x 1", ".end_amdhsa_kernel"]
    open(sys.argv[1], "w").write("\n".join(lines) + "\n")
    if errs and not cfg.abl: sys.exit(1)
main()
```

```python
import sys, math, struct
from asmlib import *

class Cfg:
    nt_q = False; nt_kv = False; nt_o = False
    thr_log2 = 24
    slow = True
    stamps = False
    seam_t = 36
    abl = ''
    pk = True
    burst8 = False
    o_pol = ' sc0 sc1'
    o_pol_last = ' sc0 sc1'
    cond_wt = 0
    codepf = False
    st_tiles = [0, 1, 2, 3, 4, 13, 14, 15]
    st_grp = 1
    qk_order = 'chain2'
    halfbar = False
    dw_glue = 0
    rd_glue = True
    pad = 0
    e64 = False
    dma_seam = True
    direct_o = False
    kv_pol = ''
    q_pol = ' nt'
    qd_tiles = [5, 6, 7, 8, 9, 10, 11, 12]
    qr_tiles = [8, 9, 10, 11]
    dw_gap = 1
    st_gap = 0
cfg = Cfg()
for a in sys.argv[2:]:
    k, v = a.split("="); setattr(cfg, k, eval(v))

NAME = "standalone__mha_softmax__near_ridge_kernel"
def f32(x): return struct.unpack("<I", struct.pack("<f", x))[0]
CSCALE = f32(128 ** -0.5 * math.log2(math.e))

V_KA = 2
V_VA = 6
V_DMA = 14
V_QOFF = 18; V_OOFF = 19
V_NEGM = 20
V_RINV = 24
V_T = 60
V_OT = (80, 84, 88, 92, 120, 124, 36, 40)
V_ONES = 32
V_QDMA = 48
V_QA = 52
V_OW = 56; V_OR = 57
V_QA2 = 58
V_L = 64
V_S = 96
V_P = 112
V_O = 128
A_Q = 0; A_QB = 64; A_K = 128; A_V = 192
S_Q, S_X, S_O, S_K, S_V, S_W = 16, 20, 24, 28, 32, 36
S_C, S_NC, S_THR, S_WAVE, S_LDSB, S_DOFF, S_INEXT, S_XCD = 40, 41, 42, 43, 44, 45, 46, 47
S_QNEXT, S_KVNEXT, S_QCUR, S_KVCUR, S_QPREV, S_KVPREV = 48, 49, 50, 51, 52, 53
S_BAD = 54
S_LOOP, S_RET, S_WPART, S_T0, S_T1, S_TQ, S_TO = 62, 63, 64, 65, 66, 67, 88
S_STG, S_WQ, S_STG2 = 80, 81, 82
STG = 131072
OOB = 0x40000000

def salu(t, rd=(), wr=(), **k): return Ins(t, "salu", [("s", x) if isinstance(x, int) else x for x in rd], [("s", x) if isinstance(x, int) else x for x in wr], **k)
def valu(t, rd=(), wr=(), kind="valu", **k): return Ins(t, kind, rd, wr, **k)
def V(n, c=1): return R("v", n, c)
def A(n, c=1): return R("a", n, c)
def Sg(n, c=1): return R("s", n, c)

def mfma(d, a, b, c):
    ct = "0" if c is None else rs("v", c, 4)
    t = f"v_mfma_f32_16x16x32_bf16 {rs('v', d, 4)}, {rs(a[0], a[1], 4)}, {rs(b[0], b[1], 4)}, {ct}"
    ab = R(a[0], a[1], 4) + R(b[0], b[1], 4)
    cc = [] if c is None else V(c, 4)
    return Ins(t, "mfma", ab + cc, V(d, 4), srcc=cc, ab=ab)

def QK(qb, T, g):
    out = []
    order = {"alt": [(t, kk) for kk in range(4) for t in range(2)], "chain": [(t, kk) for t in range(2) for kk in range(4)],
             "chain2": [(0, 0), (0, 1), (0, 2), (0, 3), (1, 3), (1, 2), (1, 1), (1, 0)],
             "snake": [(0, 0), (1, 0), (1, 1), (0, 1), (0, 2), (1, 2), (1, 3), (0, 3)]}[cfg.qk_order]
    seen = set()
    for t, kk in order:
        if True:
            d = V_S + 8 * (g % 2) + 4 * t; firstc = t not in seen; seen.add(t)
            out.append(mfma(d, ("a", A_K + 32 * (T % 2) + 16 * t + 4 * kk), ("a", A_Q + 64 * qb + 16 * g + 4 * kk), None if firstc else d))
    return out
def PV(T, g, first):
    out = []
    p = ("v", V_P + 4 * (g % 2))
    for dt in range(8):
        d = V_O + 32 * g + 4 * dt
        out.append(mfma(d, ("a", A_V + 32 * (T % 2) + 4 * dt), p, None if first else d))
    d = V_L + 4 * g
    out.append(mfma(d, ("v", V_ONES), p, None if first else d))
    return out

def SM(g, first, cvt_min):
    s = V_S + 8 * (g % 2); p = V_P + 4 * (g % 2); nm = V_NEGM + g
    o = []
    if first:
        t0, t1 = V_T + 2 * (g % 2), V_T + 2 * (g % 2) + 1
        o.append(valu(f"v_max3_f32 v{t0}, v{s}, v{s+1}, v{s+2}", V(s, 3), V(t0)))
        o.append(valu(f"v_max3_f32 v{t1}, v{s+3}, v{s+4}, v{s+5}", V(s + 3, 3), V(t1)))
        o.append(valu(f"v_max3_f32 v{t0}, v{s+6}, v{s+7}, v{t0}", V(s + 6, 2) + V(t0), V(t0)))
        o.append(valu(f"v_max_f32 v{t0}, v{t0}, v{t1}", V(t0) + V(t1), V(t0)))
        o.append(valu(f"v_mov_b32 v{t1}, v{t0}", V(t0), V(t1)))
        o.append(valu(f"v_permlane32_swap_b32 v{t1}, v{t0}", V(t0) + V(t1), V(t0) + V(t1), kind="perm", cost=8, nogap=True)); o[-1].last = True
        o.append(valu(f"v_max_f32 v{t0}, v{t0}, v{t1}", V(t0) + V(t1), V(t0)))
        o.append(valu(f"v_mov_b32 v{t1}, v{t0}", V(t0), V(t1)))
        o.append(valu(f"v_permlane16_swap_b32 v{t1}, v{t0}", V(t0) + V(t1), V(t0) + V(t1), kind="perm", cost=8, nogap=True)); o[-1].last = True
        o.append(valu(f"v_max_f32 v{t0}, v{t0}, v{t1}", V(t0) + V(t1), V(t0)))
        o.append(valu(f"v_mul_f32 v{nm}, s{S_NC}, v{t0}", V(t0) + Sg(S_NC), V(nm)))
    def fma(r): return valu(f"v_fma_f32 v{s+r}, v{s+r}, s{S_C}, v{nm}", V(s + r) + V(nm) + Sg(S_C), V(s + r))
    def ex(r): return valu(f"v_exp_f32{'_e64' if cfg.e64 else ''} v{s+r}, v{s+r}", V(s + r), V(s + r), kind="trans")
    def cvt(h): return valu(f"v_cvt_pk_bf16_f32 v{p+h}, v{s+2*h}, v{s+2*h+1}", V(s + 2 * h, 2), V(p + h), minpos=cvt_min, nogap=True)
    o += [fma(0), fma(1), ex(0), ex(1), fma(2), fma(3), ex(2), ex(3), cvt(0), fma(4), ex(4), cvt(1), fma(5), ex(5),
          fma(6), fma(7), ex(6), ex(7), cvt(2), cvt(3)]
    o[-1].nogap = False
    return o

def KREADS(T, tagp):
    o = []
    for kk in range(4):
        for t in range(2):
            d = A_K + 32 * (T % 2) + 16 * t + 4 * kk
            o.append(Ins(f"ds_read_b128 {rs('a', d, 4)}, v{V_KA+kk} offset:{(T % 8) * 8192 + t * 4096}", "ds", V(V_KA + kk), A(d, 4), tag=f"K{tagp}"))
    return o
def VREADS(T, tagp):
    o = []
    for dt in range(8):
        for h in range(2):
            d = A_V + 32 * (T % 2) + 4 * dt + 2 * h
            o.append(Ins(f"ds_read_b64_tr_b16 {rs('a', d, 2)}, v{V_VA+dt} offset:{(T % 8) * 8192 + h * 4096}", "ds", V(V_VA + dt), A(d, 2), tag=f"V{tagp}"))
    return o
def DMA(TT, how, tagp):
    o = []
    if how == "inc": o.append(salu(f"s_add_u32 s{S_DOFF}, s{S_DOFF}, 8192", [S_DOFF], [S_DOFF]))
    else: o.append(salu(f"s_add_u32 s{S_DOFF}, s{S_KVNEXT}, s{S_WPART}", [S_KVNEXT, S_WPART], [S_DOFF]))
    o.append(salu(f"s_add_u32 m0, s{S_LDSB}, {(TT % 8) * 8192}", [S_LDSB], [("m0", 0)]))
    nt = cfg.kv_pol
    for p in range(4):
        o.append(Ins(f"buffer_load_dwordx4 v{V_DMA+p}, {rs('s', S_X, 4)}, s{S_DOFF} offen offset:{1024*p}{nt} lds", "dma",
                     V(V_DMA + p) + Sg(S_X, 4) + Sg(S_DOFF) + [("m0", 0)], [], tag=f"D{tagp}", nogap=(p == 0), cost=(14 if p == 0 else 9)))
    return o
def QDMA(n, stg=S_STG):
    g_, c2 = n // 4, (n // 2) % 2
    o = []
    if n == 0: o.append(salu(f"s_add_u32 s{S_TQ}, s{S_QNEXT}, s{S_WQ}", [S_QNEXT, S_WQ], [S_TQ]))
    elif c2 == 0: o.append(salu(f"s_add_u32 s{S_TQ}, s{S_TQ}, 4096", [S_TQ], [S_TQ]))
    o.append(salu(f"s_add_u32 m0, s{stg}, {1024*(n%8) - 128*c2}", [stg], [("m0", 0)]))
    nt = cfg.q_pol
    for h in range(2):
        o.append(Ins(f"buffer_load_dwordx4 v{V_QDMA+h}, {rs('s', S_Q, 4)}, s{S_TQ} offen offset:{1024*h+128*c2}{nt} lds", "dma",
                     V(V_QDMA + h) + Sg(S_Q, 4) + Sg(S_TQ) + [("m0", 0)], [], tag=f"QD{n//2}", nogap=(h == 0), cost=(14 if h == 0 else 9)))
    return o
def QREAD(qb, n, va=V_QA, inbody=False):
    g_, c2 = n // 4, (n // 2) % 2
    o = [wait(("vm", [f"QD{n//2}"]), key=(f"wQD{qb}_{n}" if inbody else None))]
    for k2 in range(2):
        d = A_Q + 64 * qb + 16 * g_ + 4 * (2 * c2 + k2)
        o.append(Ins(f"ds_read_b128 {rs('a', d, 4)}, v{va+k2} offset:{1024*(n%8)}", "ds", V(va + k2), A(d, 4), tag=f"Q{qb}{g_}"))
    return o
def EPI(g, sq, site=None, pol=None):
    l = V_L + 4 * g; r = V_RINV + 2 * g; to = S_TO + g
    o = [valu(f"v_rcp_f32 v{r}, v{l}", V(l), V(r), kind="trans"),
         valu(f"v_cmp_ngt_f32 {rs('s', S_BAD+2*g, 2)}, s{S_THR}, v{l}", V(l) + Sg(S_THR), Sg(S_BAD + 2 * g, 2)),
         salu(f"s_add_u32 s{to}, s{sq}, {4096*g}", [sq], [to])]
    nt = cfg.o_pol if pol is None else pol
    a0 = V_O + 32 * g
    if cfg.pk:
        M = [valu(f"v_pk_mul_f32 v[{a0+e}:{a0+e+1}], v[{a0+e}:{a0+e+1}], v[{r}:{r+1}] op_sel_hi:[1,0]", V(a0 + e, 2) + V(r), V(a0 + e, 2)) for e in range(0, 32, 2)]
        M[0].cost = 16; M[0].late = True
        for x in M[1:]: x.glue = True; x.late = True
    else:
        M = [valu(f"v_mul_f32 v{a0+e}, v{a0+e}, v{r}", V(a0 + e) + V(r), V(a0 + e)) for e in range(32)]
    C = [valu(f"v_cvt_pk_bf16_f32 v{a0+h}, v{a0+2*h}, v{a0+2*h+1}", V(a0 + 2 * h, 2), V(a0 + h)) for h in range(16)]
    W = [Ins(f"ds_write_b64 v{V_OW}, {rs('v', a0 + 2 * h, 2)} offset:{32*h}", "ds", V(V_OW) + V(a0 + 2 * h, 2), [], tag="OW", cost=12) for h in range(8)]
    for k_, x in enumerate(W):
        x.delay = cfg.dw_gap
        if cfg.dw_glue and k_ % cfg.dw_glue: x.glue = True
    ot = V_OT[4 * (g % 2):4 * (g % 2) + 4]; ok = "v"
    if cfg.st_tiles and g >= 2: ok = "a"; ot = [96 + 16 * (g - 2) + 4 * p for p in range(4)]
    RD = [Ins(f"ds_read_b128 {rs(ok, ot[p], 4)}, v{V_OR} offset:{1088*p}", "ds", V(V_OR), R(ok, ot[p], 4), tag=f"OR{g}") for p in range(4)]
    if cfg.rd_glue:
        for x in RD[1:]: x.glue = True
    ST = [Ins(f"buffer_store_dwordx4 {rs(ok, ot[p], 4)}, v{V_OOFF}, {rs('s', S_O, 4)}, s{to} offen offset:{1024*p}{nt}", "store",
              R(ok, ot[p], 4) + V(V_OOFF) + Sg(S_O, 4) + Sg(to), [], tag="ST", cost=16) for p in range(4)]
    if cfg.cond_wt and pol is None:
        lab = f"L_wt{g}"
        alt = "\n  ".join(x.text + cfg.o_pol_last for x in ST)
        ST[0].text = f"s_cmp_lt_u32 s{S_LOOP}, {cfg.cond_wt}\n  s_cbranch_scc0 {lab}a\n  {alt}\n  s_branch {lab}b\n{lab}a:\n  " + ST[0].text
        ST[3].text = ST[3].text + f"\n{lab}b:"
        ST[0].cost += 8; ST[0].rd += Sg(S_LOOP)
    for x in ST[1:]:
        if cfg.st_gap: x.delay = cfg.st_gap
        else: x.glue = True
    wt = wait(("lgkm", [f"OR{g}"])); wt.delay = 6
    ev = o + M + C; em = W + RD; es = [wt] + ST
    if cfg.direct_o:
        SW = []
        for p in range(4):
            a = a0 + 4 * p
            SW += [valu(f"v_permlane16_swap_b32 v{a}, v{a+2}", V(a) + V(a + 2), V(a) + V(a + 2), kind="perm", cost=8),
                   valu(f"v_permlane16_swap_b32 v{a+1}, v{a+3}", V(a + 1) + V(a + 3), V(a + 1) + V(a + 3), kind="perm", cost=8)]
        ST = [Ins(f"buffer_store_dwordx4 {rs('v', a0 + 4 * p, 4)}, v{V_OW}, {rs('s', S_O, 4)}, s{to} offen offset:{64*p}{nt}", "store",
                  V(a0 + 4 * p, 4) + V(V_OW) + Sg(S_O, 4) + Sg(to), [], tag="ST", cost=24) for p in range(4)]
        for x in ST[1:]: x.glue = True
        ST[0].nogap = True
        ev = o + M + C + SW; em = ST; es = [Ins("", "comment", cost=0)] * 5
    o = es = list(es)
    if site is not None:
        b = S_BAD
        o.append(salu(f"s_or_b64 s[{b}:{b+1}], s[{b}:{b+1}], s[{b+2}:{b+3}]", Sg(b, 4), Sg(b, 2)))
        o.append(salu(f"s_or_b64 s[{b+4}:{b+5}], s[{b+4}:{b+5}], s[{b+6}:{b+7}]", Sg(b + 4, 4), Sg(b + 4, 2)))
        o.append(salu(f"s_or_b64 s[{b}:{b+1}], s[{b}:{b+1}], s[{b+4}:{b+5}]\n  s_cbranch_scc1 L_slow{site}\nL_ret{site}:", Sg(b, 2) + Sg(b + 4, 2), Sg(b, 2), cost=8))
    return ev, em, es

def next_block_calc(pre_inc):
    o = []
    if pre_inc: o.append(salu(f"s_add_u32 s{S_INEXT}, s{S_INEXT}, 32", [S_INEXT], [S_INEXT]))
    o += [salu(f"s_mul_i32 s{S_T0}, s{S_INEXT}, 43691", [S_INEXT], [S_T0]),
          salu(f"s_lshr_b32 s{S_T0}, s{S_T0}, 17", [S_T0], [S_T0]),
          salu(f"s_lshl_b32 s{S_T1}, s{S_XCD}, 6", [S_XCD], [S_T1]),
          salu(f"s_add_u32 s{S_T0}, s{S_T0}, s{S_T1}", [S_T0, S_T1], [S_T0]),
          salu(f"s_lshl_b32 s{S_KVNEXT}, s{S_T0}, 17", [S_T0], [S_KVNEXT]),
          salu(f"s_mul_i32 s{S_T1}, s{S_XCD}, 192", [S_XCD], [S_T1]),
          salu(f"s_add_u32 s{S_T1}, s{S_T1}, s{S_INEXT}", [S_T1, S_INEXT], [S_T1]),
          salu(f"s_lshl_b32 s{S_QNEXT}, s{S_T1}, 16", [S_T1], [S_QNEXT]),
          salu(f"s_cmp_lt_u32 s{S_INEXT}, 192\n  s_cselect_b32 s{S_KVNEXT}, s{S_KVNEXT}, {OOB}\n  s_cselect_b32 s{S_QNEXT}, s{S_QNEXT}, {OOB}",
               [S_INEXT, S_KVNEXT, S_QNEXT], [S_KVNEXT, S_QNEXT], cost=12)]
    return o
def rotate():
    return [salu(f"s_mov_b32 s{S_QPREV}, s{S_QCUR}", [S_QCUR], [S_QPREV]), salu(f"s_mov_b32 s{S_KVPREV}, s{S_KVCUR}", [S_KVCUR], [S_KVPREV]),
            salu(f"s_mov_b32 s{S_QCUR}, s{S_QNEXT}", [S_QNEXT], [S_QCUR]), salu(f"s_mov_b32 s{S_KVCUR}, s{S_KVNEXT}", [S_KVNEXT], [S_KVCUR])]

DEAD = set()
def wait(*need, key=None):
    w = Ins("s_waitcnt ?", "wait", need=list(need)); w.tag = key
    if cfg.st_tiles: w.cntst = True
    if key is not None and key in DEAD: w.cost = 0; w.kind = "comment"; w.text = ""; w.need = None
    return w
def barrier(): return Ins("s_barrier", "barrier", cost=4)

G = 17
NVE = 51
def setmin(ops, m):
    for o in ops: o.minpos = max(o.minpos, m)
    return ops
def QCOPY(g_):
    return [valu(f"v_accvgpr_mov_b32 a{A_Q+16*g_+r}, a{A_QB+16*g_+r}", A(A_QB + 16 * g_ + r), A(A_Q + 16 * g_ + r)) for r in range(16)]
def sbar(*need, stamp=True):
    p = []
    if cfg.stamps and stamp: p.append(salu("s_memtime s[70:71]\n  s_memrealtime s[92:93]\n  v_mov_b32 v47, s72"))
    p += [wait(*need), barrier()]
    if cfg.stamps and stamp:
        p.append(valu("s_memtime s[72:73]\n  v_mov_b32 v46, s70\n  v_cmp_eq_u32 vcc, s74, v0\n  s_add_u32 s74, s74, 1\n  s_nop 0\n  v_cndmask_b32 v44, v44, v46, vcc\n  v_cndmask_b32 v45, v45, v47, vcc\n  v_mov_b32 v46, s92\n  v_cndmask_b32 v50, v50, v46, vcc", [], V(44, 2)))
    return p
def qread0(g_): return QREAD(0, 4 * g_, V_QA if g_ < 2 else V_QA2) + QREAD(0, 4 * g_ + 2, V_QA if g_ < 2 else V_QA2)
def build_prologue():
    bb = []; pre = {}; st = []; B = []
    for n in range(8):
        T, g = divmod(n, 4); T1, g1 = divmod(n + 1, 4); T0, g0 = divmod(n - 1, 4)
        base = len(bb); B.append(base)
        p = pre.setdefault(base, [])
        if n == 1: p += sbar(("vm", ["D1"]), ("lgkm", "all"))
        if n == 4: p += sbar(("vm", ["D2"]), ("lgkm", "all"), stamp=False)
        if g1 == 0: p.append(wait(("lgkm", [f"K{T1}"])))
        if T1 == 0: p.append(wait(("lgkm", [f"Q0{g1}"])))
        bb += QK(0, T1, g1)
        if n > 0:
            if g0 == 0: pre.setdefault(base + 8, []).append(wait(("lgkm", [f"V{T0}"])))
            bb += PV(T0, g0, T0 == 0)
    B.append(len(bb))
    for n in range(8):
        T, g = divmod(n, 4)
        st.append(Stream(f"SM{n}", SM(g, T == 0, B[n] - 1), (B[n - 1] + 12 if n else 0), B[n + 1] - 1))
    st.append(Stream("QR2", qread0(2), 4, B[1] - 1))
    st.append(Stream("QR3", qread0(3), B[1] + 8, B[2] - 3))
    for k, op in enumerate(KREADS(1, 1)): st.append(Stream(f"K1_{k}", [op], B[1] + 3 * k, B[1] + 3 * k + 4))
    for k, op in enumerate(VREADS(1, 1)): st.append(Stream(f"V1_{k}", [op], B[1] + (5 * k) // 2, B[1] + (5 * k) // 2 + 6))
    for k, op in enumerate(KREADS(2, 2)): st.append(Stream(f"K2_{k}", [op], B[4] + 5 * k, B[4] + 5 * k + 7))
    for k, op in enumerate(VREADS(2, 2)): st.append(Stream(f"V2_{k}", [op], B[5] - 1 + (5 * k) // 2, B[5] - 1 + (5 * k) // 2 + 6))
    d = []
    for TT, gi in ((3, 1), (4, 2), (5, 3), (6, 4), (7, 5), (8, 6)):
        x = DMA(TT, "inc", TT)
        for y in x[3:]: y.glue = True
        setmin(x, B[gi]); x[2].minpos = B[gi] + 3; x[2].maxpos = B[gi] + 10
        d += x
    st.append(Stream("D", d, B[1], B[8] - 1))
    st.append(Stream("NB", rotate() + next_block_calc(True), 0, B[4]))
    out, stats = schedule(bb, st, pre, lambda i: 12 if i < B[4] else 8)
    sb = sbar(("vm", ["D3", "D4"]), ("lgkm", "all"))
    k = [i_ for i_, x in enumerate(sb) if x.kind == "barrier"][0]
    return out + sb[:k] + [salu("s_branch L_entry")]

def build_body():
    bb = []; pre = {}; st = []
    NG = 64
    for n in range(NG):
        T, g = divmod(n, 4)
        n1 = (n + 1) % NG; T1, g1 = divmod(n1, 4)
        n0 = (n - 1) % NG; T0, g0 = divmod(n0, 4)
        base = G * n
        p = pre.setdefault(base, [])
        if n == 0: p += rotate()
        if g == 0 and T % 2 == 0:
            sb = sbar(("vm", [f"D{(T+1)%16}", f"D{(T+2)%16}"]), ("lgkm", "all"))
            if cfg.halfbar and T % 4 == 2:
                for x in sb:
                    if x.kind == "barrier": x.text = "s_nop 0"
            if T == 2:
                for x in sb:
                    if x.kind == "wait": x.cntst = True
                k = [i_ for i_, x in enumerate(sb) if x.kind == "barrier"][0]
                sb.insert(k, Ins("L_entry:", "label", cost=0))
            p += sb
        if g1 == 0: p.append(wait(("lgkm", [f"K{T1}"]), key=f"wK{T1}"))
        if T1 == 0 and g1 >= 2: p.append(wait(("lgkm", [f"Q0{g1}"]), key=f"wQ{T1}{g1}"))
        bb += QK(0, T1, g1)
        if g0 == 0: pre.setdefault(base + 8, []).append(wait(("lgkm", [f"V{T0}"]), key=f"wV{T0}"))
        bb += PV(T0, g0, T0 == 0)
        rel = max(0, base - G + 12) if n != 8 else base
        st.append(Stream(f"SM{n}", SM(g, T == 0, base - 1), rel, base + G - 1))
        if g == 0:
            Tn = (T + 1) % 16; t = T
            for k, op in enumerate(KREADS(Tn, Tn)): st.append(Stream(f"K{Tn}_{k}", [op], base + 5 * k, base + 5 * k + 7))
            for k, op in enumerate(VREADS(Tn, Tn)): st.append(Stream(f"V{Tn}_{k}", [op], base + G - 1 + (5 * k) // 2, base + G - 1 + (5 * k) // 2 + 6))
            TT = (T + 7) % 16
            d = DMA(TT, "next" if t == 9 else "inc", TT)
            for x in d[3:]: x.glue = True
            d[2].minpos = base + 3; d[2].maxpos = base + G
            if cfg.dma_seam:
                if t == 0: d[2].minpos = base + 1; d[2].maxpos = base + 2
                if t == 1: setmin(d, base + 3 * G); d[2].minpos = base + 3 * G + 2; d[2].maxpos = base + 4 * G - 2
            elif t == 0: d[2].maxpos = base + 3 * G
            if t in cfg.qd_tiles:
                qd = QDMA(2 * cfg.qd_tiles.index(t)); qd[-1].glue = True
                setmin(qd[-2:], base + 3 * G + 1)
                d += qd
            st.append(Stream(f"D{TT}", d, base, base + 4 * G - 1))
            if t == 0: st.append(Stream(f"NB{T}", next_block_calc(True), base, base + 3 * G))
            if t in cfg.qr_tiles: st.append(Stream(f"QR{T}", QREAD(1, 2 * cfg.qr_tiles.index(t), inbody=True), base + G, base + 3 * G - 2))
            if t == 15:
                st.append(Stream("QC0", QCOPY(0), base - G + 8, base + 3 * G - 3))
                st.append(Stream("QC1", QCOPY(1), base + 8, base + 4 * G - 1))
                st.append(Stream("QR2", QREAD(0, 8, inbody=True) + QREAD(0, 10, inbody=True), base + G + 8, base + 2 * G + 7))
                st.append(Stream("QR3", QREAD(0, 12, inbody=True) + QREAD(0, 14, inbody=True), base + 2 * G + 8, base + 3 * G + 1, prio=30))
        if T == 15 and g == 1:
            e0 = EPI(0, S_QCUR); e1 = EPI(1, S_QCUR)
            st.append(Stream("E_v0", e0[0], base + G + 5, base + 2 * G + 1))
            st.append(Stream("E_m0", e0[1], base + 2 * G + 2, base + 3 * G - 1, prio=30))
            st.append(Stream("E_v1", e1[0], base + 2 * G + 5, base + 3 * G - 1))
        if n == 0:
            e0 = EPI(0, S_QCUR); e1 = EPI(1, S_QCUR); e2 = EPI(2, S_QPREV); e3 = EPI(3, S_QPREV, site=0)
            st.append(Stream("E_v2", e2[0], base + 4, base + G + 8))
            st.append(Stream("E_v3", e3[0], base + G + 9, base + 2 * G + 14))
            e1[1][-1].maxpos = base + G + 8; e2[1][-1].maxpos = base + 3 * G + 5
            if cfg.st_tiles:
                chain = e1[1] + setmin(e2[1], base + G + 9) + setmin(e3[1], base + 2 * G + 15)
                chain[-1].maxpos = base + 4 * G + 5
                chain += e3[2][5:]
                st.append(Stream("E_m", chain, base, base + 5 * G, prio=10))
                for k, tt in enumerate(cfg.st_tiles):
                    e = (e0, e1, e2, e3)[k // 2][2]
                    pr = e[1 + 2 * (k % 2):3 + 2 * (k % 2)]; pr[0].glue = False; pr[1].glue = True
                    if k % 2 == 0: e[0].delay = 0; e[0].tag = f"wOR{k}"; pr = [wait(("lgkm", [f"OR{k//2}"]), key=f"wOR{k}")] + pr
                    pos = G * (4 * tt + cfg.st_grp)
                    pr[-2].maxpos = pos + 6
                    st.append(Stream(f"S{k}", pr, pos, pos + 8))
            else:
                chain = e1[1] + e0[2] + setmin(e2[1], base + G + 9) + e1[2] + setmin(e3[1], base + 2 * G + 15)
                chain[-1].maxpos = base + 4 * G + 5
                sg = max(cfg.st_gap, 2)
                for k, x in enumerate(e2[2][:5] + e3[2][:5]): x.maxpos = base + 4 * G + 12 + sg * k
                chain += e2[2] + e3[2]
                st.append(Stream("E_m", chain, base, base + 4 * G + 14 + max(cfg.st_gap, 2) * 10, prio=10))
    def tfn(i):
        n = i // G; T = (n // 4) % 16
        if T == 15 and i % (4 * G) >= 2 * G + 4: return cfg.seam_t
        if T == 0: return cfg.seam_t
        return 8
    return schedule(bb, st, pre, tfn)

def build_drain():
    bb = PV(15, 3, False)
    pre = {0: rotate()}
    e0 = EPI(0, S_QCUR, pol=cfg.o_pol_last); e1 = EPI(1, S_QCUR, pol=cfg.o_pol_last); e2 = EPI(2, S_QPREV, pol=cfg.o_pol_last); e3 = EPI(3, S_QPREV, site=1, pol=cfg.o_pol_last)
    seq = e0[2] + e1[1] + setmin(e2[0], 3) + e1[2] + e2[1] + setmin(e3[0], 8) + e2[2] + e3[1] + e3[2]
    for x in seq: x.delay = 0
    st = [Stream("E", seq, 0, 8)]
    out, stats = schedule(bb, st, pre, lambda i: 24)
    return out

def build_init():
    o = []
    def s(t, rd=(), wr=()): o.append(salu(t, rd, wr))
    def v(t, rd=(), wr=()): o.append(valu(t, rd, wr))
    if cfg.stamps: s("s_memrealtime s[94:95]")
    s("s_cmp_ge_u32 s2, 256\n  s_cbranch_scc1 L_end")
    s("s_load_dwordx8 s[4:11], s[0:1], 0", [], list(range(4, 12)))
    s("s_load_dwordx4 s[12:15], s[0:1], 32", [], list(range(12, 16)))
    v("v_lshrrev_b32 v1, 6, v0", V(0), V(1))
    v("v_and_b32 v0, 63, v0", V(0), V(0))
    v(f"v_readfirstlane_b32 s{S_WAVE}, v1", V(1), Sg(S_WAVE))
    if cfg.codepf == 2:
        s("s_getpc_b64 s[84:85]\nL_pf:", [], [84, 85]); s(f"s_lshl_b32 s83, s{S_WAVE}, 13", [S_WAVE], [83])
        v("v_lshlrev_b32 v51, 6, v0", V(0), V(51)); v("v_add_u32 v51, s83, v51", V(51) + Sg(83), V(51))
        for k in range(2):
            if k: v("v_add_u32 v51, 0x1000, v51", V(51), V(51))
            v("v_min_u32 v18, L_end-L_pf-4, v51", V(51), V(18)); v("v_mov_b32 v55, s85", Sg(85), V(55))
            v("v_add_co_u32 v54, vcc, s84, v18", V(18) + Sg(84), V(54) + [("vcc", 0)])
            v("v_addc_co_u32 v55, vcc, 0, v55, vcc", V(55) + [("vcc", 0)], V(55) + [("vcc", 0)])
            o.append(Ins(f"global_load_dword v2, v[54:55], off", "vmem", V(54, 2), [], tag="PF"))
    v("v_and_b32 v36, 15, v0", V(0), V(36)); v("v_lshrrev_b32 v37, 4, v0", V(0), V(37)); v("v_lshrrev_b32 v38, 2, v0", V(0), V(38))
    s(f"s_lshr_b32 s{S_T0}, s{S_WAVE}, 1", [S_WAVE], [S_T0])
    s(f"s_and_b32 s{S_T1}, s{S_WAVE}, 1", [S_WAVE], [S_T1])
    s(f"s_lshl_b32 s{S_WPART}, s{S_T1}, 12", [S_T1], [S_WPART])
    s(f"s_lshl_b32 s{S_LDSB}, s{S_T0}, 16", [S_T0], [S_LDSB])
    s(f"s_add_u32 s{S_LDSB}, s{S_LDSB}, s{S_WPART}", [S_LDSB, S_WPART], [S_LDSB])
    s(f"s_lshr_b32 s{S_TQ}, 15, s{S_T0}", [S_T0], [S_TQ])
    for p in range(4):
        v(f"v_add_u32 v39, {4*p}, v37", V(37), V(39)); v(f"v_and_b32 v39, s{S_TQ}, v39", V(39) + Sg(S_TQ), V(39))
        v(f"v_lshlrev_b32 v39, s{S_T0}, v39", V(39) + Sg(S_T0), V(39)); v("v_xor_b32 v39, v39, v36", V(39) + V(36), V(39))
        v("v_lshlrev_b32 v39, 4, v39", V(39), V(39)); v(f"v_lshl_add_u32 v{V_DMA+p}, v37, 8, v39", V(37) + V(39), V(V_DMA + p))
    v("v_lshrrev_b32 v39, 3, v0", V(0), V(39)); v("v_and_b32 v40, 6, v39", V(39), V(40)); v("v_and_b32 v41, 7, v0", V(0), V(41))
    v("v_xor_b32 v40, v40, v41", V(40) + V(41), V(40)); v("v_lshlrev_b32 v40, 4, v40", V(40), V(40))
    v(f"v_lshl_add_u32 v{V_QDMA}, v39, 8, v40", V(39) + V(40), V(V_QDMA)); v(f"v_add_u32 v{V_QDMA+1}, 1024, v{V_QDMA}", V(V_QDMA), V(V_QDMA + 1))
    s(f"s_lshl_b32 s{S_WQ}, s{S_WAVE}, 14", [S_WAVE], [S_WQ])
    s(f"s_lshl_b32 s{S_STG}, s{S_WAVE}, 13", [S_WAVE], [S_STG]); s(f"s_add_u32 s{S_STG}, s{S_STG}, {STG}", [S_STG], [S_STG])
    s(f"s_lshl_b32 s{S_STG2}, s{S_T0}, 16", [S_T0], [S_STG2]); s(f"s_lshl_b32 s{S_T1}, s{S_WPART}, 1", [S_WPART], [S_T1])
    s(f"s_add_u32 s{S_STG2}, s{S_STG2}, s{S_T1}", [S_STG2, S_T1], [S_STG2]); s(f"s_add_u32 s{S_STG2}, s{S_STG2}, {6*8192}", [S_STG2], [S_STG2])
    s(f"s_and_b32 s{S_XCD}, s2, 7", [], [S_XCD]); s(f"s_lshr_b32 s{S_INEXT}, s2, 3", [], [S_INEXT])
    early = o; o = late = []
    for kk in range(4):
        v(f"v_or_b32 v39, {4*kk}, v37", V(37), V(39)); v("v_xor_b32 v39, v39, v36", V(39) + V(36), V(39))
        v("v_lshlrev_b32 v39, 4, v39", V(39), V(39)); v(f"v_lshl_add_u32 v{V_KA+kk}, v36, 8, v39", V(36) + V(39), V(V_KA + kk))
    v("v_and_b32 v40, 7, v38", V(38), V(40)); v("v_and_b32 v41, 3, v0", V(0), V(41)); v("v_lshlrev_b32 v41, 3, v41", V(41), V(41))
    v("v_lshl_add_u32 v41, v38, 8, v41", V(38) + V(41), V(41)); v("v_add_u32 v41, 0x10000, v41", V(41), V(41))
    for dt in range(8):
        v(f"v_xor_b32 v39, {dt}, v40", V(40), V(39)); v(f"v_lshl_add_u32 v{V_VA+dt}, v39, 5, v41", V(39) + V(41), V(V_VA + dt))
    v("v_and_b32 v40, 6, v36", V(36), V(40)); v("v_and_b32 v41, 7, v36", V(36), V(41)); v("v_lshrrev_b32 v42, 3, v36", V(36), V(42))
    v("v_lshlrev_b32 v41, 7, v41", V(41), V(41)); v("v_lshl_add_u32 v41, v42, 10, v41", V(42) + V(41), V(41))
    for k2 in range(2):
        v(f"v_or_b32 v39, {4*k2}, v37", V(37), V(39)); v("v_xor_b32 v39, v39, v40", V(39) + V(40), V(39))
        v("v_lshl_add_u32 v39, v39, 4, v41", V(39) + V(41), V(39))
        v(f"v_add_u32 v{V_QA+k2}, s{S_STG}, v39", V(39) + Sg(S_STG), V(V_QA + k2))
        v(f"v_add_u32 v{V_QA2+k2}, s{S_STG2}, v39", V(39) + Sg(S_STG2), V(V_QA2 + k2))
    v(f"v_lshlrev_b32 v39, 4, v0", V(0), V(39)); v(f"v_add_u32 v{V_OOFF}, s{S_WQ}, v39", V(39) + Sg(S_WQ), V(V_OOFF))
    v("v_mul_u32_u24 v39, 272, v36", V(36), V(39)); v("v_lshl_add_u32 v39, v37, 3, v39", V(37) + V(39), V(39))
    v(f"v_add_u32 v{V_OW}, s{S_STG}, v39", V(39) + Sg(S_STG), V(V_OW))
    if cfg.direct_o:
        v("v_and_b32 v39, 1, v37", V(37), V(39)); v("v_lshlrev_b32 v39, 5, v39", V(39), V(39)); v("v_lshrrev_b32 v40, 1, v37", V(37), V(40))
        v("v_lshl_add_u32 v39, v40, 4, v39", V(40) + V(39), V(39)); v("v_lshl_add_u32 v39, v36, 8, v39", V(36) + V(39), V(39))
        v(f"v_add_u32 v{V_OW}, s{S_WQ}, v39", V(39) + Sg(S_WQ), V(V_OW))
    v("v_mul_u32_u24 v39, 272, v37", V(37), V(39)); v("v_lshl_add_u32 v39, v36, 4, v39", V(36) + V(39), V(39))
    v(f"v_add_u32 v{V_OR}, s{S_STG}, v39", V(39) + Sg(S_STG), V(V_OR))
    v("v_and_b32 v39, 3, v0", V(0), V(39)); v("v_cmp_eq_u32 vcc, 0, v39", V(39), [("vcc", 0)]); v("v_mov_b32 v40, 0x3f803f80", [], V(40))
    v("v_mov_b32 v39, 0", [], V(39))
    for e in range(4): v(f"v_cndmask_b32 v{V_ONES+e}, v39, v40, vcc", V(39) + V(40) + [("vcc", 0)], V(V_ONES + e))
    for r in list(range(V_L, V_L + 16)) + list(range(V_P, V_P + 8)): v(f"v_mov_b32 v{r}, 0", [], V(r))
    s(f"s_mov_b32 s{S_C}, 0x{CSCALE:08x}", [], [S_C]); s(f"s_mov_b32 s{S_NC}, 0x{CSCALE | 0x80000000:08x}", [], [S_NC])
    s(f"s_mov_b32 s{S_THR}, 0x{f32(2.0 ** cfg.thr_log2):08x}", [], [S_THR])
    for r in range(S_BAD, S_BAD + 8): s(f"s_mov_b32 s{r}, 0", [], [r])
    for r in range(S_TO, S_TO + 4): s(f"s_mov_b32 s{r}, {OOB}", [], [r])
    s(f"s_mov_b32 s{S_QCUR}, {OOB}", [], [S_QCUR]); s(f"s_mov_b32 s{S_KVCUR}, {OOB}", [], [S_KVCUR])
    s(f"s_mov_b32 s{S_LOOP}, 5", [], [S_LOOP])
    if cfg.stamps:
        s("s_mov_b32 s74, 1\n  s_memtime s[72:73]\n  s_memrealtime s[76:77]\n v_mov_b32 v44, 0\n v_mov_b32 v45, 0\n v_mov_b32 v50, 0")
    o = early
    o += next_block_calc(False)
    s("s_waitcnt lgkmcnt(0)")
    if cfg.stamps: s("s_memrealtime s[96:97]")
    for srd, ptr, size in ((S_Q, 4, 0x6000000), (S_O, 10, 0x6000000), (S_K, 6, 0x4000000), (S_V, 8, 0x4000000), (S_W, 14, 402653184)):
        o = early if srd == S_Q else late
        s(f"s_mov_b32 s{srd}, s{ptr}", [ptr], [srd]); s(f"s_mov_b32 s{srd+1}, s{ptr+1}", [ptr + 1], [srd + 1])
        s(f"s_mov_b32 s{srd+2}, {size}", [], [srd + 2]); s(f"s_mov_b32 s{srd+3}, 0x00020000", [], [srd + 3])
    o = early
    s(f"s_cmp_ge_u32 s{S_WAVE}, 2\n  s_cselect_b32 s{S_X}, s8, s6\n  s_cselect_b32 s{S_X+1}, s9, s7", [S_WAVE, 6, 7, 8, 9], [S_X, S_X + 1])
    s(f"s_mov_b32 s{S_X+2}, 0x4000000", [], [S_X + 2]); s(f"s_mov_b32 s{S_X+3}, 0x00020000", [], [S_X + 3])
    def dma(TT, how):
        d = DMA(TT, how, TT); return d[:2] + [salu("s_nop 0")] + d[2:]
    def qdma(g_):
        r = []
        for n in (4 * g_, 4 * g_ + 2):
            d = QDMA(n, S_STG if g_ < 2 else S_STG2); r += d[:-2] + [salu("s_nop 0")] + d[-2:]
        return r
    def qread(g_): return QREAD(0, 4 * g_, V_QA if g_ < 2 else V_QA2) + QREAD(0, 4 * g_ + 2, V_QA if g_ < 2 else V_QA2)
    o += dma(0, "first") + qdma(0) + qdma(1) + qdma(2)
    if cfg.codepf == 1:
        s("s_getpc_b64 s[84:85]\nL_pf:", [], [84, 85]); s(f"s_lshl_b32 s83, s{S_WAVE}, 13", [S_WAVE], [83])
        v("v_lshlrev_b32 v51, 6, v0", V(0), V(51)); v("v_add_u32 v51, s83, v51", V(51) + Sg(83), V(51))
        for k in range(2):
            if k: v("v_add_u32 v51, 0x1000, v51", V(51), V(51))
            v("v_min_u32 v18, L_end-L_pf-4, v51", V(51), V(18)); v("v_mov_b32 v55, s85", Sg(85), V(55))
            v("v_add_co_u32 v54, vcc, s84, v18", V(18) + Sg(84), V(54) + [("vcc", 0)])
            v("v_addc_co_u32 v55, vcc, 0, v55, vcc", V(55) + [("vcc", 0)], V(55) + [("vcc", 0)])
            o.append(Ins(f"global_load_dword v1, v[54:55], off", "vmem", V(54, 2), [], tag="PF"))
    o += late
    if cfg.stamps: s("s_memrealtime s[98:99]")
    o += [wait(("vm", ["D0"])), barrier()]
    if cfg.stamps: s("s_memrealtime s[100:101]\n  s_waitcnt lgkmcnt(0)\n  v_writelane_b32 v50, s94, 50\n  v_writelane_b32 v50, s96, 51\n  v_writelane_b32 v50, s98, 52\n  v_writelane_b32 v50, s100, 53")
    o += KREADS(0, 0) + dma(1, "inc") + qread0(0) + VREADS(0, 0) + qdma(3)
    o += [wait(("lgkm", ["K0", "Q00"]))]
    qk = QK(0, 0, 0)
    o += qk[:4] + qread0(1) + qk[4:] + dma(2, "inc")
    return o

def slow_stub():
    t = []
    for site in range(2):
        t.append(f"L_slow{site}:\n  s_branch L_ret{site}")
    return "\n".join(t)

def dataflow(trace):
    errs = []; stt = {}; cnt = {}
    inS = lambda r: r[0] == "v" and V_S <= r[1] < V_S + NS
    inP = lambda r: r[0] == "v" and V_P <= r[1] < V_P + 8
    inO = lambda r: r[0] == "v" and (V_O <= r[1] < V_O + 128 or V_L <= r[1] < V_L + 16)
    for x in trace:
        t = x.text
        if x.kind == "mfma":
            for r in x.wr:
                if inS(r):
                    if cnt.get(r, 4) == 4:
                        if stt.get(r, "c") != "c": errs.append(f"S overwritten before consumed {r} [{t}]")
                        cnt[r] = 1
                    else: cnt[r] += 1
                    stt[r] = "m"
                if inO(r):
                    if not x.srcc:
                        if stt.get(r, "done") != "done": errs.append(f"O overwritten before stored {r} [{t}]")
                        cnt[r] = 1
                    else: cnt[r] = cnt.get(r, 15) + 1
                    stt[r] = "acc"
            for r in x.ab:
                if inP(r):
                    if stt.get(r, "new") != "new": errs.append(f"P read when not new {r} [{t}]")
                    cnt[r] = cnt.get(r, 0) + 1
                    if cnt[r] == 9: stt[r] = "used"; cnt[r] = 0
        else:
            for r in x.rd:
                if inS(r) and cnt.get(r, 4) != 4: errs.append(f"S read while partial {r} [{t}]")
                if inS(r) and t.startswith("v_cvt"): stt[r] = "c"
                if inO(r) and stt.get(r) == "acc" and cnt.get(r) != 16: errs.append(f"O read early {r} cnt {cnt.get(r)} [{t}]")
            if x.kind == "store" and "offset:192" in t:
                for k in range(32): stt[("v", x.rd[0][1] - 12 + k)] = "done"
            if t.startswith("ds_write") and EPI_LAST_W in t:
                a0 = x.rd[1][1] - 14
                for k in range(32): stt[("v", a0 + k)] = "done"
            if t.startswith("v_cmp_ngt"):
                for k in range(4): stt[("v", x.rd[0][1] + k)] = "done"
            for r in x.wr:
                if inP(r) and t.startswith("v_cvt"):
                    if stt.get(r, "used") != "used": errs.append(f"P overwritten before used {r} [{t}]")
                    stt[r] = "new"; cnt[r] = 0
    return errs
def ldsflow(trace):
    import re
    errs = []
    vm = []; lg = []
    vis = {}
    rdst = {}
    m0 = None
    def region_of_read(x):
        t = x.text; off = int(re.search(r"offset:(\d+)", t).group(1)); a = x.rd[0][1]
        if V_KA <= a < V_KA + 4: return [("ring", off // 8192)]
        if V_VA <= a < V_VA + 8: return [("ring", off // 8192)]
        if a in (V_QA, V_QA + 1): return [("stg", off // 1024), ("stg", off // 1024 + 1)]
        if a in (V_QA2, V_QA2 + 1): return [("ring", 6), ("ring", 7), ("stg2", off // 1024), ("stg2", off // 1024 + 1)]
        return None
    for x in trace:
        t = x.text
        if x.kind == "salu" and " m0," in t:
            m = re.search(r"m0, s(\d+), (-?\d+)", t); m0 = (int(m.group(1)), int(m.group(2)))
        if x.kind == "dma":
            off = int(re.search(r"offset:(\d+)", t).group(1))
            if m0[0] == S_LDSB: reg = ("ring", m0[1] // 8192); shared = True
            elif m0[0] == S_STG: reg = ("stg", (m0[1] + off) // 1024); shared = False
            else: reg = ("stg2", (m0[1] + off) // 1024); shared = False
            st_ = rdst.get(reg, "free")
            if st_ == "pending" or (shared and st_ != "free"): errs.append(f"LDS WAR: DMA into {reg} while reads {st_} [{t}]")
            vis[reg] = "flight"; vm.append(reg)
        elif x.kind in ("vmem", "store"): vm.append(None)
        elif x.kind == "ds":
            regs = region_of_read(x) if t.startswith("ds_read") else None
            if regs:
                for reg in regs:
                    if reg[0] == "ring" and len(regs) > 1: rdst[reg] = "pending"; continue
                    need = "visible" if reg[0] == "ring" else "landed"
                    if vis.get(reg) != need and not (need == "landed" and vis.get(reg) == "visible"): errs.append(f"LDS RAW: read of {reg} state {vis.get(reg)} [{t}]")
                    rdst[reg] = "pending"
            if t.startswith("ds_write"):
                for k in range(5):
                    if vis.get(("stg", k)) == "flight": errs.append(f"O staging write while Q DMA in flight [{t}]")
            if t.startswith("ds_read_b128") and x.rd[0][1] == V_OR: regs = [("stg", k) for k in range(5)]; [rdst.__setitem__(r, "pending") for r in regs]
            lg.append(regs or [])
        elif x.kind == "wait":
            m = re.search(r"vmcnt\((\d+)\)", t)
            if m:
                N = int(m.group(1)); done = vm[:max(0, len(vm) - N)]; vm = vm[len(done):]
                for reg in done:
                    if reg is not None and reg not in vm: vis[reg] = "landed"
            m = re.search(r"lgkmcnt\((\d+)\)", t)
            if m:
                N = int(m.group(1)); done = lg[:max(0, len(lg) - N)]; lg = lg[len(done):]
                still = {r for l in lg for r in l}
                for l in done:
                    for reg in l:
                        if reg not in still: rdst[reg] = "retired"
        elif x.kind == "barrier":
            for reg, v_ in vis.items():
                if v_ == "landed": vis[reg] = "visible"
            for reg, v_ in rdst.items():
                if v_ == "retired": rdst[reg] = "free"
    return errs
EPI_LAST_W = "offset:224"
NS = 16
def main():
    tail = [salu(f"s_sub_u32 s{S_LOOP}, s{S_LOOP}, 1\n  s_cbranch_scc0 L_loop", [S_LOOP], [S_LOOP], cost=8)]
    for it in range(3):
        init = build_init()
        body, stats = build_body()
        drain = build_drain()
        init += build_prologue()
        ent = lambda bd: [k for k, x in enumerate(bd) if x.text == "L_entry:"][0]
        trace = init + body[ent(body):] + tail + (body + tail) * 5 + drain
        best = resolve_waits(trace)
        for l in (init, body, drain): apply_waits(l, best)
        dead = lambda x: (x.kind == "wait" and x.need is not None and x.text == "s_nop 0") or x.kind == "comment"
        nd = {x.tag for x in body if x.kind == "wait" and dead(x) and x.tag}
        if nd <= DEAD: break
        DEAD.update(nd)
    init = [x for x in init if not dead(x)]; body = [x for x in body if not dead(x)]; drain = [x for x in drain if not dead(x)]
    if cfg.abl:
        def drop(x):
            t = x.text
            return (('exp' in cfg.abl and t.startswith('v_exp')) or ('fma' in cfg.abl and t.startswith('v_fma')) or
                    ('ds' in cfg.abl and t.startswith('ds_read') and ' a[' in t) or ('dma' in cfg.abl and x.kind == 'dma') or
                    ('bar' in cfg.abl and x.kind == 'barrier') or ('cvt' in cfg.abl.split(',') and t.startswith('v_cvt') and int(t.split()[1][1:-1]) < 128) or
                    ('st' in cfg.abl.split(',') and x.kind == 'store') or ('dw' in cfg.abl and t.startswith('ds_write')) or ('rd' in cfg.abl and t.startswith('ds_read_b128 v')) or ('pk' in cfg.abl and t.startswith('v_pk_mul')) or ('perm' in cfg.abl and 'permlane' in t) or ('qc' in cfg.abl and 'accvgpr_mov' in t) or ('ecvt' in cfg.abl and t.startswith('v_cvt') and int(t.split()[1][1:-1]) >= 128) or ('wt' in cfg.abl and x.kind == 'wait' and x.need and x.need[0][1] in (['OR0'], ['OR1'], ['OR2'], ['OR3'])) or ('ones' in cfg.abl and x.kind == 'mfma' and 'v[32:35]' in t) or
                    ('epi' in cfg.abl and (t.startswith('v_mul_f32 v1') or t.startswith('v_mul_f32 v2') or t.startswith('ds_write') or t.startswith('ds_read_b128 v') or (t.startswith('v_cvt') and int(t.split()[1][1:-1]) >= 128))))
        body = [x for x in body if not drop(x)]
    init, n1 = fix_hazards(init); body, n2 = fix_hazards(body); drain, n3 = fix_hazards(drain)
    print("nops inserted", n1, n2, n3, file=sys.stderr)
    trace = init + body[ent(body):] + tail + (body + tail) * 5 + drain
    errs = check(trace)
    errs += dataflow(trace) + ldsflow(trace)
    written = {("s", 0), ("s", 1), ("s", 2), ("v", 0)}
    for x in trace:
        for r in x.rd:
            if r[0] in ("s", "m0") and r not in written: errs.append(f"uninitialised {r} read by [{x.text}]")
            if r[0] == "v" and r not in written and x.kind in ("dma", "vmem", "ds") : errs.append(f"uninitialised {r} read by [{x.text}]") if not x.text.startswith("ds_write") else None
        written.update(x.wr)
    seen = set()
    for e in errs:
        if e not in seen: print("ERR", e, file=sys.stderr); seen.add(e)
    tot = sum(x.cost for x in body)
    under = sum(1 for f in stats[1:] if f < 8)
    est = sum(8 + max(8, f) for f in stats[1:])
    seg = [sum(8 + max(8, f) for f in stats[1 + 136 * k:1 + 136 * (k + 1)]) for k in range(8)]
    print("est per 2 tiles", seg, file=sys.stderr)
    print(f"body instrs {len(body)} issue-cycles {tot} est cycles {est} underfilled gaps {under}", file=sys.stderr)
    hdr = open("header.txt").read()
    lines = [hdr, '.amdgcn_target "amdgcn-amd-amdhsa--gfx950"', ".text", f".globl {NAME}", ".p2align 8", f".type {NAME},@function", f"{NAME}:"]
    lines += ["  " + x.text for x in init]
    lines += [".p2align 6"] + ["  s_nop 0"] * cfg.pad + ["L_loop:"] + ["  " + x.text for x in body + tail]
    lines += ["  " + x.text for x in drain]
    if cfg.stamps:
        lines += ["""  s_waitcnt vmcnt(0) lgkmcnt(0)
  s_memtime s[70:71]
  s_memrealtime s[78:79]
  s_waitcnt lgkmcnt(0)
  v_writelane_b32 v44, s70, 49
  v_writelane_b32 v45, s72, 49
  v_writelane_b32 v50, s78, 54
  s_sub_u32 s78, s78, s76
  v_writelane_b32 v44, s78, 0
  v_writelane_b32 v45, s76, 0
  s_lshl_b32 s75, s2, 2
  s_add_u32 s75, s75, s%d
  s_lshl_b32 s75, s75, 9
  v_lshlrev_b32 v46, 3, v0
  buffer_store_dwordx2 v[44:45], v46, s[%d:%d], s75 offen
  s_add_u32 s94, s75, 0x100000
  v_lshlrev_b32 v46, 2, v0
  buffer_store_dword v50, v46, s[36:39], s94 offen
  s_cmp_lg_u32 s75, 0
  s_cbranch_scc1 L_end
  s_mov_b32 s84, s12
  s_mov_b32 s85, s13
  s_mov_b32 s86, 256
  s_mov_b32 s87, 0x00020000
  v_readlane_b32 s75, v45, 1
  v_add_u32 v46, 2, v0
  v_mul_u32_u24 v47, 43691, v46
  v_lshrrev_b32 v47, 17, v47
  v_mul_u32_u24 v48, 3, v47
  v_sub_u32 v48, v46, v48
  v_subrev_u32 v47, 1, v47
  v_subrev_u32 v49, s75, v44
  v_cmp_eq_u32 vcc, 0, v48
  v_mov_b32 v50, 1000
  v_cndmask_b32 v47, v50, v47, vcc
  v_cmp_lt_u32 vcc, 40, v0
  s_nop 1
  v_cndmask_b32 v47, v47, v50, vcc
  v_writelane_b32 v47, 14, 0
  v_writelane_b32 v47, 15, 49
  v_readlane_b32 s75, v44, 0
  s_nop 3
  v_writelane_b32 v49, s75, 0
  v_lshlrev_b32 v47, 2, v47
  buffer_store_dword v49, v47, s[84:87], 0 offen""" % (S_WAVE, S_W, S_W + 3)]
    lines += ["L_end:", "  s_endpgm"]
    if cfg.slow:
        import slow
        lines.append(slow.emit(globals()))
    else: lines.append(slow_stub())
    lines += ['.section .rodata,"a"', ".p2align 6", f".amdhsa_kernel {NAME}", "  .amdhsa_next_free_vgpr 512", "  .amdhsa_next_free_sgpr 102",
              "  .amdhsa_accum_offset 256", "  .amdhsa_group_segment_fixed_size 0", "  .amdhsa_kernarg_size 48", "  .amdhsa_user_sgpr_count 2",
              "  .amdhsa_user_sgpr_kernarg_segment_ptr 1", "  .amdhsa_system_sgpr_workgroup_id_x 1", ".end_amdhsa_kernel"]
    open(sys.argv[1], "w").write("\n".join(lines) + "\n")
    if errs and not cfg.abl: sys.exit(1)
main()
```

```python
import subprocess, os, sys
CLANG="clang"
def kernel(name, body, niter, nvgpr=512, accum=256, pre="", maxwg=256, lds_init=True, post=""):
    init=[]
    init.append("v_lshlrev_b32 v1, 4, v0")
    init.append("s_lshl_b32 s3, s2, 16")
    narch=min(accum,nvgpr)
    off=0
    for r in range(8,narch-3,4):
        init.append(f"buffer_load_dwordx4 v[{r}:{r+3}], v1, s[8:11], s3 offen offset:{(off*16)%4096}")
        off+=67
        if (r//4)%16==0: init.append("s_waitcnt vmcnt(0)")
    nacc=nvgpr-accum
    for r in range(0,nacc-3,4):
        init.append(f"buffer_load_dwordx4 a[{r}:{r+3}], v1, s[8:11], s3 offen offset:{(off*16)%4096}")
        off+=67
        if (r//4)%16==0: init.append("s_waitcnt vmcnt(0)")
    init.append("s_waitcnt vmcnt(0)")
    if lds_init:
        for i in range(16):
            init.append(f"ds_write_b128 v1, v[{8+4*i}:{11+4*i}] offset:{i*4096}")
        init.append("s_waitcnt lgkmcnt(0)")
    init="\n  ".join(init)
    return f""".amdgcn_target "amdgcn-amd-amdhsa--gfx950"
.text
.globl {name}
.p2align 8
.type {name},@function
{name}:
  s_load_dwordx4 s[4:7], s[0:1], 0
  s_waitcnt lgkmcnt(0)
  s_mov_b32 s8, s4
  s_mov_b32 s9, s5
  s_mov_b32 s10, 0x10000000
  s_mov_b32 s11, 0x00020000
  s_mov_b32 s12, s6
  s_mov_b32 s13, s7
  s_mov_b32 s14, 0x400000
  s_mov_b32 s15, 0x00020000
  {init}
  {pre}
  s_barrier
  s_memtime s[20:21]
  s_memrealtime s[22:23]
  s_waitcnt lgkmcnt(0)
  s_mov_b32 s24, {niter}
  s_nop 0
.p2align 6
Lloop:
  {body}
  s_sub_u32 s24, s24, 1
  s_cmp_lg_u32 s24, 0
  s_cbranch_scc1 Lloop
  s_nop 15
  s_nop 15
  s_waitcnt vmcnt(0) lgkmcnt(0)
  {post}
  s_memtime s[26:27]
  s_memrealtime s[28:29]
  s_waitcnt lgkmcnt(0)
  s_sub_u32 s26, s26, s20
  s_sub_u32 s28, s28, s22
  v_lshrrev_b32 v2, 6, v0
  s_mul_i32 s3, s2, {maxwg//64}
  v_add_u32 v2, s3, v2
  v_lshlrev_b32 v2, 3, v2
  v_mov_b32 v4, s26
  v_mov_b32 v5, s28
  v_and_b32 v6, 63, v0
  v_cmp_eq_u32 vcc, 0, v6
  s_and_saveexec_b64 s[30:31], vcc
  buffer_store_dwordx2 v[4:5], v2, s[12:15], 0 offen
  s_waitcnt vmcnt(0)
  s_endpgm
.section .rodata,"a"
.p2align 6
.amdhsa_kernel {name}
  .amdhsa_next_free_vgpr {nvgpr}
  .amdhsa_next_free_sgpr 102
  .amdhsa_accum_offset {accum}
  .amdhsa_group_segment_fixed_size 0
  .amdhsa_kernarg_size 16
  .amdhsa_user_sgpr_count 2
  .amdhsa_user_sgpr_kernarg_segment_ptr 1
  .amdhsa_system_sgpr_workgroup_id_x 1
.end_amdhsa_kernel
.amdgpu_metadata
---
amdhsa.version: [1, 2]
amdhsa.kernels:
  - .name: {name}
    .symbol: {name}.kd
    .kernarg_segment_size: 16
    .kernarg_segment_align: 8
    .group_segment_fixed_size: 0
    .private_segment_fixed_size: 0
    .wavefront_size: 64
    .sgpr_count: 102
    .vgpr_count: {nvgpr}
    .max_flat_workgroup_size: {maxwg}
    .args:
      - {{.name: kernargs, .size: 16, .offset: 0, .value_kind: by_value}}
...
.end_amdgpu_metadata
"""

class Suite:
    def __init__(self, tag):
        self.tag=tag; self.lines=[]; self.texts=[]; self.metas=[]
    def add(self, label, body, niter, grid=256, block=256, lds=100000, nrep=5, flush=0, **kw):
        name="k_"+label.replace(".","_").replace("-","m").replace("+","p")
        src=kernel(name, body, niter, maxwg=block, **kw)
        src=src.replace("Lloop","Lloop_"+name).replace("@L","L_"+name+"_")
        code,meta=src.split(".amdgpu_metadata\n")
        code=code.replace('.amdgcn_target "amdgcn-amd-amdhsa--gfx950"\n',"")
        meta=meta.split("amdhsa.kernels:\n")[1].split("...\n")[0]
        self.texts.append(code); self.metas.append(meta)
        self.lines.append(f"mb/{self.tag}.co {name} {grid} {block} {lds} {nrep} {flush} {label}")
    def finish(self):
        full='.amdgcn_target "amdgcn-amd-amdhsa--gfx950"\n'+"".join(self.texts)+".amdgpu_metadata\n---\namdhsa.version: [1, 2]\namdhsa.kernels:\n"+"".join(self.metas)+"...\n.end_amdgpu_metadata\n"
        s=f"work/{self.tag}.s"; open(s,"w").write(full)
        r=subprocess.run([CLANG,"-x","assembler","-target","amdgcn-amd-amdhsa","-mcpu=gfx950",s,"-o",f"mb/{self.tag}.co"],capture_output=True,text=True)
        if r.returncode: print(r.stderr[:3000]); sys.exit(1)
        open(f"mb/{self.tag}.txt","w").write("\n".join(self.lines)+"\n")
        import json
        print(json.dumps(["mb/mbhost",f"mb/{self.tag}.txt",f"mb/{self.tag}.co"]))
```

```python
from mbgen import *
S=Suite("mb12")
N=400
def seq(acck, ak, bk):
    out=[]
    for rep in range(4):
        for dt in range(8):
            acc=128+32*(rep%4)+4*dt; a=(8 if ak=="v" else 0)+4*dt+32*(rep%2); b=(80 if bk=="v" else 96)+4*(rep%2)
            out.append(f"v_mfma_f32_16x16x32_bf16 {acck}[{acc}:{acc+3}], {ak}[{a}:{a+3}], {bk}[{b}:{b+3}], {acck}[{acc}:{acc+3}]")
            out.append(f"v_exp_f32 v{96+(len(out)%16)}, v{112+(len(out)%16)}")
    return "\n  ".join(out)
for r in range(2):
    for acck,ak,bk in (("v","a","v"),("a","a","v"),("a","v","v"),("v","v","v"),("a","a","a"),("v","a","a")):
        S.add(f"acc{acck}_A{ak}_B{bk}_{r}", seq(acck,ak,bk), N)
S.finish()
```

```python
import sys, math, struct
from asmlib import *

class Cfg:
    nt_q = False; nt_kv = False; nt_o = False
    thr_log2 = 24
    slow = True
    stamps = False
    seam_t = 36
    abl = ''
    pk = True
    burst8 = False
    o_pol = ' sc0 sc1'
    o_pol_last = ' sc0 sc1'
    cond_wt = 0
    codepf = 1
    entry = 2
    p4_dma = [(3, 0), ('Q2', 1), ('Q3', 2), (4, 3), (5, 5), (6, 10), (7, 10), (8, 11), (9, 12), (10, 14)]
    st_tiles = [0, 1, 2, 3, 4, 13, 14, 15]
    st_grp = 1
    qk_order = 'chain2'
    halfbar = False
    dw_glue = 0
    rd_glue = True
    pad = 0
    e64 = False
    dma_seam = True
    direct_o = False
    kv_pol = ''
    q_pol = ' nt'
    qd_tiles = [5, 6, 7, 8, 9, 10, 11, 12]
    qr_tiles = [8, 9, 10, 11]
    dw_gap = 1
    st_gap = 0
cfg = Cfg()
for a in sys.argv[2:]:
    k, v = a.split("="); setattr(cfg, k, eval(v))

NAME = "standalone__mha_softmax__near_ridge_kernel"
def f32(x): return struct.unpack("<I", struct.pack("<f", x))[0]
CSCALE = f32(128 ** -0.5 * math.log2(math.e))

V_KA = 2
V_VA = 6
V_DMA = 14
V_QOFF = 18; V_OOFF = 19
V_NEGM = 20
V_RINV = 24
V_T = 60
V_OT = (80, 84, 88, 92, 120, 124, 36, 40)
V_ONES = 32
V_QDMA = 48
V_QA = 52
V_OW = 56; V_OR = 57
V_QA2 = 58
V_L = 64
V_S = 96
V_P = 112
V_O = 128
A_Q = 0; A_QB = 64; A_K = 128; A_V = 192
S_Q, S_X, S_O, S_K, S_V, S_W = 16, 20, 24, 28, 32, 36
S_C, S_NC, S_THR, S_WAVE, S_LDSB, S_DOFF, S_INEXT, S_XCD = 40, 41, 42, 43, 44, 45, 46, 47
S_QNEXT, S_KVNEXT, S_QCUR, S_KVCUR, S_QPREV, S_KVPREV = 48, 49, 50, 51, 52, 53
S_BAD = 54
S_LOOP, S_RET, S_WPART, S_T0, S_T1, S_TQ, S_TO = 62, 63, 64, 65, 66, 67, 88
S_STG, S_WQ, S_STG2 = 80, 81, 82
STG = 131072
OOB = 0x40000000

def salu(t, rd=(), wr=(), **k): return Ins(t, "salu", [("s", x) if isinstance(x, int) else x for x in rd], [("s", x) if isinstance(x, int) else x for x in wr], **k)
def valu(t, rd=(), wr=(), kind="valu", **k): return Ins(t, kind, rd, wr, **k)
def V(n, c=1): return R("v", n, c)
def A(n, c=1): return R("a", n, c)
def Sg(n, c=1): return R("s", n, c)

def mfma(d, a, b, c):
    ct = "0" if c is None else rs("v", c, 4)
    t = f"v_mfma_f32_16x16x32_bf16 {rs('v', d, 4)}, {rs(a[0], a[1], 4)}, {rs(b[0], b[1], 4)}, {ct}"
    ab = R(a[0], a[1], 4) + R(b[0], b[1], 4)
    cc = [] if c is None else V(c, 4)
    return Ins(t, "mfma", ab + cc, V(d, 4), srcc=cc, ab=ab)

def QK(qb, T, g):
    out = []
    order = {"alt": [(t, kk) for kk in range(4) for t in range(2)], "chain": [(t, kk) for t in range(2) for kk in range(4)],
             "chain2": [(0, 0), (0, 1), (0, 2), (0, 3), (1, 3), (1, 2), (1, 1), (1, 0)],
             "snake": [(0, 0), (1, 0), (1, 1), (0, 1), (0, 2), (1, 2), (1, 3), (0, 3)]}[cfg.qk_order]
    seen = set()
    for t, kk in order:
        if True:
            d = V_S + 8 * (g % 2) + 4 * t; firstc = t not in seen; seen.add(t)
            out.append(mfma(d, ("a", A_K + 32 * (T % 2) + 16 * t + 4 * kk), ("a", A_Q + 64 * qb + 16 * g + 4 * kk), None if firstc else d))
    return out
def PV(T, g, first):
    out = []
    p = ("v", V_P + 4 * (g % 2))
    for dt in range(8):
        d = V_O + 32 * g + 4 * dt
        out.append(mfma(d, ("a", A_V + 32 * (T % 2) + 4 * dt), p, None if first else d))
    d = V_L + 4 * g
    out.append(mfma(d, ("v", V_ONES), p, None if first else d))
    return out

def SM(g, first, cvt_min):
    s = V_S + 8 * (g % 2); p = V_P + 4 * (g % 2); nm = V_NEGM + g
    o = []
    if first:
        t0, t1 = V_T + 2 * (g % 2), V_T + 2 * (g % 2) + 1
        o.append(valu(f"v_max3_f32 v{t0}, v{s}, v{s+1}, v{s+2}", V(s, 3), V(t0)))
        o.append(valu(f"v_max3_f32 v{t1}, v{s+3}, v{s+4}, v{s+5}", V(s + 3, 3), V(t1)))
        o.append(valu(f"v_max3_f32 v{t0}, v{s+6}, v{s+7}, v{t0}", V(s + 6, 2) + V(t0), V(t0)))
        o.append(valu(f"v_max_f32 v{t0}, v{t0}, v{t1}", V(t0) + V(t1), V(t0)))
        o.append(valu(f"v_mov_b32 v{t1}, v{t0}", V(t0), V(t1)))
        o.append(valu(f"v_permlane32_swap_b32 v{t1}, v{t0}", V(t0) + V(t1), V(t0) + V(t1), kind="perm", cost=8, nogap=True)); o[-1].last = True
        o.append(valu(f"v_max_f32 v{t0}, v{t0}, v{t1}", V(t0) + V(t1), V(t0)))
        o.append(valu(f"v_mov_b32 v{t1}, v{t0}", V(t0), V(t1)))
        o.append(valu(f"v_permlane16_swap_b32 v{t1}, v{t0}", V(t0) + V(t1), V(t0) + V(t1), kind="perm", cost=8, nogap=True)); o[-1].last = True
        o.append(valu(f"v_max_f32 v{t0}, v{t0}, v{t1}", V(t0) + V(t1), V(t0)))
        o.append(valu(f"v_mul_f32 v{nm}, s{S_NC}, v{t0}", V(t0) + Sg(S_NC), V(nm)))
    def fma(r): return valu(f"v_fma_f32 v{s+r}, v{s+r}, s{S_C}, v{nm}", V(s + r) + V(nm) + Sg(S_C), V(s + r))
    def ex(r): return valu(f"v_exp_f32{'_e64' if cfg.e64 else ''} v{s+r}, v{s+r}", V(s + r), V(s + r), kind="trans")
    def cvt(h): return valu(f"v_cvt_pk_bf16_f32 v{p+h}, v{s+2*h}, v{s+2*h+1}", V(s + 2 * h, 2), V(p + h), minpos=cvt_min, nogap=True)
    o += [fma(0), fma(1), ex(0), ex(1), fma(2), fma(3), ex(2), ex(3), cvt(0), fma(4), ex(4), cvt(1), fma(5), ex(5),
          fma(6), fma(7), ex(6), ex(7), cvt(2), cvt(3)]
    o[-1].nogap = False
    return o

def KREADS(T, tagp):
    o = []
    for kk in range(4):
        for t in range(2):
            d = A_K + 32 * (T % 2) + 16 * t + 4 * kk
            o.append(Ins(f"ds_read_b128 {rs('a', d, 4)}, v{V_KA+kk} offset:{(T % 8) * 8192 + t * 4096}", "ds", V(V_KA + kk), A(d, 4), tag=f"K{tagp}"))
    return o
def VREADS(T, tagp):
    o = []
    for dt in range(8):
        for h in range(2):
            d = A_V + 32 * (T % 2) + 4 * dt + 2 * h
            o.append(Ins(f"ds_read_b64_tr_b16 {rs('a', d, 2)}, v{V_VA+dt} offset:{(T % 8) * 8192 + h * 4096}", "ds", V(V_VA + dt), A(d, 2), tag=f"V{tagp}"))
    return o
def DMA(TT, how, tagp):
    o = []
    if how == "inc": o.append(salu(f"s_add_u32 s{S_DOFF}, s{S_DOFF}, 8192", [S_DOFF], [S_DOFF]))
    else: o.append(salu(f"s_add_u32 s{S_DOFF}, s{S_KVNEXT}, s{S_WPART}", [S_KVNEXT, S_WPART], [S_DOFF]))
    o.append(salu(f"s_add_u32 m0, s{S_LDSB}, {(TT % 8) * 8192}", [S_LDSB], [("m0", 0)]))
    nt = cfg.kv_pol
    for p in range(4):
        o.append(Ins(f"buffer_load_dwordx4 v{V_DMA+p}, {rs('s', S_X, 4)}, s{S_DOFF} offen offset:{1024*p}{nt} lds", "dma",
                     V(V_DMA + p) + Sg(S_X, 4) + Sg(S_DOFF) + [("m0", 0)], [], tag=f"D{tagp}", nogap=(p == 0), cost=(14 if p == 0 else 9)))
    return o
def QDMA(n, stg=S_STG):
    g_, c2 = n // 4, (n // 2) % 2
    o = []
    if n == 0: o.append(salu(f"s_add_u32 s{S_TQ}, s{S_QNEXT}, s{S_WQ}", [S_QNEXT, S_WQ], [S_TQ]))
    elif c2 == 0: o.append(salu(f"s_add_u32 s{S_TQ}, s{S_TQ}, 4096", [S_TQ], [S_TQ]))
    o.append(salu(f"s_add_u32 m0, s{stg}, {1024*(n%8) - 128*c2}", [stg], [("m0", 0)]))
    nt = cfg.q_pol
    for h in range(2):
        o.append(Ins(f"buffer_load_dwordx4 v{V_QDMA+h}, {rs('s', S_Q, 4)}, s{S_TQ} offen offset:{1024*h+128*c2}{nt} lds", "dma",
                     V(V_QDMA + h) + Sg(S_Q, 4) + Sg(S_TQ) + [("m0", 0)], [], tag=f"QD{n//2}", nogap=(h == 0), cost=(14 if h == 0 else 9)))
    return o
def QREAD(qb, n, va=V_QA, inbody=False):
    g_, c2 = n // 4, (n // 2) % 2
    o = [wait(("vm", [f"QD{n//2}"]), key=(f"wQD{qb}_{n}" if inbody else None))]
    for k2 in range(2):
        d = A_Q + 64 * qb + 16 * g_ + 4 * (2 * c2 + k2)
        o.append(Ins(f"ds_read_b128 {rs('a', d, 4)}, v{va+k2} offset:{1024*(n%8)}", "ds", V(va + k2), A(d, 4), tag=f"Q{qb}{g_}"))
    return o
def EPI(g, sq, site=None, pol=None):
    l = V_L + 4 * g; r = V_RINV + 2 * g; to = S_TO + g
    o = [valu(f"v_rcp_f32 v{r}, v{l}", V(l), V(r), kind="trans"),
         valu(f"v_cmp_ngt_f32 {rs('s', S_BAD+2*g, 2)}, s{S_THR}, v{l}", V(l) + Sg(S_THR), Sg(S_BAD + 2 * g, 2)),
         salu(f"s_add_u32 s{to}, s{sq}, {4096*g}", [sq], [to])]
    nt = cfg.o_pol if pol is None else pol
    a0 = V_O + 32 * g
    if cfg.pk:
        M = [valu(f"v_pk_mul_f32 v[{a0+e}:{a0+e+1}], v[{a0+e}:{a0+e+1}], v[{r}:{r+1}] op_sel_hi:[1,0]", V(a0 + e, 2) + V(r), V(a0 + e, 2)) for e in range(0, 32, 2)]
        M[0].cost = 16; M[0].late = True
        for x in M[1:]: x.glue = True; x.late = True
    else:
        M = [valu(f"v_mul_f32 v{a0+e}, v{a0+e}, v{r}", V(a0 + e) + V(r), V(a0 + e)) for e in range(32)]
    C = [valu(f"v_cvt_pk_bf16_f32 v{a0+h}, v{a0+2*h}, v{a0+2*h+1}", V(a0 + 2 * h, 2), V(a0 + h)) for h in range(16)]
    W = [Ins(f"ds_write_b64 v{V_OW}, {rs('v', a0 + 2 * h, 2)} offset:{32*h}", "ds", V(V_OW) + V(a0 + 2 * h, 2), [], tag="OW", cost=12) for h in range(8)]
    for k_, x in enumerate(W):
        x.delay = cfg.dw_gap
        if cfg.dw_glue and k_ % cfg.dw_glue: x.glue = True
    ot = V_OT[4 * (g % 2):4 * (g % 2) + 4]; ok = "v"
    if cfg.st_tiles and g >= 2: ok = "a"; ot = [96 + 16 * (g - 2) + 4 * p for p in range(4)]
    RD = [Ins(f"ds_read_b128 {rs(ok, ot[p], 4)}, v{V_OR} offset:{1088*p}", "ds", V(V_OR), R(ok, ot[p], 4), tag=f"OR{g}") for p in range(4)]
    if cfg.rd_glue:
        for x in RD[1:]: x.glue = True
    ST = [Ins(f"buffer_store_dwordx4 {rs(ok, ot[p], 4)}, v{V_OOFF}, {rs('s', S_O, 4)}, s{to} offen offset:{1024*p}{nt}", "store",
              R(ok, ot[p], 4) + V(V_OOFF) + Sg(S_O, 4) + Sg(to), [], tag="ST", cost=16) for p in range(4)]
    if cfg.cond_wt and pol is None:
        lab = f"L_wt{g}"
        alt = "\n  ".join(x.text + cfg.o_pol_last for x in ST)
        ST[0].text = f"s_cmp_lt_u32 s{S_LOOP}, {cfg.cond_wt}\n  s_cbranch_scc0 {lab}a\n  {alt}\n  s_branch {lab}b\n{lab}a:\n  " + ST[0].text
        ST[3].text = ST[3].text + f"\n{lab}b:"
        ST[0].cost += 8; ST[0].rd += Sg(S_LOOP)
    for x in ST[1:]:
        if cfg.st_gap: x.delay = cfg.st_gap
        else: x.glue = True
    wt = wait(("lgkm", [f"OR{g}"])); wt.delay = 6
    ev = o + M + C; em = W + RD; es = [wt] + ST
    if cfg.direct_o:
        SW = []
        for p in range(4):
            a = a0 + 4 * p
            SW += [valu(f"v_permlane16_swap_b32 v{a}, v{a+2}", V(a) + V(a + 2), V(a) + V(a + 2), kind="perm", cost=8),
                   valu(f"v_permlane16_swap_b32 v{a+1}, v{a+3}", V(a + 1) + V(a + 3), V(a + 1) + V(a + 3), kind="perm", cost=8)]
        ST = [Ins(f"buffer_store_dwordx4 {rs('v', a0 + 4 * p, 4)}, v{V_OW}, {rs('s', S_O, 4)}, s{to} offen offset:{64*p}{nt}", "store",
                  V(a0 + 4 * p, 4) + V(V_OW) + Sg(S_O, 4) + Sg(to), [], tag="ST", cost=24) for p in range(4)]
        for x in ST[1:]: x.glue = True
        ST[0].nogap = True
        ev = o + M + C + SW; em = ST; es = [Ins("", "comment", cost=0)] * 5
    o = es = list(es)
    if site is not None:
        b = S_BAD
        o.append(salu(f"s_or_b64 s[{b}:{b+1}], s[{b}:{b+1}], s[{b+2}:{b+3}]", Sg(b, 4), Sg(b, 2)))
        o.append(salu(f"s_or_b64 s[{b+4}:{b+5}], s[{b+4}:{b+5}], s[{b+6}:{b+7}]", Sg(b + 4, 4), Sg(b + 4, 2)))
        o.append(salu(f"s_or_b64 s[{b}:{b+1}], s[{b}:{b+1}], s[{b+4}:{b+5}]\n  s_cbranch_scc1 L_slow{site}\nL_ret{site}:", Sg(b, 2) + Sg(b + 4, 2), Sg(b, 2), cost=8))
    return ev, em, es

def next_block_calc(pre_inc):
    o = []
    if pre_inc: o.append(salu(f"s_add_u32 s{S_INEXT}, s{S_INEXT}, 32", [S_INEXT], [S_INEXT]))
    o += [salu(f"s_mul_i32 s{S_T0}, s{S_INEXT}, 43691", [S_INEXT], [S_T0]),
          salu(f"s_lshr_b32 s{S_T0}, s{S_T0}, 17", [S_T0], [S_T0]),
          salu(f"s_lshl_b32 s{S_T1}, s{S_XCD}, 6", [S_XCD], [S_T1]),
          salu(f"s_add_u32 s{S_T0}, s{S_T0}, s{S_T1}", [S_T0, S_T1], [S_T0]),
          salu(f"s_lshl_b32 s{S_KVNEXT}, s{S_T0}, 17", [S_T0], [S_KVNEXT]),
          salu(f"s_mul_i32 s{S_T1}, s{S_XCD}, 192", [S_XCD], [S_T1]),
          salu(f"s_add_u32 s{S_T1}, s{S_T1}, s{S_INEXT}", [S_T1, S_INEXT], [S_T1]),
          salu(f"s_lshl_b32 s{S_QNEXT}, s{S_T1}, 16", [S_T1], [S_QNEXT]),
          salu(f"s_cmp_lt_u32 s{S_INEXT}, 192\n  s_cselect_b32 s{S_KVNEXT}, s{S_KVNEXT}, {OOB}\n  s_cselect_b32 s{S_QNEXT}, s{S_QNEXT}, {OOB}",
               [S_INEXT, S_KVNEXT, S_QNEXT], [S_KVNEXT, S_QNEXT], cost=12)]
    return o
def rotate():
    return [salu(f"s_mov_b32 s{S_QPREV}, s{S_QCUR}", [S_QCUR], [S_QPREV]), salu(f"s_mov_b32 s{S_KVPREV}, s{S_KVCUR}", [S_KVCUR], [S_KVPREV]),
            salu(f"s_mov_b32 s{S_QCUR}, s{S_QNEXT}", [S_QNEXT], [S_QCUR]), salu(f"s_mov_b32 s{S_KVCUR}, s{S_KVNEXT}", [S_KVNEXT], [S_KVCUR])]

DEAD = set()
def wait(*need, key=None):
    w = Ins("s_waitcnt ?", "wait", need=list(need)); w.tag = key
    if cfg.st_tiles: w.cntst = True
    if key is not None and key in DEAD: w.cost = 0; w.kind = "comment"; w.text = ""; w.need = None
    return w
def barrier(): return Ins("s_barrier", "barrier", cost=4)

G = 17
NVE = 51
def setmin(ops, m):
    for o in ops: o.minpos = max(o.minpos, m)
    return ops
def QCOPY(g_):
    return [valu(f"v_accvgpr_mov_b32 a{A_Q+16*g_+r}, a{A_QB+16*g_+r}", A(A_QB + 16 * g_ + r), A(A_Q + 16 * g_ + r)) for r in range(16)]
def sbar(*need, stamp=True):
    p = []
    if cfg.stamps and stamp: p.append(salu("s_memtime s[70:71]\n  s_memrealtime s[92:93]\n  v_mov_b32 v47, s72"))
    p += [wait(*need), barrier()]
    if cfg.stamps and stamp:
        p.append(valu("s_memtime s[72:73]\n  v_mov_b32 v46, s70\n  v_cmp_eq_u32 vcc, s74, v0\n  s_add_u32 s74, s74, 1\n  s_nop 0\n  v_cndmask_b32 v44, v44, v46, vcc\n  v_cndmask_b32 v45, v45, v47, vcc\n  v_mov_b32 v46, s92\n  v_cndmask_b32 v50, v50, v46, vcc", [], V(44, 2)))
    return p
def qread0(g_): return QREAD(0, 4 * g_, V_QA if g_ < 2 else V_QA2) + QREAD(0, 4 * g_ + 2, V_QA if g_ < 2 else V_QA2)
def build_prologue():
    bb = []; pre = {}; st = []; B = []
    for n in range(8):
        T, g = divmod(n, 4); T1, g1 = divmod(n + 1, 4); T0, g0 = divmod(n - 1, 4)
        base = len(bb); B.append(base)
        p = pre.setdefault(base, [])
        if n == 1: p += sbar(("vm", ["D1"]), ("lgkm", "all"))
        if n == 4: p += sbar(("vm", ["D2"]), ("lgkm", "all"), stamp=False)
        if g1 == 0: p.append(wait(("lgkm", [f"K{T1}"])))
        if T1 == 0: p.append(wait(("lgkm", [f"Q0{g1}"])))
        bb += QK(0, T1, g1)
        if n > 0:
            if g0 == 0: pre.setdefault(base + 8, []).append(wait(("lgkm", [f"V{T0}"])))
            bb += PV(T0, g0, T0 == 0)
    B.append(len(bb))
    for n in range(8):
        T, g = divmod(n, 4)
        st.append(Stream(f"SM{n}", SM(g, T == 0, B[n] - 1), (B[n - 1] + 12 if n else 0), B[n + 1] - 1))
    st.append(Stream("QR2", qread0(2), 4, B[1] - 1))
    st.append(Stream("QR3", qread0(3), B[1] + 8, B[2] - 3))
    for k, op in enumerate(KREADS(1, 1)): st.append(Stream(f"K1_{k}", [op], B[1] + 3 * k, B[1] + 3 * k + 4))
    for k, op in enumerate(VREADS(1, 1)): st.append(Stream(f"V1_{k}", [op], B[1] + (5 * k) // 2, B[1] + (5 * k) // 2 + 6))
    for k, op in enumerate(KREADS(2, 2)): st.append(Stream(f"K2_{k}", [op], B[4] + 5 * k, B[4] + 5 * k + 7))
    for k, op in enumerate(VREADS(2, 2)): st.append(Stream(f"V2_{k}", [op], B[5] - 1 + (5 * k) // 2, B[5] - 1 + (5 * k) // 2 + 6))
    d = []
    for TT, gi in ((3, 1), (4, 2), (5, 3), (6, 4), (7, 5), (8, 6)):
        x = DMA(TT, "inc", TT)
        for y in x[3:]: y.glue = True
        setmin(x, B[gi]); x[2].minpos = B[gi] + 3; x[2].maxpos = B[gi] + 10
        d += x
    st.append(Stream("D", d, B[1], B[8] - 1))
    st.append(Stream("NB", rotate() + next_block_calc(True), 0, B[4]))
    out, stats = schedule(bb, st, pre, lambda i: 12 if i < B[4] else 8)
    sb = sbar(("vm", ["D3", "D4"]), ("lgkm", "all"))
    k = [i_ for i_, x in enumerate(sb) if x.kind == "barrier"][0]
    return out + sb[:k] + [salu("s_branch L_entry")]

def build_prologue4():
    U = [(T, g) for h in (0, 2) for T in range(4) for g in (h, h + 1)] + [(4, 0)]
    bb = []; pre = {}; st = []; B = []
    bars = {0: "D1", 2: "D2", 4: "D3", 10: None, 12: None, 14: "D4"}
    for k in range(16):
        base = len(bb); B.append(base)
        p = pre.setdefault(base, [])
        if k in bars:
            need = [("lgkm", "all")] if bars[k] is None else [("vm", [bars[k]]), ("lgkm", "all")]
            p += sbar(*need, stamp=(k in (0, 10)))
        T1, g1 = U[k + 1]
        if k % 2 == 1: p.append(wait(("lgkm", [f"K{T1}"])))
        if T1 == 0: p.append(wait(("lgkm", [f"Q0{g1}"])))
        bb += QK(0, T1, g1)
        if k > 0:
            T0, g0 = U[k - 1]
            if k % 2 == 1: pre.setdefault(base + 8, []).append(wait(("lgkm", [f"V{T0}"])))
            bb += PV(T0, g0, T0 == 0)
    B.append(len(bb))
    for k in range(16):
        T, g = U[k]
        st.append(Stream(f"SM{k}", SM(g, T == 0, B[k] - 1), (B[k - 1] + 12 if k else 0), B[k + 1] - 1))
    for v in range(8):
        Tn = U[2 * v + 2][0]
        kb = B[2 * v]
        for j, op in enumerate(KREADS(Tn, Tn)): st.append(Stream(f"K{v}_{j}", [op], kb, min(kb + j + 2, B[2 * v + 1] - 2)))
        vb = B[2 * v + 1]; span = (B[min(2 * v + 3, 16)] - vb - 4)
        for j, op in enumerate(VREADS(Tn, Tn)): st.append(Stream(f"V{v}_{j}", [op], vb + (span * j) // 18, vb + (span * j) // 18 + 3))
    st.append(Stream("QR2", qread0(2), B[5], B[7] - 3))
    st.append(Stream("QR3", qread0(3), B[7], B[8] - 3))
    d = []
    for TT, gi in cfg.p4_dma:
        if isinstance(TT, str):
            for n_ in (4 * int(TT[1]), 4 * int(TT[1]) + 2):
                x = QDMA(n_, S_STG2); x[-1].glue = True
                setmin(x, B[gi]); x[-2].minpos = B[gi] + 2; x[-2].maxpos = B[gi] + (5 if n_ % 4 == 0 else 11)
                d += x
            continue
        x = DMA(TT, "inc", TT)
        for y in x[3:]: y.glue = True
        setmin(x, B[gi]); x[2].minpos = B[gi] + 2; x[2].maxpos = B[gi] + (5 if TT != 7 else 10)
        d += x
    st.append(Stream("D", d, B[0], B[16] - 1, prio=40))
    st.append(Stream("NB", rotate() + next_block_calc(True), B[6], B[12]))
    out, stats = schedule(bb, st, pre, lambda i: 12)
    sb = sbar(("vm", ["D5", "D6"]), ("lgkm", "all"))
    k = [i_ for i_, x in enumerate(sb) if x.kind == "barrier"][0]
    return out + sb[:k] + [salu("s_branch L_entry")]

def build_body():
    bb = []; pre = {}; st = []
    NG = 64
    for n in range(NG):
        T, g = divmod(n, 4)
        n1 = (n + 1) % NG; T1, g1 = divmod(n1, 4)
        n0 = (n - 1) % NG; T0, g0 = divmod(n0, 4)
        base = G * n
        p = pre.setdefault(base, [])
        if n == 0: p += rotate()
        if g == 0 and T % 2 == 0:
            sb = sbar(("vm", [f"D{(T+1)%16}", f"D{(T+2)%16}"]), ("lgkm", "all"))
            if cfg.halfbar and T % 4 == 2:
                for x in sb:
                    if x.kind == "barrier": x.text = "s_nop 0"
            if T == cfg.entry:
                for x in sb:
                    if x.kind == "wait": x.cntst = True
                k = [i_ for i_, x in enumerate(sb) if x.kind == "barrier"][0]
                sb.insert(k, Ins("L_entry:", "label", cost=0))
            p += sb
        if g1 == 0: p.append(wait(("lgkm", [f"K{T1}"]), key=f"wK{T1}"))
        if T1 == 0 and g1 >= 2: p.append(wait(("lgkm", [f"Q0{g1}"]), key=f"wQ{T1}{g1}"))
        bb += QK(0, T1, g1)
        if g0 == 0: pre.setdefault(base + 8, []).append(wait(("lgkm", [f"V{T0}"]), key=f"wV{T0}"))
        bb += PV(T0, g0, T0 == 0)
        rel = max(0, base - G + 12) if n != 4 * cfg.entry else base
        st.append(Stream(f"SM{n}", SM(g, T == 0, base - 1), rel, base + G - 1))
        if g == 0:
            Tn = (T + 1) % 16; t = T
            for k, op in enumerate(KREADS(Tn, Tn)): st.append(Stream(f"K{Tn}_{k}", [op], base + 5 * k, base + 5 * k + 7))
            for k, op in enumerate(VREADS(Tn, Tn)): st.append(Stream(f"V{Tn}_{k}", [op], base + G - 1 + (5 * k) // 2, base + G - 1 + (5 * k) // 2 + 6))
            TT = (T + 7) % 16
            d = DMA(TT, "next" if t == 9 else "inc", TT)
            for x in d[3:]: x.glue = True
            d[2].minpos = base + 3; d[2].maxpos = base + G
            if cfg.dma_seam:
                if t == 0: d[2].minpos = base + 1; d[2].maxpos = base + 2
                if t == 1: setmin(d, base + 3 * G); d[2].minpos = base + 3 * G + 2; d[2].maxpos = base + 4 * G - 2
            elif t == 0: d[2].maxpos = base + 3 * G
            if t in cfg.qd_tiles:
                qd = QDMA(2 * cfg.qd_tiles.index(t)); qd[-1].glue = True
                setmin(qd[-2:], base + 3 * G + 1)
                d += qd
            st.append(Stream(f"D{TT}", d, base, base + 4 * G - 1))
            if t == 0: st.append(Stream(f"NB{T}", next_block_calc(True), base, base + 3 * G))
            if t in cfg.qr_tiles: st.append(Stream(f"QR{T}", QREAD(1, 2 * cfg.qr_tiles.index(t), inbody=True), base + G, base + 3 * G - 2))
            if t == 15:
                st.append(Stream("QC0", QCOPY(0), base - G + 8, base + 3 * G - 3))
                st.append(Stream("QC1", QCOPY(1), base + 8, base + 4 * G - 1))
                st.append(Stream("QR2", QREAD(0, 8, inbody=True) + QREAD(0, 10, inbody=True), base + G + 8, base + 2 * G + 7))
                st.append(Stream("QR3", QREAD(0, 12, inbody=True) + QREAD(0, 14, inbody=True), base + 2 * G + 8, base + 3 * G + 1, prio=30))
        if T == 15 and g == 1:
            e0 = EPI(0, S_QCUR); e1 = EPI(1, S_QCUR)
            st.append(Stream("E_v0", e0[0], base + G + 5, base + 2 * G + 1))
            st.append(Stream("E_m0", e0[1], base + 2 * G + 2, base + 3 * G - 1, prio=30))
            st.append(Stream("E_v1", e1[0], base + 2 * G + 5, base + 3 * G - 1))
        if n == 0:
            e0 = EPI(0, S_QCUR); e1 = EPI(1, S_QCUR); e2 = EPI(2, S_QPREV); e3 = EPI(3, S_QPREV, site=0)
            st.append(Stream("E_v2", e2[0], base + 4, base + G + 8))
            st.append(Stream("E_v3", e3[0], base + G + 9, base + 2 * G + 14))
            e1[1][-1].maxpos = base + G + 8; e2[1][-1].maxpos = base + 3 * G + 5
            if cfg.st_tiles:
                chain = e1[1] + setmin(e2[1], base + G + 9) + setmin(e3[1], base + 2 * G + 15)
                chain[-1].maxpos = base + 4 * G + 5
                chain += e3[2][5:]
                st.append(Stream("E_m", chain, base, base + 5 * G, prio=10))
                for k, tt in enumerate(cfg.st_tiles):
                    e = (e0, e1, e2, e3)[k // 2][2]
                    pr = e[1 + 2 * (k % 2):3 + 2 * (k % 2)]; pr[0].glue = False; pr[1].glue = True
                    if k % 2 == 0: e[0].delay = 0; e[0].tag = f"wOR{k}"; pr = [wait(("lgkm", [f"OR{k//2}"]), key=f"wOR{k}")] + pr
                    pos = G * (4 * tt + cfg.st_grp)
                    pr[-2].maxpos = pos + 6
                    st.append(Stream(f"S{k}", pr, pos, pos + 8))
            else:
                chain = e1[1] + e0[2] + setmin(e2[1], base + G + 9) + e1[2] + setmin(e3[1], base + 2 * G + 15)
                chain[-1].maxpos = base + 4 * G + 5
                sg = max(cfg.st_gap, 2)
                for k, x in enumerate(e2[2][:5] + e3[2][:5]): x.maxpos = base + 4 * G + 12 + sg * k
                chain += e2[2] + e3[2]
                st.append(Stream("E_m", chain, base, base + 4 * G + 14 + max(cfg.st_gap, 2) * 10, prio=10))
    def tfn(i):
        n = i // G; T = (n // 4) % 16
        if T == 15 and i % (4 * G) >= 2 * G + 4: return cfg.seam_t
        if T == 0: return cfg.seam_t
        return 8
    return schedule(bb, st, pre, tfn)

def build_drain():
    bb = PV(15, 3, False)
    pre = {0: rotate()}
    e0 = EPI(0, S_QCUR, pol=cfg.o_pol_last); e1 = EPI(1, S_QCUR, pol=cfg.o_pol_last); e2 = EPI(2, S_QPREV, pol=cfg.o_pol_last); e3 = EPI(3, S_QPREV, site=1, pol=cfg.o_pol_last)
    seq = e0[2] + e1[1] + setmin(e2[0], 3) + e1[2] + e2[1] + setmin(e3[0], 8) + e2[2] + e3[1] + e3[2]
    for x in seq: x.delay = 0
    st = [Stream("E", seq, 0, 8)]
    out, stats = schedule(bb, st, pre, lambda i: 24)
    return out

def build_init():
    o = []
    def s(t, rd=(), wr=()): o.append(salu(t, rd, wr))
    def v(t, rd=(), wr=()): o.append(valu(t, rd, wr))
    if cfg.stamps: s("s_memrealtime s[94:95]")
    s("s_cmp_ge_u32 s2, 256\n  s_cbranch_scc1 L_end")
    s("s_load_dwordx8 s[4:11], s[0:1], 0", [], list(range(4, 12)))
    s("s_load_dwordx4 s[12:15], s[0:1], 32", [], list(range(12, 16)))
    v("v_lshrrev_b32 v1, 6, v0", V(0), V(1))
    v("v_and_b32 v0, 63, v0", V(0), V(0))
    v(f"v_readfirstlane_b32 s{S_WAVE}, v1", V(1), Sg(S_WAVE))
    if cfg.codepf == 2:
        s("; read one dword per 64-byte line of this kernel's own code (clamped to [L_pf, L_end)) so instruction fetch later hits L2\n  s_getpc_b64 s[84:85]\nL_pf:", [], [84, 85]); s(f"s_lshl_b32 s83, s{S_WAVE}, 13", [S_WAVE], [83])
        v("v_lshlrev_b32 v51, 6, v0", V(0), V(51)); v("v_add_u32 v51, s83, v51", V(51) + Sg(83), V(51))
        for k in range(2):
            if k: v("v_add_u32 v51, 0x1000, v51", V(51), V(51))
            v("v_min_u32 v18, L_end-L_pf-4, v51", V(51), V(18)); v("v_mov_b32 v55, s85", Sg(85), V(55))
            v("v_add_co_u32 v54, vcc, s84, v18", V(18) + Sg(84), V(54) + [("vcc", 0)])
            v("v_addc_co_u32 v55, vcc, 0, v55, vcc", V(55) + [("vcc", 0)], V(55) + [("vcc", 0)])
            o.append(Ins(f"global_load_dword v1, v[54:55], off", "vmem", V(54, 2), [], tag="PF"))
    v("v_and_b32 v36, 15, v0", V(0), V(36)); v("v_lshrrev_b32 v37, 4, v0", V(0), V(37)); v("v_lshrrev_b32 v38, 2, v0", V(0), V(38))
    s(f"s_lshr_b32 s{S_T0}, s{S_WAVE}, 1", [S_WAVE], [S_T0])
    s(f"s_and_b32 s{S_T1}, s{S_WAVE}, 1", [S_WAVE], [S_T1])
    s(f"s_lshl_b32 s{S_WPART}, s{S_T1}, 12", [S_T1], [S_WPART])
    s(f"s_lshl_b32 s{S_LDSB}, s{S_T0}, 16", [S_T0], [S_LDSB])
    s(f"s_add_u32 s{S_LDSB}, s{S_LDSB}, s{S_WPART}", [S_LDSB, S_WPART], [S_LDSB])
    s(f"s_lshr_b32 s{S_TQ}, 15, s{S_T0}", [S_T0], [S_TQ])
    for p in range(4):
        v(f"v_add_u32 v39, {4*p}, v37", V(37), V(39)); v(f"v_and_b32 v39, s{S_TQ}, v39", V(39) + Sg(S_TQ), V(39))
        v(f"v_lshlrev_b32 v39, s{S_T0}, v39", V(39) + Sg(S_T0), V(39)); v("v_xor_b32 v39, v39, v36", V(39) + V(36), V(39))
        v("v_lshlrev_b32 v39, 4, v39", V(39), V(39)); v(f"v_lshl_add_u32 v{V_DMA+p}, v37, 8, v39", V(37) + V(39), V(V_DMA + p))
    v("v_lshrrev_b32 v39, 3, v0", V(0), V(39)); v("v_and_b32 v40, 6, v39", V(39), V(40)); v("v_and_b32 v41, 7, v0", V(0), V(41))
    v("v_xor_b32 v40, v40, v41", V(40) + V(41), V(40)); v("v_lshlrev_b32 v40, 4, v40", V(40), V(40))
    v(f"v_lshl_add_u32 v{V_QDMA}, v39, 8, v40", V(39) + V(40), V(V_QDMA)); v(f"v_add_u32 v{V_QDMA+1}, 1024, v{V_QDMA}", V(V_QDMA), V(V_QDMA + 1))
    s(f"s_lshl_b32 s{S_WQ}, s{S_WAVE}, 14", [S_WAVE], [S_WQ])
    s(f"s_lshl_b32 s{S_STG}, s{S_WAVE}, 13", [S_WAVE], [S_STG]); s(f"s_add_u32 s{S_STG}, s{S_STG}, {STG}", [S_STG], [S_STG])
    s(f"s_lshl_b32 s{S_STG2}, s{S_T0}, 16", [S_T0], [S_STG2]); s(f"s_lshl_b32 s{S_T1}, s{S_WPART}, 1", [S_WPART], [S_T1])
    s(f"s_add_u32 s{S_STG2}, s{S_STG2}, s{S_T1}", [S_STG2, S_T1], [S_STG2]); s(f"s_add_u32 s{S_STG2}, s{S_STG2}, {6*8192}", [S_STG2], [S_STG2])
    s(f"s_and_b32 s{S_XCD}, s2, 7", [], [S_XCD]); s(f"s_lshr_b32 s{S_INEXT}, s2, 3", [], [S_INEXT])
    early = o; o = late = []
    for kk in range(4):
        v(f"v_or_b32 v39, {4*kk}, v37", V(37), V(39)); v("v_xor_b32 v39, v39, v36", V(39) + V(36), V(39))
        v("v_lshlrev_b32 v39, 4, v39", V(39), V(39)); v(f"v_lshl_add_u32 v{V_KA+kk}, v36, 8, v39", V(36) + V(39), V(V_KA + kk))
    v("v_and_b32 v40, 7, v38", V(38), V(40)); v("v_and_b32 v41, 3, v0", V(0), V(41)); v("v_lshlrev_b32 v41, 3, v41", V(41), V(41))
    v("v_lshl_add_u32 v41, v38, 8, v41", V(38) + V(41), V(41)); v("v_add_u32 v41, 0x10000, v41", V(41), V(41))
    for dt in range(8):
        v(f"v_xor_b32 v39, {dt}, v40", V(40), V(39)); v(f"v_lshl_add_u32 v{V_VA+dt}, v39, 5, v41", V(39) + V(41), V(V_VA + dt))
    v("v_and_b32 v40, 6, v36", V(36), V(40)); v("v_and_b32 v41, 7, v36", V(36), V(41)); v("v_lshrrev_b32 v42, 3, v36", V(36), V(42))
    v("v_lshlrev_b32 v41, 7, v41", V(41), V(41)); v("v_lshl_add_u32 v41, v42, 10, v41", V(42) + V(41), V(41))
    for k2 in range(2):
        v(f"v_or_b32 v39, {4*k2}, v37", V(37), V(39)); v("v_xor_b32 v39, v39, v40", V(39) + V(40), V(39))
        v("v_lshl_add_u32 v39, v39, 4, v41", V(39) + V(41), V(39))
        v(f"v_add_u32 v{V_QA+k2}, s{S_STG}, v39", V(39) + Sg(S_STG), V(V_QA + k2))
        v(f"v_add_u32 v{V_QA2+k2}, s{S_STG2}, v39", V(39) + Sg(S_STG2), V(V_QA2 + k2))
    v(f"v_lshlrev_b32 v39, 4, v0", V(0), V(39)); v(f"v_add_u32 v{V_OOFF}, s{S_WQ}, v39", V(39) + Sg(S_WQ), V(V_OOFF))
    v("v_mul_u32_u24 v39, 272, v36", V(36), V(39)); v("v_lshl_add_u32 v39, v37, 3, v39", V(37) + V(39), V(39))
    v(f"v_add_u32 v{V_OW}, s{S_STG}, v39", V(39) + Sg(S_STG), V(V_OW))
    if cfg.direct_o:
        v("v_and_b32 v39, 1, v37", V(37), V(39)); v("v_lshlrev_b32 v39, 5, v39", V(39), V(39)); v("v_lshrrev_b32 v40, 1, v37", V(37), V(40))
        v("v_lshl_add_u32 v39, v40, 4, v39", V(40) + V(39), V(39)); v("v_lshl_add_u32 v39, v36, 8, v39", V(36) + V(39), V(39))
        v(f"v_add_u32 v{V_OW}, s{S_WQ}, v39", V(39) + Sg(S_WQ), V(V_OW))
    v("v_mul_u32_u24 v39, 272, v37", V(37), V(39)); v("v_lshl_add_u32 v39, v36, 4, v39", V(36) + V(39), V(39))
    v(f"v_add_u32 v{V_OR}, s{S_STG}, v39", V(39) + Sg(S_STG), V(V_OR))
    v("v_and_b32 v39, 3, v0", V(0), V(39)); v("v_cmp_eq_u32 vcc, 0, v39", V(39), [("vcc", 0)]); v("v_mov_b32 v40, 0x3f803f80", [], V(40))
    v("v_mov_b32 v39, 0", [], V(39))
    for e in range(4): v(f"v_cndmask_b32 v{V_ONES+e}, v39, v40, vcc", V(39) + V(40) + [("vcc", 0)], V(V_ONES + e))
    for r in list(range(V_L, V_L + 16)) + list(range(V_P, V_P + 8)): v(f"v_mov_b32 v{r}, 0", [], V(r))
    s(f"s_mov_b32 s{S_C}, 0x{CSCALE:08x}", [], [S_C]); s(f"s_mov_b32 s{S_NC}, 0x{CSCALE | 0x80000000:08x}", [], [S_NC])
    s(f"s_mov_b32 s{S_THR}, 0x{f32(2.0 ** cfg.thr_log2):08x}", [], [S_THR])
    for r in range(S_BAD, S_BAD + 8): s(f"s_mov_b32 s{r}, 0", [], [r])
    for r in range(S_TO, S_TO + 4): s(f"s_mov_b32 s{r}, {OOB}", [], [r])
    s(f"s_mov_b32 s{S_QCUR}, {OOB}", [], [S_QCUR]); s(f"s_mov_b32 s{S_KVCUR}, {OOB}", [], [S_KVCUR])
    s(f"s_mov_b32 s{S_LOOP}, 5", [], [S_LOOP])
    if cfg.stamps:
        s("s_mov_b32 s74, 1\n  s_memtime s[72:73]\n  s_memrealtime s[76:77]\n v_mov_b32 v44, 0\n v_mov_b32 v45, 0\n v_mov_b32 v50, 0")
    o = early
    o += next_block_calc(False)
    s("s_waitcnt lgkmcnt(0)")
    if cfg.stamps: s("s_memrealtime s[96:97]")
    for srd, ptr, size in ((S_Q, 4, 0x6000000), (S_O, 10, 0x6000000), (S_K, 6, 0x4000000), (S_V, 8, 0x4000000), (S_W, 14, 402653184)):
        o = early if srd == S_Q else late
        s(f"s_mov_b32 s{srd}, s{ptr}", [ptr], [srd]); s(f"s_mov_b32 s{srd+1}, s{ptr+1}", [ptr + 1], [srd + 1])
        s(f"s_mov_b32 s{srd+2}, {size}", [], [srd + 2]); s(f"s_mov_b32 s{srd+3}, 0x00020000", [], [srd + 3])
    o = early
    s(f"s_cmp_ge_u32 s{S_WAVE}, 2\n  s_cselect_b32 s{S_X}, s8, s6\n  s_cselect_b32 s{S_X+1}, s9, s7", [S_WAVE, 6, 7, 8, 9], [S_X, S_X + 1])
    s(f"s_mov_b32 s{S_X+2}, 0x4000000", [], [S_X + 2]); s(f"s_mov_b32 s{S_X+3}, 0x00020000", [], [S_X + 3])
    def dma(TT, how):
        d = DMA(TT, how, TT); return d[:2] + [salu("s_nop 0")] + d[2:]
    def qdma(g_):
        r = []
        for n in (4 * g_, 4 * g_ + 2):
            d = QDMA(n, S_STG if g_ < 2 else S_STG2); r += d[:-2] + [salu("s_nop 0")] + d[-2:]
        return r
    def qread(g_): return QREAD(0, 4 * g_, V_QA if g_ < 2 else V_QA2) + QREAD(0, 4 * g_ + 2, V_QA if g_ < 2 else V_QA2)
    o += dma(0, "first") + qdma(0) + qdma(1) + (dma(1, "inc") if cfg.entry == 4 else qdma(2))
    if cfg.codepf == 1:
        s("; read one dword per 64-byte line of this kernel's own code (clamped to [L_pf, L_end)) so instruction fetch later hits L2\n  s_getpc_b64 s[84:85]\nL_pf:", [], [84, 85]); s(f"s_lshl_b32 s83, s{S_WAVE}, 13", [S_WAVE], [83])
        v("v_lshlrev_b32 v51, 6, v0", V(0), V(51)); v("v_add_u32 v51, s83, v51", V(51) + Sg(83), V(51))
        for k in range(2):
            if k: v("v_add_u32 v51, 0x1000, v51", V(51), V(51))
            v("v_min_u32 v18, L_end-L_pf-4, v51", V(51), V(18)); v("v_mov_b32 v55, s85", Sg(85), V(55))
            v("v_add_co_u32 v54, vcc, s84, v18", V(18) + Sg(84), V(54) + [("vcc", 0)])
            v("v_addc_co_u32 v55, vcc, 0, v55, vcc", V(55) + [("vcc", 0)], V(55) + [("vcc", 0)])
            o.append(Ins(f"global_load_dword v1, v[54:55], off", "vmem", V(54, 2), [], tag="PF"))
    o += late
    if cfg.stamps: s("s_memrealtime s[98:99]")
    o += [wait(("vm", ["D0"])), barrier()]
    if cfg.stamps: s("s_memrealtime s[100:101]\n  s_waitcnt lgkmcnt(0)\n  v_writelane_b32 v50, s94, 50\n  v_writelane_b32 v50, s96, 51\n  v_writelane_b32 v50, s98, 52\n  v_writelane_b32 v50, s100, 53")
    if cfg.entry == 4:
        o += KREADS(0, 0) + dma(2, "inc") + qread0(0) + VREADS(0, 0)
        o += [wait(("lgkm", ["K0", "Q00"]))]
        qk = QK(0, 0, 0)
        o += qk[:4] + qread0(1) + qk[4:]
        return o
    o += KREADS(0, 0) + dma(1, "inc") + qread0(0) + VREADS(0, 0) + qdma(3)
    o += [wait(("lgkm", ["K0", "Q00"]))]
    qk = QK(0, 0, 0)
    o += qk[:4] + qread0(1) + qk[4:] + dma(2, "inc")
    return o

def slow_stub():
    t = []
    for site in range(2):
        t.append(f"L_slow{site}:\n  s_branch L_ret{site}")
    return "\n".join(t)

def dataflow(trace):
    errs = []; stt = {}; cnt = {}
    inS = lambda r: r[0] == "v" and V_S <= r[1] < V_S + NS
    inP = lambda r: r[0] == "v" and V_P <= r[1] < V_P + 8
    inO = lambda r: r[0] == "v" and (V_O <= r[1] < V_O + 128 or V_L <= r[1] < V_L + 16)
    for x in trace:
        t = x.text
        if x.kind == "mfma":
            for r in x.wr:
                if inS(r):
                    if cnt.get(r, 4) == 4:
                        if stt.get(r, "c") != "c": errs.append(f"S overwritten before consumed {r} [{t}]")
                        cnt[r] = 1
                    else: cnt[r] += 1
                    stt[r] = "m"
                if inO(r):
                    if not x.srcc:
                        if stt.get(r, "done") != "done": errs.append(f"O overwritten before stored {r} [{t}]")
                        cnt[r] = 1
                    else: cnt[r] = cnt.get(r, 15) + 1
                    stt[r] = "acc"
            for r in x.ab:
                if inP(r):
                    if stt.get(r, "new") != "new": errs.append(f"P read when not new {r} [{t}]")
                    cnt[r] = cnt.get(r, 0) + 1
                    if cnt[r] == 9: stt[r] = "used"; cnt[r] = 0
        else:
            for r in x.rd:
                if inS(r) and cnt.get(r, 4) != 4: errs.append(f"S read while partial {r} [{t}]")
                if inS(r) and t.startswith("v_cvt"): stt[r] = "c"
                if inO(r) and stt.get(r) == "acc" and cnt.get(r) != 16: errs.append(f"O read early {r} cnt {cnt.get(r)} [{t}]")
            if x.kind == "store" and "offset:192" in t:
                for k in range(32): stt[("v", x.rd[0][1] - 12 + k)] = "done"
            if t.startswith("ds_write") and EPI_LAST_W in t:
                a0 = x.rd[1][1] - 14
                for k in range(32): stt[("v", a0 + k)] = "done"
            if t.startswith("v_cmp_ngt"):
                for k in range(4): stt[("v", x.rd[0][1] + k)] = "done"
            for r in x.wr:
                if inP(r) and t.startswith("v_cvt"):
                    if stt.get(r, "used") != "used": errs.append(f"P overwritten before used {r} [{t}]")
                    stt[r] = "new"; cnt[r] = 0
    return errs
def ldsflow(trace):
    import re
    errs = []
    vm = []; lg = []
    vis = {}
    rdst = {}
    m0 = None
    def region_of_read(x):
        t = x.text; off = int(re.search(r"offset:(\d+)", t).group(1)); a = x.rd[0][1]
        if V_KA <= a < V_KA + 4: return [("ring", off // 8192)]
        if V_VA <= a < V_VA + 8: return [("ring", off // 8192)]
        if a in (V_QA, V_QA + 1): return [("stg", off // 1024), ("stg", off // 1024 + 1)]
        if a in (V_QA2, V_QA2 + 1): return [("ring", 6), ("ring", 7), ("stg2", off // 1024), ("stg2", off // 1024 + 1)]
        return None
    for x in trace:
        t = x.text
        if x.kind == "salu" and " m0," in t:
            m = re.search(r"m0, s(\d+), (-?\d+)", t); m0 = (int(m.group(1)), int(m.group(2)))
        if x.kind == "dma":
            off = int(re.search(r"offset:(\d+)", t).group(1))
            if m0[0] == S_LDSB: reg = ("ring", m0[1] // 8192); shared = True
            elif m0[0] == S_STG: reg = ("stg", (m0[1] + off) // 1024); shared = False
            else: reg = ("stg2", (m0[1] + off) // 1024); shared = False
            st_ = rdst.get(reg, "free")
            if st_ == "pending" or (shared and st_ != "free"): errs.append(f"LDS WAR: DMA into {reg} while reads {st_} [{t}]")
            vis[reg] = "flight"; vm.append(reg)
        elif x.kind in ("vmem", "store"): vm.append(None)
        elif x.kind == "ds":
            regs = region_of_read(x) if t.startswith("ds_read") else None
            if regs:
                for reg in regs:
                    if reg[0] == "ring" and len(regs) > 1: rdst[reg] = "pending"; continue
                    need = "visible" if reg[0] == "ring" else "landed"
                    if vis.get(reg) != need and not (need == "landed" and vis.get(reg) == "visible"): errs.append(f"LDS RAW: read of {reg} state {vis.get(reg)} [{t}]")
                    rdst[reg] = "pending"
            if t.startswith("ds_write"):
                for k in range(5):
                    if vis.get(("stg", k)) == "flight": errs.append(f"O staging write while Q DMA in flight [{t}]")
            if t.startswith("ds_read_b128") and x.rd[0][1] == V_OR: regs = [("stg", k) for k in range(5)]; [rdst.__setitem__(r, "pending") for r in regs]
            lg.append(regs or [])
        elif x.kind == "wait":
            m = re.search(r"vmcnt\((\d+)\)", t)
            if m:
                N = int(m.group(1)); done = vm[:max(0, len(vm) - N)]; vm = vm[len(done):]
                for reg in done:
                    if reg is not None and reg not in vm: vis[reg] = "landed"
            m = re.search(r"lgkmcnt\((\d+)\)", t)
            if m:
                N = int(m.group(1)); done = lg[:max(0, len(lg) - N)]; lg = lg[len(done):]
                still = {r for l in lg for r in l}
                for l in done:
                    for reg in l:
                        if reg not in still: rdst[reg] = "retired"
        elif x.kind == "barrier":
            for reg, v_ in vis.items():
                if v_ == "landed": vis[reg] = "visible"
            for reg, v_ in rdst.items():
                if v_ == "retired": rdst[reg] = "free"
    return errs
EPI_LAST_W = "offset:224"
NS = 16
def main():
    tail = [salu(f"s_sub_u32 s{S_LOOP}, s{S_LOOP}, 1\n  s_cbranch_scc0 L_loop", [S_LOOP], [S_LOOP], cost=8)]
    for it in range(3):
        init = build_init()
        body, stats = build_body()
        drain = build_drain()
        init += build_prologue4() if cfg.entry == 4 else build_prologue()
        ent = lambda bd: [k for k, x in enumerate(bd) if x.text == "L_entry:"][0]
        trace = init + body[ent(body):] + tail + (body + tail) * 5 + drain
        best = resolve_waits(trace)
        for l in (init, body, drain): apply_waits(l, best)
        dead = lambda x: (x.kind == "wait" and x.need is not None and x.text == "s_nop 0") or x.kind == "comment"
        nd = {x.tag for x in body if x.kind == "wait" and dead(x) and x.tag}
        if nd <= DEAD: break
        DEAD.update(nd)
    init = [x for x in init if not dead(x)]; body = [x for x in body if not dead(x)]; drain = [x for x in drain if not dead(x)]
    if cfg.abl:
        def drop(x):
            t = x.text
            return (('exp' in cfg.abl and t.startswith('v_exp')) or ('fma' in cfg.abl and t.startswith('v_fma')) or
                    ('ds' in cfg.abl and t.startswith('ds_read') and ' a[' in t) or ('dma' in cfg.abl and x.kind == 'dma') or
                    ('bar' in cfg.abl and x.kind == 'barrier') or ('cvt' in cfg.abl.split(',') and t.startswith('v_cvt') and int(t.split()[1][1:-1]) < 128) or
                    ('st' in cfg.abl.split(',') and x.kind == 'store') or ('dw' in cfg.abl and t.startswith('ds_write')) or ('rd' in cfg.abl and t.startswith('ds_read_b128 v')) or ('pk' in cfg.abl and t.startswith('v_pk_mul')) or ('perm' in cfg.abl and 'permlane' in t) or ('third' in cfg.abl and x.tag and x.tag[0] in 'KVD' and x.tag[1:].isdigit() and int(x.tag[1:]) % 3 == 1) or ('qc' in cfg.abl and 'accvgpr_mov' in t) or ('ecvt' in cfg.abl and t.startswith('v_cvt') and int(t.split()[1][1:-1]) >= 128) or ('wt' in cfg.abl and x.kind == 'wait' and x.need and x.need[0][1] in (['OR0'], ['OR1'], ['OR2'], ['OR3'])) or ('ones' in cfg.abl and x.kind == 'mfma' and 'v[32:35]' in t) or
                    ('epi' in cfg.abl and (t.startswith('v_mul_f32 v1') or t.startswith('v_mul_f32 v2') or t.startswith('ds_write') or t.startswith('ds_read_b128 v') or (t.startswith('v_cvt') and int(t.split()[1][1:-1]) >= 128))))
        body = [x for x in body if not drop(x)]
    init, n1 = fix_hazards(init); body, n2 = fix_hazards(body); drain, n3 = fix_hazards(drain)
    print("nops inserted", n1, n2, n3, file=sys.stderr)
    trace = init + body[ent(body):] + tail + (body + tail) * 5 + drain
    errs = check(trace)
    errs += dataflow(trace) + ldsflow(trace)
    written = {("s", 0), ("s", 1), ("s", 2), ("v", 0)}
    for x in trace:
        for r in x.rd:
            if r[0] in ("s", "m0") and r not in written: errs.append(f"uninitialised {r} read by [{x.text}]")
            if r[0] == "v" and r not in written and x.kind in ("dma", "vmem", "ds") : errs.append(f"uninitialised {r} read by [{x.text}]") if not x.text.startswith("ds_write") else None
        written.update(x.wr)
    seen = set()
    for e in errs:
        if e not in seen: print("ERR", e, file=sys.stderr); seen.add(e)
    tot = sum(x.cost for x in body)
    under = sum(1 for f in stats[1:] if f < 8)
    est = sum(8 + max(8, f) for f in stats[1:])
    seg = [sum(8 + max(8, f) for f in stats[1 + 136 * k:1 + 136 * (k + 1)]) for k in range(8)]
    print("est per 2 tiles", seg, file=sys.stderr)
    print(f"body instrs {len(body)} issue-cycles {tot} est cycles {est} underfilled gaps {under}", file=sys.stderr)
    hdr = open("header.txt").read()
    lines = [hdr, '.amdgcn_target "amdgcn-amd-amdhsa--gfx950"', ".text", f".globl {NAME}", ".p2align 8", f".type {NAME},@function", f"{NAME}:"]
    lines += ["  " + x.text for x in init]
    lines += [".p2align 6"] + ["  s_nop 0"] * cfg.pad + ["; ---- one block of 256 query rows x 512 keys (16 key tiles x 4 query groups per wave); 6 trips", "L_loop:"] + ["  " + x.text for x in body + tail]
    lines += ["; ---- drain: last PV and the last block's epilogue"] + ["  " + x.text for x in drain]
    if cfg.stamps:
        lines += ["""  s_waitcnt vmcnt(0) lgkmcnt(0)
  s_memtime s[70:71]
  s_memrealtime s[78:79]
  s_waitcnt lgkmcnt(0)
  v_writelane_b32 v44, s70, 49
  v_writelane_b32 v45, s72, 49
  v_writelane_b32 v50, s78, 54
  s_sub_u32 s78, s78, s76
  v_writelane_b32 v44, s78, 0
  v_writelane_b32 v45, s76, 0
  s_lshl_b32 s75, s2, 2
  s_add_u32 s75, s75, s%d
  s_lshl_b32 s75, s75, 9
  v_lshlrev_b32 v46, 3, v0
  buffer_store_dwordx2 v[44:45], v46, s[%d:%d], s75 offen
  s_add_u32 s94, s75, 0x100000
  v_lshlrev_b32 v46, 2, v0
  buffer_store_dword v50, v46, s[36:39], s94 offen
  s_cmp_lg_u32 s75, 0
  s_cbranch_scc1 L_end
  s_mov_b32 s84, s12
  s_mov_b32 s85, s13
  s_mov_b32 s86, 256
  s_mov_b32 s87, 0x00020000
  v_readlane_b32 s75, v45, 1
  v_add_u32 v46, 2, v0
  v_mul_u32_u24 v47, 43691, v46
  v_lshrrev_b32 v47, 17, v47
  v_mul_u32_u24 v48, 3, v47
  v_sub_u32 v48, v46, v48
  v_subrev_u32 v47, 1, v47
  v_subrev_u32 v49, s75, v44
  v_cmp_eq_u32 vcc, 0, v48
  v_mov_b32 v50, 1000
  v_cndmask_b32 v47, v50, v47, vcc
  v_cmp_lt_u32 vcc, 40, v0
  s_nop 1
  v_cndmask_b32 v47, v47, v50, vcc
  v_writelane_b32 v47, 14, 0
  v_writelane_b32 v47, 15, 49
  v_readlane_b32 s75, v44, 0
  s_nop 3
  v_writelane_b32 v49, s75, 0
  v_lshlrev_b32 v47, 2, v47
  buffer_store_dword v49, v47, s[84:87], 0 offen""" % (S_WAVE, S_W, S_W + 3)]
    lines += ["L_end:", "  s_endpgm"]
    if cfg.slow:
        import slow
        lines.append(slow.emit(globals()))
    else: lines.append(slow_stub())
    lines += ['.section .rodata,"a"', ".p2align 6", f".amdhsa_kernel {NAME}", "  .amdhsa_next_free_vgpr 512", "  .amdhsa_next_free_sgpr 102",
              "  .amdhsa_accum_offset 256", "  .amdhsa_group_segment_fixed_size 0", "  .amdhsa_kernarg_size 48", "  .amdhsa_user_sgpr_count 2",
              "  .amdhsa_user_sgpr_kernarg_segment_ptr 1", "  .amdhsa_system_sgpr_workgroup_id_x 1", ".end_amdhsa_kernel"]
    open(sys.argv[1], "w").write("\n".join(lines) + "\n")
    if errs and not cfg.abl: sys.exit(1)
main()
```
